```python
import torch

def _softmax(x, axis=-1):
    return torch.softmax(x, dim=axis)
def _gelu(x):
    return torch.nn.functional.gelu(x, approximate="tanh")
def _silu(x):
    return torch.nn.functional.silu(x)
def _sigmoid(x):
    return torch.sigmoid(x)
def _layernorm(x, axis=-1, eps=1e-5):
    m = x.mean(dim=axis, keepdim=True)
    v = x.var(dim=axis, keepdim=True, unbiased=False)
    return (x - m) / torch.sqrt(v + eps)
def _scatter_add(tgt, idx, src, axis=0):
    return tgt.clone().index_add_(axis, idx, src)
def _segment_sum(src, seg, n):
    out = torch.zeros((n,) + src.shape[1:], dtype=src.dtype)
    return out.index_add_(0, seg, src)
def _pad(x, pw):
    flat = tuple(v for pair in reversed(pw) for v in pair)
    return torch.nn.functional.pad(x, flat)

kernel_name = 'parallel_sum__softmax_full_mha__glu_gated_geglu__prompt'

def setup_inputs():

    _w = (lambda a: (lambda t: t.to(torch.bfloat16) if t.is_floating_point() else t)(torch.as_tensor(a)))
    def _A_setup():
        B, S, D = 1, 2048, 576
        return {
            "x": _w((lambda *s: torch.randn(*s, dtype=torch.bfloat16) * 0.05)(B, S, D)),
            "wqkv": _w((lambda *s: torch.randn(*s, dtype=torch.bfloat16) * 0.05)(D, 3 * D)),
            "wo": _w((lambda *s: torch.randn(*s, dtype=torch.bfloat16) * 0.05)(D, D)),
        }
    _A_in = _A_setup()

    def _B_setup():
        B, S, Dm, Df = 1, 2048, 576, 4608
        return {
            "x": _w((lambda *s: torch.randn(*s, dtype=torch.bfloat16) * 0.05)(B, S, Dm)),
            "w_gate": _w((lambda *s: torch.randn(*s, dtype=torch.bfloat16) * 0.8)(Dm, Df) * (Dm ** -0.5)),
            "w_up": _w((lambda *s: torch.randn(*s, dtype=torch.bfloat16) * 0.8)(Dm, Df) * (Dm ** -0.5)),
            "w_down": _w((lambda *s: torch.randn(*s, dtype=torch.bfloat16) * 0.8)(Df, Dm) * (Df ** -0.5)),
        }
    _B_in = _B_setup()

    return {
        "A_x": _A_in["x"],
        "A_wqkv": _A_in["wqkv"],
        "A_wo": _A_in["wo"],
        "B_x": _B_in["x"],
        "B_w_gate": _B_in["w_gate"],
        "B_w_up": _B_in["w_up"],
        "B_w_down": _B_in["w_down"],
    }

def reference(A_x, A_wqkv, A_wo, B_x, B_w_gate, B_w_up, B_w_down):
    def _A_ref(x, wqkv, wo):
        B, S, D = x.shape
        H = 32; Dh = D // H
        qkv = (lambda x, *d: x.permute(*d))((x @ wqkv).reshape(B, S, 3, H, Dh), 2, 0, 3, 1, 4)
        q, k, v = qkv[0], qkv[1], qkv[2]
        scale = Dh ** -0.5
        scores = torch.einsum("bhqd,bhkd->bhqk", q, k) * scale
        p = _softmax(scores, axis=-1)
        o = torch.einsum("bhqk,bhkd->bhqd", p, v)
        return (lambda x, *d: x.permute(*d))(o, 0, 2, 1, 3).reshape(B, S, D) @ wo

    def _B_ref(x, w_gate, w_up, w_down):
        g = torch.einsum("bsd,df->bsf", x, w_gate)
        u = torch.einsum("bsd,df->bsf", x, w_up)
        h = _gelu(g) * u
        return torch.einsum("bsf,fd->bsd", h, w_down)

    x = A_x
    xn = _layernorm(x, axis=-1)
    return x + _A_ref(xn, A_wqkv, A_wo) + _B_ref(xn, B_w_gate, B_w_up, B_w_down)
```

```python
import re

class Blk:
    def __init__(self, name=""):
        self.name = name
        self.ins = []
    def __call__(self, s, *a):
        for line in s.split("\n"):
            line = line.strip()
            if line: self.ins.append(line)
        return self
    def ext(self, other):
        self.ins += other.ins if isinstance(other, Blk) else list(other)
        return self
    def label(self, l): self.ins.append(l + ":"); return self
    def text(self):
        return "\n".join((i if i.endswith(":") or i.startswith(".") else "  " + i) for i in self.ins) + "\n"
    def __len__(self): return len(self.ins)

def vr(a, n=1): return f"v{a}" if n == 1 else f"v[{a}:{a+n-1}]"
def ar(a, n=1): return f"a{a}" if n == 1 else f"a[{a}:{a+n-1}]"
def sr(a, n=1): return f"s{a}" if n == 1 else f"s[{a}:{a+n-1}]"

def interleave(main, fill, start=0, end=None, anchor=None):
    anchor = anchor or (lambda s: s.startswith("v_mfma") or s.startswith("v_smfmac"))
    idx = [i for i, s in enumerate(main) if anchor(s)]
    end = len(idx) if end is None else end
    n = end - start
    out = []
    k = 0; a = 0
    for i, s in enumerate(main):
        out.append(s)
        if anchor(s):
            if start <= a < end:
                tgt = ((a - start + 1) * len(fill) + n - 1) // n if False else ((a - start + 1) * len(fill)) // n
                while k < tgt: out.append(fill[k]); k += 1
            a += 1
    assert k == len(fill), (k, len(fill))
    return out

_reg = re.compile(r"^(-|abs\()?([vas])(\d+)\)?$|^(-)?([vas])\[(\d+):(\d+)\]$")
def regs_of(op):
    op = op.strip()
    if op.startswith("|") and op.endswith("|"): op = op[1:-1]
    if op.startswith("-|"): op = op[2:-1]
    m = _reg.match(op)
    if m:
        if m.group(2): return [(m.group(2), int(m.group(3)))]
        return [(m.group(5), r) for r in range(int(m.group(6)), int(m.group(7)) + 1)]
    if op == "vcc": return [("s", "vcc")]
    if op in ("vcc_lo", "vcc_hi"): return [("s", "vcc")]
    if op == "exec": return [("s", "exec")]
    if op == "m0": return [("s", "m0")]
    return []

TRANS = ("v_exp_", "v_log_", "v_rcp_", "v_rsq_", "v_sqrt_", "v_sin_", "v_cos_")
def parse(line):
    line = line.split(";")[0].strip()
    if not line or line.endswith(":") or line.startswith("."): return None
    parts = line.split(None, 1)
    mn = parts[0]
    rest = parts[1] if len(parts) > 1 else ""
    ops = []; cur = ""; d = 0
    for ch in rest:
        if ch == "[": d += 1
        if ch == "]": d -= 1
        if ch == "," and d == 0: ops.append(cur.strip()); cur = ""
        else: cur += ch
    if cur.strip(): ops.append(cur.strip())
    mods = ""
    if ops:
        last = ops[-1].split(None, 1)
        if len(last) > 1 and not last[0].startswith("vmcnt") and not last[0].startswith("lgkmcnt"):
            ops[-1] = last[0]; mods = last[1]
    I = dict(mn=mn, ops=ops, mods=mods, line=line, defs=[], uses=[], kind="other")
    R = [regs_of(o) for o in ops]
    if mn.startswith("v_mfma") or mn.startswith("v_smfmac"):
        I["kind"] = "mfma"
        I["defs"] = R[0]; I["A"] = R[1]; I["B"] = R[2]
        if mn.startswith("v_smfmac"): I["C"] = R[0]; I["idx"] = R[3]; I["uses"] = R[0] + R[1] + R[2] + R[3]
        else: I["C"] = R[3]; I["uses"] = R[1] + R[2] + R[3]
        I["passes"] = 4 if "16x16" in mn else 8
    elif mn.startswith("v_"):
        I["kind"] = "valu"
        I["trans"] = mn.startswith(TRANS)
        I["dpp"] = any(k in mods for k in ("quad_perm", "row_", "wave_")) or mn.endswith("_dpp")
        if mn.startswith("v_cmp"):
            I["defs"] = R[0] + ([("s", "exec")] if mn.startswith("v_cmpx") else []); I["uses"] = sum(R[1:], [])
        elif mn.startswith("v_permlane") and "swap" in mn:
            I["defs"] = R[0] + R[1]; I["uses"] = R[0] + R[1]; I["perm"] = True
        elif mn.startswith(("v_add_co", "v_sub_co", "v_subrev_co")):
            I["defs"] = R[0] + R[1]; I["uses"] = sum(R[2:], [])
        elif mn.startswith(("v_addc_co", "v_subb_co")):
            I["defs"] = R[0] + R[1]; I["uses"] = sum(R[2:], [])
        elif mn.startswith(("v_fmac", "v_dot2c", "v_mac", "v_pk_fmac")):
            I["defs"] = R[0]; I["uses"] = sum(R, [])
        elif mn.startswith("v_cndmask") and len(ops) == 3:
            I["defs"] = R[0]; I["uses"] = R[1] + R[2] + [("s", "vcc")]
        else:
            I["defs"] = R[0]; I["uses"] = sum(R[1:], [])
            if "UNUSED_PRESERVE" in mods or mn.startswith("v_writelane"): I["uses"] += R[0]
        if mn.startswith(("v_readfirstlane", "v_readlane")): I["rdlane"] = True
    elif mn.startswith("ds_"):
        I["kind"] = "ds"
        if mn.startswith(("ds_read", "ds_bpermute", "ds_permute", "ds_swizzle")):
            I["defs"] = R[0]; I["uses"] = sum(R[1:], []); I["load"] = True
        else:
            I["uses"] = sum(R, [])
    elif mn.startswith(("buffer_", "global_")):
        I["kind"] = "vmem"
        lds = (" lds" in " " + mods) or "_lds_" in mn
        I["lds"] = lds
        if mn.startswith(("buffer_wbl2", "buffer_inv")):
            pass
        elif lds:
            I["uses"] = sum(R, []) + [("s", "m0")]
        elif "load" in mn:
            I["defs"] = R[0]; I["uses"] = sum(R[1:], []); I["load"] = True
        elif "atomic" in mn:
            I["uses"] = sum(R, [])
            if "sc0" in mods: I["defs"] = R[0] if mn.startswith("buffer") else R[0]; I["load"] = True
        else:
            I["uses"] = sum(R, []); I["store"] = True
            if mn.startswith("buffer"): I["data"] = R[0]
            else: I["data"] = R[1]
            I["wide"] = mn.endswith(("x3", "x4"))
    elif mn.startswith("s_"):
        I["kind"] = "salu"
        if mn.startswith("s_waitcnt"): I["kind"] = "wait"
        elif mn == "s_nop": I["kind"] = "nop"; I["n"] = int(ops[0], 0) + 1
        elif mn.startswith(("s_load", "s_buffer_load", "s_memtime", "s_memrealtime")):
            I["kind"] = "smem"; I["defs"] = R[0]; I["uses"] = sum(R[1:], [])
        elif mn.startswith(("s_cmp", "s_bitcmp")): I["uses"] = sum(R, [])
        elif mn.startswith(("s_cbranch", "s_branch", "s_barrier", "s_endpgm", "s_setprio", "s_sleep")): pass
        elif "saveexec" in mn: I["defs"] = R[0] + [("s", "exec")]; I["uses"] = sum(R[1:], []) + [("s", "exec")]
        else: I["defs"] = R[0]; I["uses"] = sum(R[1:], [])
    return I

def _ov(a, b): return bool(set(a) & set(b))
def check(trace, name="", quiet=False):
    P = []
    ins = [p for p in (parse(l) for l in trace) if p is not None]
    pos = []; t = 0
    for I in ins:
        pos.append(t)
        t += I["n"] if I["kind"] == "nop" else (2 if I.get("trans") else 1)
    def dist(i, j):
        return pos[j] - pos[i] - 1 if ins[i]["kind"] != "nop" else pos[j] - pos[i] - ins[i]["n"]
    W = 20
    for j, J in enumerate(ins):
        for i in range(j - 1, -1, -1):
            d = pos[j] - pos[i] - (ins[i]["n"] if ins[i]["kind"] == "nop" else (2 if ins[i].get("trans") else 1))
            if d > W: break
            I = ins[i]
            need = 0; why = ""
            def req(n, w):
                nonlocal need, why
                if n > need: need, why = n, w
            vdefs = [r for r in I["defs"] if r[0] in "va"]
            sdefs = [r for r in I["defs"] if r[0] == "s"]
            if I["kind"] == "valu":
                if J["kind"] == "mfma" and _ov(vdefs, J["uses"]): req(2, "VALU->MFMA")
                if J["kind"] == "valu":
                    if I.get("trans") and not J.get("trans") and _ov(vdefs, J["uses"]): req(1, "trans->VALU")
                    if J.get("dpp") and _ov(vdefs, J["uses"]): req(2, "VALU->DPP")
                    if J.get("perm") and _ov(vdefs, J["uses"]): req(2, "VALU->permlane")
                    if J.get("rdlane") and _ov(vdefs, J["uses"]): req(1, "VALU->readlane")
                    if _ov(sdefs, J["uses"]): req(2, "VALU sgpr->VALU const")
                if J["kind"] == "vmem" and _ov(sdefs, J["uses"]): req(5, "VALU sgpr->VMEM")
                if J["kind"] == "salu" and _ov(sdefs, J["uses"]): req(1, "VALU sgpr->SALU (pad)")
            if I["kind"] == "mfma":
                n = {4: (8, 8, 6, 3), 8: (12, 12, 10, 7)}[I["passes"]]
                if J["kind"] in ("valu",) and (_ov(vdefs, J["uses"]) or _ov(vdefs, J["defs"])): req(n[0], "MFMA D->VALU")
                if J["kind"] in ("vmem", "ds") and (_ov(vdefs, J["uses"]) or _ov(vdefs, J["defs"])): req(n[0], "MFMA D->mem")
                if J["kind"] == "mfma":
                    if _ov(vdefs, J["A"] + J["B"] + J.get("idx", [])): req(n[1], "MFMA D->MFMA A/B")
                    if _ov(vdefs, J["C"]) and not (vdefs == J["C"] and I["passes"] == J["passes"]): req(n[2], "MFMA D->MFMA C partial")
                    if _ov(vdefs, J["defs"]) and not _ov(vdefs, J["C"]) and vdefs != J["defs"]: req(n[2], "MFMA D->MFMA D partial WAW")
                if J["kind"] == "valu" and _ov(I["C"], J["defs"]): req(n[3], "MFMA C read -> VALU write")
            if I["kind"] == "salu" and ("s", "m0") in sdefs and J["kind"] == "vmem" and J.get("lds"): req(1, "M0->LDS DMA")
            if I["kind"] == "vmem" and I.get("store") and I.get("wide"):
                if J["kind"] == "valu" and _ov(I["data"], J["defs"]): req(2, "wide store WAR")
                elif _ov(I["data"], J["defs"]): req(1, "wide store WAR")
            if d < need:
                P.append(f"[{name}] hazard {why}: need {need} have {d}:\n    {I['line']}\n    {J['line']}")
    vm = []; lg = []
    for J in ins:
        if J["kind"] == "wait":
            txt = " ".join(J["ops"]) + " " + J["mods"]
            m = re.search(r"vmcnt\((\d+)\)", txt)
            if m:
                n = int(m.group(1)); assert n <= 63, txt
                while len(vm) > n: vm.pop(0)
            m = re.search(r"lgkmcnt\((\d+)\)", txt)
            if m:
                n = int(m.group(1)); assert n <= 15, txt
                if any(k == "smem" for k, _ in lg):
                    if n == 0: lg = []
                else:
                    while len(lg) > n: lg.pop(0)
            continue
        touched = J["uses"] + J["defs"]
        for q, nm in ((vm, "vmcnt"), (lg, "lgkmcnt")):
            for k, dfs in q:
                if _ov(dfs, touched):
                    P.append(f"[{name}] missing {nm} wait: {J['line']}  (pending {k} -> {sorted(set(dfs)&set(touched))[:4]})")
        if J["kind"] == "vmem":
            vm.append(("vmem", J["defs"] if J.get("load") else []))
            if len(vm) > 63: P.append(f"[{name}] vmcnt overflow ({len(vm)}) at {J['line']}")
        elif J["kind"] == "ds":
            lg.append(("ds", J["defs"] if J.get("load") else []))
        elif J["kind"] == "smem":
            lg.append(("smem", J["defs"]))
    if not quiet:
        for p in P[:30]: print(p)
        print(f"check[{name}]: {len(ins)} instrs, {len(P)} problems")
    return P

def kernel_text(name, body_text, vgpr, agpr_off, sgpr=100):
    return f"""
.text
.globl {name}
.p2align 8
.type {name},@function
{name}:
{body_text}
.section .rodata,"a"
.p2align 6
.amdhsa_kernel {name}
  .amdhsa_next_free_vgpr {vgpr}
  .amdhsa_next_free_sgpr {sgpr}
  .amdhsa_accum_offset {agpr_off}
  .amdhsa_group_segment_fixed_size 0
  .amdhsa_kernarg_size 80
  .amdhsa_user_sgpr_count 2
  .amdhsa_user_sgpr_kernarg_segment_ptr 1
  .amdhsa_system_sgpr_workgroup_id_x 1
.end_amdhsa_kernel
"""

class Waits:
    def __init__(self): self.n = 0; self.val = {}
    def wl(self, *regs):
        self.n += 1; return f"@WL {self.n} " + " ".join(regs)
    def wv(self, tag):
        self.n += 1; return f"@WV {self.n} {tag}"
    def simulate(self, trace):
        vm = []; lg = []
        for s in trace:
            if s.startswith("@WL"):
                p = s.split(); site = int(p[1]); regs = sum((regs_of(x) for x in p[2:]), [])
                idx = max((i for i, d in enumerate(lg) if _ov(d, regs)), default=-1)
                if idx >= 0:
                    n = min(15, len(lg) - 1 - idx)
                    self.val[site] = min(self.val.get(site, 99), n)
                    lg = lg[len(lg) - n:] if n else []
                else: self.val.setdefault(site, 99)
                continue
            if s.startswith("@WV"):
                p = s.split(); site = int(p[1]); tag = p[2]
                idx = max((i for i, t in enumerate(vm) if t == tag), default=-1)
                if idx >= 0:
                    n = min(63, len(vm) - 1 - idx)
                    self.val[site] = min(self.val.get(site, 99), n)
                    vm = vm[len(vm) - n:] if n else []
                else: self.val.setdefault(site, 99)
                continue
            I = parse(s)
            if I is None: continue
            if I["kind"] == "wait":
                txt = " ".join(I["ops"]) + " " + I["mods"]
                m = re.search(r"vmcnt\((\d+)\)", txt)
                if m:
                    n = int(m.group(1)); vm = vm[len(vm) - n:] if n < len(vm) and n else ([] if n == 0 else vm)
                m = re.search(r"lgkmcnt\((\d+)\)", txt)
                if m:
                    n = int(m.group(1)); lg = lg[len(lg) - n:] if n < len(lg) and n else ([] if n == 0 else lg)
            elif I["kind"] == "vmem":
                m = re.search(r";#(\S+)", s); vm.append(m.group(1) if m else "")
            elif I["kind"] == "ds":
                lg.append(I["defs"] if I.get("load") else [])
    def resolve(self, seq):
        out = []
        for s in seq:
            if s.startswith("@WL"):
                n = self.val.get(int(s.split()[1]), 0)
                if n != 99: out.append(f"s_waitcnt lgkmcnt({n})")
            elif s.startswith("@WV"):
                n = self.val.get(int(s.split()[1]), 0)
                if n != 99: out.append(f"s_waitcnt vmcnt({n})")
            else: out.append(s)
        return out
```

```python
import sys, importlib
from common import *
def build_all(cfg):
    head = open("parallel_sum__softmax_full_mha__glu_gated_geglu__prompt.s.ref").read().split("; Override launch")[0]
    txt = head
    for (name, text), grid, block, lds in cfg:
        txt += f"; @launch kernel={name} grid=({grid},1,1) block=({block},1,1) lds={lds}\n"
    txt += '.amdgcn_target "amdgcn-amd-amdhsa--gfx950"\n'
    seen = set()
    for (name, text), grid, block, lds in cfg:
        if name in seen: continue
        seen.add(name); txt += text
    return txt
```

```python
from asmlib import *
KA_X, KA_WQKV, KA_WO, KA_BX, KA_WG, KA_WU, KA_WD, KA_OUT, KA_DBG, KA_WS = [8*i for i in range(10)]
S, D, DF, H, DH = 2048, 576, 4608, 32, 18
SZ_X = S*D*2
SZ_WQKV = D*3*D*2
SZ_WO = D*D*2
SZ_WG = D*DF*2
SZ_T = S*D*2
WS_XN = 0
WS_Q  = 1*SZ_T
WS_K  = 2*SZ_T
WS_V  = 3*SZ_T
WS_O  = 4*SZ_T
WS_H  = 5*SZ_T
SZ_H  = S*DF*2
WS_P  = WS_H + SZ_H
NSPLIT = 8
WS_WOF = WS_P + 8*SZ_T
PREFIX = "parallel_sum__softmax_full_mha__glu_gated_geglu__prompt"

def srd(b, s, ptr, size, off=0):
    if off:
        b(f"s_add_u32 s{s}, s{ptr}, {off}")
        b(f"s_addc_u32 s{s+1}, s{ptr+1}, 0")
    else:
        b(f"s_mov_b32 s{s}, s{ptr}")
        b(f"s_mov_b32 s{s+1}, s{ptr+1}")
    b(f"s_mov_b32 s{s+2}, {size}")
    b(f"s_mov_b32 s{s+3}, 0x20000")

def f32bits(x):
    import struct
    return struct.unpack("<I", struct.pack("<f", x))[0]
def f32hex(x): return f"0x{f32bits(x):08x}"

PROF_BASE = 48 << 20
def prof_begin(b):
    b("s_memtime s[90:91]")
    b("s_memrealtime s[92:93]")
    b("v_readfirstlane_b32 s89, v0"); b("s_nop 3"); b("s_lshr_b32 s89, s89, 6"); b("s_mov_b32 s98, 0"); b("s_mov_b32 s99, 0"); b("s_waitcnt lgkmcnt(0)")
def prof_end(b, kidx, nwaves):
    b("s_waitcnt vmcnt(0) lgkmcnt(0)")
    b("s_memtime s[94:95]")
    b("s_memrealtime s[96:97]")
    b(f"s_load_dwordx2 s[84:85], s[0:1], {KA_WS}")
    b("s_waitcnt lgkmcnt(0)")
    b(f"s_add_u32 s84, s84, {PROF_BASE + kidx*(1<<16)}")
    b("s_addc_u32 s85, s85, 0")
    b("s_mov_b32 s86, 0x10000")
    b("s_mov_b32 s87, 0x20000")
    b("s_sub_u32 s94, s94, s90")
    b("v_mov_b32 v8, s94")
    b("v_mov_b32 v9, s92")
    b("v_mov_b32 v10, s96")
    b("v_mov_b32 v11, s98")
    b(f"s_mul_i32 s88, s2, {nwaves}")
    b("s_add_u32 s88, s88, s89")
    b("s_lshl_b32 s88, s88, 4")
    b("v_mov_b32 v12, 0")
    b("buffer_store_dwordx4 v[8:11], v12, s[84:87], s88 offen")
```

```python
from common import *
def gen_k0():
    name = "ln_kernel"
    b = Blk(name)
    b("s_cmp_ge_u32 s2, 256")
    b("s_cbranch_scc1 L_k0_end")
    b(f"s_load_dwordx2 s[4:5], s[0:1], {KA_X}")
    b(f"s_load_dwordx2 s[6:7], s[0:1], {KA_WS}")
    b("v_lshrrev_b32 v1, 5, v0")
    b("s_lshl_b32 s3, s2, 3")
    b("v_add_u32 v1, s3, v1")
    b("v_and_b32 v2, 31, v0")
    b("v_mul_u32_u24 v3, 1152, v1")
    b("v_lshl_add_u32 v3, v2, 2, v3")
    b("v_lshrrev_b32 v4, 5, v1")
    b("v_mul_u32_u24 v4, 36864, v4")
    b("v_lshrrev_b32 v5, 3, v2")
    b("v_lshl_add_u32 v4, v5, 10, v4")
    b("v_bfe_u32 v5, v2, 2, 1")
    b("v_lshl_add_u32 v4, v5, 9, v4")
    b("v_and_b32 v5, 31, v1")
    b("v_lshl_add_u32 v4, v5, 4, v4")
    b("v_and_b32 v5, 3, v2")
    b("v_lshl_add_u32 v4, v5, 2, v4")
    b("s_waitcnt lgkmcnt(0)")
    srd(b, 8, 4, SZ_X)
    srd(b, 12, 6, SZ_T, WS_XN)
    X = 8
    for i in range(9): b(f"buffer_load_dword v{X+i}, v3, s[8:11], 0 offen offset:{i*128}")
    L = 20
    for i in range(9):
        b(f"s_waitcnt vmcnt({8-i})")
        b(f"v_lshlrev_b32 v{L+2*i}, 16, v{X+i}")
        b(f"v_and_b32 v{L+2*i+1}, 0xffff0000, v{X+i}")
    def reduce32(r, t):
        b("s_nop 1")
        b(f"v_add_f32_dpp v{r}, v{r}, v{r} quad_perm:[1,0,3,2] row_mask:0xf bank_mask:0xf")
        b("s_nop 1")
        b(f"v_add_f32_dpp v{r}, v{r}, v{r} quad_perm:[2,3,0,1] row_mask:0xf bank_mask:0xf")
        b("s_nop 1")
        b(f"v_add_f32_dpp v{r}, v{r}, v{r} row_half_mirror row_mask:0xf bank_mask:0xf")
        b("s_nop 1")
        b(f"v_add_f32_dpp v{r}, v{r}, v{r} row_mirror row_mask:0xf bank_mask:0xf")
        b(f"v_mov_b32 v{t}, v{r}") if False else None
        b("s_nop 0")
        b(f"v_mov_b32 v{t}, v{r}")
        b("s_nop 1")
        b(f"v_permlane16_swap_b32 v{r}, v{t}")
        b("s_nop 0")
        b(f"v_add_f32 v{r}, v{r}, v{t}")
    b(f"v_add_f32 v40, v{L}, v{L+1}")
    b(f"v_add_f32 v41, v{L+2}, v{L+3}")
    for i in range(2, 9):
        b(f"v_add_f32 v40, v40, v{L+2*i}")
        b(f"v_add_f32 v41, v41, v{L+2*i+1}")
    b("v_add_f32 v40, v40, v41")
    reduce32(40, 42)
    b(f"v_mul_f32 v40, {f32hex(1.0/576)}, v40")
    b(f"v_sub_f32 v43, v{L}, v40")
    b(f"v_mul_f32 v44, v43, v43")
    b(f"v_sub_f32 v43, v{L+1}, v40")
    b(f"v_mul_f32 v45, v43, v43")
    for i in range(1, 9):
        b(f"v_sub_f32 v43, v{L+2*i}, v40")
        b(f"v_sub_f32 v46, v{L+2*i+1}, v40")
        b(f"v_fmac_f32 v44, v43, v43")
        b(f"v_fmac_f32 v45, v46, v46")
    b("v_add_f32 v44, v44, v45")
    reduce32(44, 42)
    b(f"v_mul_f32 v44, {f32hex(1.0/576)}, v44")
    b("v_cvt_pk_bf16_f32 v45, v40, v44")
    b("v_lshlrev_b32 v40, 16, v45")
    b("v_and_b32 v44, 0xffff0000, v45")
    b(f"v_add_f32 v44, {f32hex(1e-5)}, v44")
    b("v_cvt_pk_bf16_f32 v44, v44, v44")
    b("v_and_b32 v44, 0xffff0000, v44")
    b("v_sqrt_f32 v44, v44")
    b("s_nop 0")
    b("v_cvt_pk_bf16_f32 v44, v44, v44")
    b("v_and_b32 v44, 0xffff0000, v44")
    b("v_rcp_f32 v44, v44")
    for i in range(9):
        b(f"v_sub_f32 v{L+2*i}, v{L+2*i}, v40")
        b(f"v_sub_f32 v{L+2*i+1}, v{L+2*i+1}, v40")
        b(f"v_cvt_pk_bf16_f32 v{X+i}, v{L+2*i}, v{L+2*i+1}")
    for i in range(9):
        b(f"v_lshlrev_b32 v{L+2*i}, 16, v{X+i}")
        b(f"v_and_b32 v{L+2*i+1}, 0xffff0000, v{X+i}")
        b(f"v_mul_f32 v{L+2*i}, v{L+2*i}, v44")
        b(f"v_mul_f32 v{L+2*i+1}, v{L+2*i+1}, v44")
        b(f"v_cvt_pk_bf16_f32 v{X+i}, v{L+2*i}, v{L+2*i+1}")
        b(f"s_mov_b32 s16, {i*4096}")
        b(f"buffer_store_dword v{X+i}, v4, s[12:15], s16 offen")
    b.label("L_k0_end")
    b("s_endpgm")
    check(b.ins, name)
    return name, kernel_text(name, b.text(), 48, 48, 24)
if __name__ == "__main__":
    print(gen_k0()[1][:300])
```

```python
from common import *
import math
HALF = 73728; K1_LDS = 2*HALF
C1 = -2.0*math.sqrt(2.0/math.pi)*math.log2(math.e); C2 = C1*0.044715
QSCALE = (18.0**-0.5)*math.log2(math.e)
sWS, sWQp, sWGp, sWUp = 4, 6, 8, 10
sXN, sLD, sH, sO = 12, 16, 20, 24
sWPb = 28
sW, sTB, sN1, sN2, sT, sP, sHoff, sW1024, sLDo, sLDs, sTmp, sTmp2, sScale, sOff, sTn, sCG = range(32, 48)
vL16, vL8, vDQ, vDP, vLD, vC2 = 1, 2, 3, 4, 5, 6
vTR = [7, 8, 9, 10]
vT = 12
vW = 16
ACC = [(40, 56), (72, 88)]
vPK = 104
OPT = set()
W = None
PRE = 3
STEP = 2

def gelu_epilogue(G, U):
    e = []
    for grp in range(4):
        E = [4*grp+i for i in range(4)]
        e += [f"v_mul_f32 v{vT+i}, v{G+E[i]}, v{G+E[i]}" for i in range(4)]
        e += [f"v_fmaak_f32 v{vT+i}, v{vT+i}, v{vC2}, {f32hex(C1)}" for i in range(4)]
        e += [f"v_mul_f32 v{vT+i}, v{vT+i}, v{G+E[i]}" for i in range(4)]
        e += [f"v_exp_f32 v{vT+i}, v{vT+i}" for i in range(4)]
        e += [f"v_mul_f32 v{G+E[i]}, v{G+E[i]}, v{U+E[i]}" for i in range(4)]
        e += [f"v_add_f32 v{vT+i}, 1.0, v{vT+i}" for i in range(4)]
        e += [f"v_rcp_f32 v{vT+i}, v{vT+i}" for i in range(4)]
        e += [f"v_mul_f32 v{G+E[i]}, v{G+E[i]}, v{vT+i}" for i in range(4)]
        e += [f"v_cvt_pk_bf16_f32 v{U+2*grp}, v{G+4*grp}, v{G+4*grp+1}",
              f"v_cvt_pk_bf16_f32 v{U+2*grp+1}, v{G+4*grp+2}, v{G+4*grp+3}"]
        if grp % 2 == 1:
            s = grp//2
            e += [f"buffer_store_dwordx4 v[{U+4*s}:{U+4*s+3}], v{vL16}, s[{sH}:{sH+3}], s{sHoff} offen offset:{s*1024}" + ("" if "plainst" in OPT else " sc1")]
    if "noepi" in OPT: e = [x for x in e if x.startswith("buffer")]
    if "nost" in OPT: e = [x for x in e if not x.startswith("buffer")]
    return e

def lds_loc(half, off):
    if off < 65536 - 512: return vTR[2*half], off
    return vTR[2*half+1], off - 65536
def frag_reads(half, off, r):
    base, o = lds_loc(half, off)
    return [f"ds_read_b64_tr_b16 v[{r}:{r+1}], v{base} offset:{o}",
            f"ds_read_b64_tr_b16 v[{r+2}:{r+3}], v{base} offset:{o+256}"]
def pair_reads(half, ks, mat):
    return frag_reads(half, (ks//4)*8192 + ((ks % 4)*2 + mat)*1024, vW + (ks % 3)*8 + mat*4)
def single_reads(half, ks):
    return frag_reads(half, ks*1024, vW + (ks % 6)*4)

def loader(i, half):
    return [f"s_add_u32 m0, s{sW1024}, {half*HALF + i*8192}",
            f"s_nop 0",
            f"buffer_load_dwordx4 v{vLD}, s[{sLD}:{sLD+3}], s{sLDo} offen lds ;#ld",
            f"s_add_u32 s{sLDo}, s{sLDo}, s{sLDs}"]

def boundary(nxt_reads):
    return [W.wv("ld"), "s_waitcnt lgkmcnt(0)", "s_barrier"]

def first_reads_next(half, kind):
    if kind == "pair": return pair_reads(half, 0, 0) + pair_reads(half, 0, 1), pair_reads(half, 1, 0) + pair_reads(half, 1, 1)
    return single_reads(half, 0) + single_reads(half, 1), single_reads(half, 2)

def place(main, extra):
    out = []; a = 0
    for s in main:
        out.append(s)
        if s.startswith("v_mfma"):
            out += extra.get(a, []); a += 1
    return out

def pair_body(cur, half, nxt_kind, epi=True, first=False):
    G, U = ACC[cur]; Gp, Up = ACC[1-cur]
    main = []
    for ks in range(36):
        if first and ks % 4 == 0 and ks > 0:
            j = ks//4
            if j < 8:
                main.append(W.wv(f"w{j+1}")); main.append("s_barrier")
                if "fstamp" in OPT: main += [f"s_memtime s[{64+2*j}:{65+2*j}]", "s_waitcnt lgkmcnt(0)"]
        if ks == 35:
            main += [W.wv("ld"), "s_waitcnt lgkmcnt(0)", "s_barrier"]
        for mat, A in ((0, G), (1, U)):
            r = vW + (ks % 3)*8 + mat*4
            if first and mat == 0: main.append(W.wv(f"x{ks}"))
            if ks != 35: main.append(W.wl(f"v[{r}:{r+3}]"))
            c = "0" if ks == 0 else f"v[{A}:{A+15}]"
            main.append(f"v_mfma_f32_32x32x16_bf16 v[{A}:{A+15}], v[{r}:{r+3}], a[{4*ks}:{4*ks+3}], {c}")
            if ks + 2 < 36: main += pair_reads(half, ks+2, mat)
            if ks == 35: main += first_reads_next(1-half, nxt_kind)[mat]
    extra = {}
    if first:
        ops = []
        for j in range(PRE, 9): ops += stream_ops(j)
        ops += [loader(i, 1-half) for i in range(9)]
        for q, op in enumerate(ops): extra.setdefault(q*STEP//2, []).extend(op)
    else:
        for i in range(9): extra.setdefault(2*i + 1, []).extend(loader(i, 1-half))
    if "nodma" in OPT: extra = {k: [] for k in extra}
    main = place(main, extra)
    if epi: main = interleave(main, gelu_epilogue(Gp, Up), start=3, end=66)
    return main

def stream_ops(j):
    ops = [[f"s_add_u32 m0, s{sW1024}, {j*8192}",
            f"s_add_u32 s{sTmp}, s{sP}, {4*j*147456}",
            f"buffer_load_dwordx4 v{vDP}, s[{sH+4}:{sH+7}], s{sTmp} offen lds ;#w{j}"]] if False else None
    ops = [[f"s_add_u32 m0, s{sW1024}, {j*8192}",
            f"s_add_u32 s{sTmp}, s{sP}, {4*j*147456}",
            f"buffer_load_dwordx4 v{vDP}, s[{sXN+36}:{sXN+39}], s{sTmp} offen lds ;#w{j}"]]
    for q in range(4):
        ks = 4*j + q
        o = []
        if q == 0: o.append(f"s_add_u32 s{sOff}, s{sOff}, 4096") if j else None
        o.append(f"buffer_load_dwordx4 a[{4*ks}:{4*ks+3}], v{vL16}, s[{sXN}:{sXN+3}], s{sOff} offen offset:{q*1024} ;#x{ks}")
        ops.append(o)
    if 'noW0' in OPT: ops[0] = [x for x in ops[0] if not x.startswith('buffer')]
    if 'noX' in OPT: ops = [ops[0]] + [[x for x in o if not x.startswith('buffer')] for o in ops[1:]]
    if 'xv' in OPT: ops = [[x.replace(f'a[{16*j}', f'v[XX').replace('v[XX', f'a[{16*j}') for x in o] for o in ops]
    return ops

def single_epilogue(isV, A):
    b = Blk()
    if isV:
        b(f"s_sub_u32 s{sTmp}, s{sT}, 36")
        b(f"s_lshl_b32 s{sTmp}, s{sTmp}, 11")
        b(f"s_add_u32 s{sTmp}, s{sTmp}, {2*SZ_T}")
    else:
        b(f"s_cmp_ge_u32 s{sT}, 18")
        b(f"s_cselect_b32 s{sTmp}, {SZ_T - 18*2048}, 0")
        b(f"s_cselect_b32 s{sScale}, 1.0, {f32hex(QSCALE)}")
        b(f"s_lshl_b32 s{sTmp2}, s{sT}, 11")
        b(f"s_add_u32 s{sTmp}, s{sTmp}, s{sTmp2}")
    b(f"s_mul_i32 s{sTmp2}, s{sTB}, 36864")
    b(f"s_add_u32 s{sTmp}, s{sTmp}, s{sTmp2}")
    b("s_nop 5")
    if not isV:
        for i in range(16): b(f"v_mul_f32 v{A+i}, s{sScale}, v{A+i}")
    for i in range(8): b(f"v_cvt_pk_bf16_f32 v{vPK+i}, v{A+2*i}, v{A+2*i+1}")
    if isV:
        b("s_nop 1")
        for s in range(2):
            b(f"v_permlane32_swap_b32 v{vPK+4*s}, v{vPK+4*s+2}")
            b(f"v_permlane32_swap_b32 v{vPK+4*s+1}, v{vPK+4*s+3}")
        b("s_nop 0")
        for s in range(2):
            b(f"buffer_store_dwordx4 v[{vPK+4*s}:{vPK+4*s+3}], v{vL16}, s[{sO}:{sO+3}], s{sTmp} offen offset:{s*1024}")
    else:
        for g in range(4):
            b(f"buffer_store_dwordx2 v[{vPK+2*g}:{vPK+2*g+1}], v{vL8}, s[{sO}:{sO+3}], s{sTmp} offen offset:{g*512}")
    return b.ins

def single_body(isV, half, gelu_set):
    A = ACC[1 - gelu_set][0] if gelu_set is not None else ACC[0][0]
    main = []
    for ks in range(36):
        r = vW + (ks % 6)*4
        if ks == 35:
            main += [W.wv("ld"), "s_waitcnt lgkmcnt(0)", "s_barrier"]
        else: main.append(W.wl(f"v[{r}:{r+3}]"))
        c = "0" if ks == 0 else f"v[{A}:{A+15}]"
        if isV: main.append(f"v_mfma_f32_32x32x16_bf16 v[{A}:{A+15}], a[{4*ks}:{4*ks+3}], v[{r}:{r+3}], {c}")
        else:   main.append(f"v_mfma_f32_32x32x16_bf16 v[{A}:{A+15}], v[{r}:{r+3}], a[{4*ks}:{4*ks+3}], {c}")
        if ks + 3 < 36: main += single_reads(half, ks+3)
        if ks == 35:
            a, bb = first_reads_next(1-half, "single"); main += a + bb
    extra = {}
    for i in range(5): extra.setdefault(2*i + 1, []).extend(loader(i, 1-half))
    main = place(main, extra)
    if gelu_set is not None: main = interleave(main, gelu_epilogue(*ACC[gelu_set]), start=3, end=34)
    return main + single_epilogue(isV, A)

def set_loader_single():
    b = Blk()
    b(f"s_mov_b32 s{sLD}, s{sWQp}")
    b(f"s_mov_b32 s{sLD+1}, s{sWQp+1}")
    b(f"s_cmp_eq_u32 s{sN1}, 0")
    b(f"s_cselect_b32 s{sLD+2}, 0, {SZ_WQKV}")
    b(f"s_lshl_b32 s{sLDo}, s{sTn}, 6")
    b(f"s_mul_i32 s{sTmp}, s{sW}, 55296")
    b(f"s_add_u32 s{sLDo}, s{sLDo}, s{sTmp}")
    b(f"s_mov_b32 s{sLDs}, {8*55296}")
    b(f"v_mov_b32 v{vLD}, v{vDQ}")
    return b.ins

def stamp(b, i, on):
    if on:
        b(f"s_memtime s[{52+2*i}:{53+2*i}]")
        b("s_waitcnt lgkmcnt(0)")

def gen_k1(xmap="R8", prof=False, opts=()):
    global W, PRE, STEP
    OPT.clear(); OPT.update(opts)
    PRE = 3; STEP = 2
    for o in opts:
        if o.startswith('pre'): PRE = int(o[3:])
        if o.startswith('step'): STEP = int(o[4:])
    W = Waits()
    name = "gemm1_kernel"
    b = Blk(name)
    stamp(b, 0, prof)
    b("s_cmp_ge_u32 s2, 256")
    b("s_cbranch_scc1 L_k1_end")
    if "rt" in OPT: prof_begin(b)
    b(f"s_load_dwordx2 s[{sWS}:{sWS+1}], s[0:1], {KA_WS}")
    b(f"s_load_dwordx2 s[{sWQp}:{sWQp+1}], s[0:1], {KA_WQKV}")
    b(f"s_load_dwordx2 s[{sWGp}:{sWGp+1}], s[0:1], {KA_WG}")
    b(f"s_load_dwordx2 s[{sWUp}:{sWUp+1}], s[0:1], {KA_WU}")
    b(f"v_readfirstlane_b32 s{sW}, v0")
    b("v_and_b32 v0, 63, v0")
    b(f"s_lshr_b32 s{sW}, s{sW}, 6")
    b(f"v_lshlrev_b32 v{vL16}, 4, v0")
    b(f"v_lshlrev_b32 v{vL8}, 3, v0")
    b("v_lshrrev_b32 v12, 2, v0")
    b("v_and_b32 v13, 3, v0")
    b("v_lshlrev_b32 v13, 4, v13")
    b(f"v_mul_u32_u24 v{vDQ}, 3456, v12")
    b(f"v_add_u32 v{vDQ}, v{vDQ}, v13")
    b(f"v_mul_u32_u24 v{vDP}, 9216, v12")
    b(f"v_add_u32 v{vDP}, v{vDP}, v13")
    b(f"v_mov_b32 v{vLD}, v{vDP}")
    b("v_lshrrev_b32 v12, 5, v0")
    b("v_lshlrev_b32 v12, 9, v12")
    b("v_bfe_u32 v13, v0, 2, 2")
    b("v_lshl_add_u32 v12, v13, 6, v12")
    b("v_bfe_u32 v13, v0, 4, 1")
    b("v_lshl_add_u32 v12, v13, 5, v12")
    b("v_and_b32 v13, 3, v0")
    b(f"v_lshl_add_u32 v{vTR[0]}, v13, 3, v12")
    b(f"v_add_u32 v{vTR[1]}, 0x10000, v{vTR[0]}")
    b(f"v_add_u32 v{vTR[2]}, {HALF}, v{vTR[0]}")
    b(f"v_add_u32 v{vTR[3]}, {HALF + 65536}, v{vTR[0]}")
    b(f"v_mov_b32 v{vC2}, {f32hex(C2)}")
    sRB = sTmp2
    if xmap == "R8":
        b(f"s_and_b32 s{sCG}, s2, 7")
        b(f"s_lshr_b32 s{sTmp}, s2, 3")
        b(f"s_and_b32 s{sTmp}, s{sTmp}, 3")
        b(f"s_lshl_b32 s{sTmp}, s{sTmp}, 3")
        b(f"s_add_u32 s{sCG}, s{sCG}, s{sTmp}")
        b(f"s_lshr_b32 s{sRB}, s2, 5")
    else:
        b(f"s_and_b32 s{sRB}, s2, 1")
        b(f"s_lshl_b32 s{sRB}, s{sRB}, 2")
        b(f"s_lshr_b32 s{sTmp}, s2, 3")
        b(f"s_and_b32 s{sTmp}, s{sTmp}, 3")
        b(f"s_add_u32 s{sRB}, s{sRB}, s{sTmp}")
        b(f"s_and_b32 s{sCG}, s2, 7")
        b(f"s_lshr_b32 s{sCG}, s{sCG}, 1")
        b(f"s_lshr_b32 s{sTmp}, s2, 5")
        b(f"s_lshl_b32 s{sTmp}, s{sTmp}, 2")
        b(f"s_add_u32 s{sCG}, s{sCG}, s{sTmp}")
    b(f"s_lshl_b32 s{sTB}, s{sRB}, 3")
    b(f"s_add_u32 s{sTB}, s{sTB}, s{sW}")
    b(f"s_cmp_lt_u32 s{sCG}, 16")
    b("s_cbranch_scc0 L_k1_clsB")
    b(f"s_mov_b32 s{sN1}, 1")
    b(f"s_mov_b32 s{sN2}, 5")
    b(f"s_mul_i32 s{sP}, s{sCG}, 5")
    b("s_branch L_k1_cls")
    b.label("L_k1_clsB")
    b(f"s_sub_u32 s{sTmp}, s{sCG}, 16")
    b(f"s_mov_b32 s{sN2}, 4")
    b(f"s_lshl_b32 s{sP}, s{sTmp}, 2")
    b(f"s_add_u32 s{sP}, s{sP}, 80")
    b(f"s_cmp_lt_u32 s{sTmp}, 6")
    b(f"s_cselect_b32 s{sN1}, 3, 2")
    b.label("L_k1_cls")
    b(f"s_mov_b32 s{sT}, s{sCG}")
    b(f"s_mov_b32 s{sTn}, s{sCG}")
    b(f"s_mul_i32 s{sHoff}, s{sTB}, 288")
    b(f"s_lshl_b32 s{sTmp}, s{sP}, 1")
    b(f"s_add_u32 s{sHoff}, s{sHoff}, s{sTmp}")
    b(f"s_sub_u32 s{sHoff}, s{sHoff}, 2")
    b(f"s_lshl_b32 s{sHoff}, s{sHoff}, 10")
    b(f"s_lshl_b32 s{sP}, s{sP}, 6")
    b(f"s_lshr_b32 s{sTmp}, s{sW}, 1")
    b(f"s_mul_i32 s{sTmp}, s{sTmp}, 147456")
    b(f"s_add_u32 s{sP}, s{sP}, s{sTmp}")
    b(f"s_lshl_b32 s{sW1024}, s{sW}, 10")
    b("s_waitcnt lgkmcnt(0)")
    srd(b, sXN, sWS, SZ_T, WS_XN)
    b(f"s_and_b32 s{sTmp}, s{sW}, 1")
    b(f"s_cmp_eq_u32 s{sTmp}, 0")
    b(f"s_cselect_b32 s{sWPb}, s{sWGp}, s{sWUp}")
    b(f"s_cselect_b32 s{sWPb+1}, s{sWGp+1}, s{sWUp+1}")
    for base in (sXN+36, sLD):
        b(f"s_mov_b32 s{base}, s{sWPb}")
        b(f"s_mov_b32 s{base+1}, s{sWPb+1}")
        b(f"s_mov_b32 s{base+2}, {SZ_WG}")
        b(f"s_mov_b32 s{base+3}, 0x20000")
    srd(b, sH, sWS, SZ_H, WS_H)
    srd(b, sO, sWS, 3*SZ_T, WS_Q)
    b(f"s_add_u32 s{sLDo}, s{sP}, 64")
    b(f"s_mov_b32 s{sLDs}, {4*147456}")
    b(f"s_mul_i32 s{sOff}, s{sTB}, 36864")
    if "wfirst" in OPT:
        so = [stream_ops(j) for j in range(PRE)]
        for j in range(PRE): b.ext(so[j][0])
        for j in range(PRE):
            for op in so[j][1:]: b.ext(op)
    else:
        for j in range(PRE):
            for op in stream_ops(j): b.ext(op)
    b(W.wv("w0")); b("s_barrier")
    for ks in range(2):
        for mat in range(2): b.ext(pair_reads(0, ks, mat))
    b(W.wv("w1")); b("s_barrier")
    stamp(b, 1, prof)
    pro = list(b.ins)
    def pair_tail():
        t = Blk()
        t(f"s_add_u32 s{sHoff}, s{sHoff}, 2048")
        t(f"s_sub_u32 s{sN2}, s{sN2}, 1")
        t(f"s_add_u32 s{sP}, s{sP}, 64")
        t(f"s_add_u32 s{sLDo}, s{sP}, 64")
        return t.ins
    F = pair_body(0, 0, "pair", epi=False, first=True) + pair_tail()
    def pre_pair():
        t = Blk()
        t(f"s_cmp_eq_u32 s{sN2}, 1")
        return t.ins
    sw = set_loader_single()
    P = {}; SG = {}
    for cur in (1, 0):
        P[cur] = pair_body(cur, cur, "pair")
    tailP = pair_tail()
    PL = {cur: pair_body(cur, cur, "single") for cur in (1, 0)}
    SQG = {cur: single_body(False, 1-cur, cur) for cur in (0, 1)}
    SQ = {h: single_body(False, h, None) for h in (0, 1)}
    SV = {h: single_body(True, h, None) for h in (0, 1)}
    def next_single():
        t = Blk()
        t(f"s_add_u32 s{sTn}, s{sTn}, 16")
        t(f"s_sub_u32 s{sN1}, s{sN1}, 1")
        return t.ins + set_loader_single()
    ns = next_single()
    adv = [f"s_add_u32 s{sT}, s{sT}, 16"]
    hadv = [f"s_add_u32 s{sHoff}, s{sHoff}, 2048"]
    trA = pro + F + P[1] + tailP + P[0] + tailP + P[1] + tailP + sw + PL[0] + hadv + ns + SQG[0] + adv
    trB = pro + F + P[1] + tailP + P[0] + tailP + sw + PL[1] + hadv + ns + SQG[1] + adv + ns + SV[1] + adv + ns + SQ[0] + adv
    trB2 = pro + F + P[1] + tailP + P[0] + tailP + sw + PL[1] + hadv + ns + SQG[1] + adv + ns + SQ[1] + adv + ns + SV[0] + adv
    for tr in (trA, trB, trB2): W.simulate(tr)
    R = W.resolve
    b.ins = R(b.ins)
    b.ext(R(F))
    stamp(b, 2, prof)
    b.ext(R(P[1])); b.ext(tailP)
    b.ext([x.replace("P0", "P0") for x in []])
    b.label("L_k1_p0")
    b.ext(R(P[0])); b.ext(tailP)
    b(f"s_cmp_eq_u32 s{sN2}, 1")
    b("s_cbranch_scc1 L_k1_last1")
    P1b = P[1]
    b("s_branch L_k1_p1b")
    b.label("L_k1_last1")
    b.ext(sw); b.ext(R(PL[1])); b.ext(hadv); b.ext(ns)
    stamp(b, 3, prof)
    b.ext(R(SQG[1])); b.ext(adv)
    b(f"s_cmp_eq_u32 s{sN1}, 0")
    b("s_cbranch_scc1 L_k1_fin")
    b.ext(ns)
    b(f"s_cmp_ge_u32 s{sT}, 36")
    b("s_cbranch_scc1 L_k1_sv1")
    b.ext(R(SQ[1])); b("s_branch L_k1_s1done")
    b.label("L_k1_sv1")
    b.ext(R(SV[1]))
    b.label("L_k1_s1done")
    b.ext(adv)
    b(f"s_cmp_eq_u32 s{sN1}, 0")
    b("s_cbranch_scc1 L_k1_fin")
    b.ext(ns)
    b.ext(R(SV[0]))
    b("s_branch L_k1_fin")
    b.label("L_k1_p1b")
    b.ext(R(P[1])); b.ext(tailP)
    b.ext(sw); b.ext(R(PL[0])); b.ext(hadv); b.ext(ns)
    stamp(b, 3, prof)
    b.ext(R(SQG[0]))
    b.label("L_k1_fin")
    b("s_waitcnt lgkmcnt(0)")
    if prof:
        stamp(b, 4, True)
        b("s_waitcnt vmcnt(0)")
        stamp(b, 5, True)
        b(f"s_lshl_b32 s{sTmp}, s2, 3")
        b(f"s_add_u32 s{sTmp}, s{sTmp}, s{sW}")
        b(f"s_lshl_b32 s{sTmp}, s{sTmp}, 5")
        srd(b, sXN, sWS, 1<<20, 48<<20)
        for i in range(6): b(f"v_mov_b32 v{16+i}, s{52+2*i}")
        if "fstamp" in OPT:
            for i in range(8): b(f"v_mov_b32 v{24+i}, s{64+2*i}")
            b("v_mov_b32 v12, 0")
            b(f"s_add_u32 s{sTmp2}, s{sTmp}, {1<<17}")
            b(f"buffer_store_dwordx4 v[24:27], v12, s[{sXN}:{sXN+3}], s{sTmp2} offen")
            b(f"buffer_store_dwordx4 v[28:31], v12, s[{sXN}:{sXN+3}], s{sTmp2} offen offset:16")
        b("v_mov_b32 v12, 0")
        b(f"buffer_store_dwordx4 v[16:19], v12, s[{sXN}:{sXN+3}], s{sTmp} offen")
        b(f"buffer_store_dwordx4 v[20:23], v12, s[{sXN}:{sXN+3}], s{sTmp} offen offset:16")
    if "rt" in OPT: prof_end(b, 1, 8)
    b.label("L_k1_end")
    b("s_endpgm")
    bad = 0
    for nm, tr in (("A", trA), ("B", trB), ("B2", trB2)): bad += len(check(R(tr), name+"_"+nm))
    assert bad == 0 or opts
    return name, kernel_text(name, b.text(), 256, 112, 100)
if __name__ == "__main__":
    n, t = gen_k1()
    open("k1.s", "w").write('.amdgcn_target "amdgcn-amd-amdhsa--gfx950"\n' + t)
```

```python
from common import *
STG = 14336; NSLOT = 3; A_LDS = STG*NSLOT + 64
FLAG = STG*NSLOT
vL8, vL16, vKrd, vVrd, vKd0, vKd1, vVd, vIdx, vT0, vT1, vT2, vT3 = 1,2,3,4,5,6,7,8,9,10,11,12
vQoff = 13
SA, SB, OA, OB = 16, 32, 48, 64
QA0, QA1, QB0, QB1 = 80, 84, 88, 92
KB = [96, 104]
VB = [112, 120]
CA, CB = 128, 144
vMA, vMB = 160, 161
sWS = 4
sK, sV, sQ, sOo = 8, 12, 16, 20
sW, sHD, sQB, sSlotR, sSlotW, sCnt, sKoff, sVoff, sTmp, sTmp2, sMode, sTB, sC0, sMask = range(24, 38)
sExec = 40

OPT = set()
def rd_K(buf, b, base=vKrd):
    return [f"ds_read2st64_b64 v[{KB[buf]}:{KB[buf]+3}], v{base} offset0:{3*b} offset1:{3*b+1}",
            f"ds_read_b64 v[{KB[buf]+4}:{KB[buf]+5}], v{base} offset:{(3*b+2)*512}"]
def rd_V(buf, b):
    return [f"ds_read_b128 v[{VB[buf]}:{VB[buf]+3}], v{vVrd} offset:{6144+b*2048}",
            f"ds_read_b128 v[{VB[buf]+4}:{VB[buf]+7}], v{vVrd} offset:{6144+b*2048+1024}"]
def qk(S, Q0, Q1, kb, C):
    c = "0" if C is None else f"v[{C}:{C+15}]"
    return [f"v_mfma_f32_32x32x16_bf16 v[{S}:{S+15}], v[{kb}:{kb+3}], v[{Q0}:{Q0+3}], {c}",
            f"v_mfma_f32_32x32x16_bf16 v[{S}:{S+15}], v[{kb+4}:{kb+7}], v[{Q1}:{Q1+3}], v[{S}:{S+15}]"]
def pv(O, S, vb):
    return [f"v_smfmac_f32_32x32x32_bf16 v[{O}:{O+15}], v[{vb}:{vb+3}], v[{S}:{S+7}], v{vIdx}",
            f"v_smfmac_f32_32x32x32_bf16 v[{O}:{O+15}], v[{vb+4}:{vb+7}], v[{S+8}:{S+15}], v{vIdx}"]
def phase(SX, OY, SY, QY0, QY1, vb, kb, CY, pre=(), w_v=None, w_k=None):
    e = [f"v_exp_f32 v{SX+i}, v{SX+i}" for i in range(16)]
    p = pv(OY, SY, vb); q = qk(SY, QY0, QY1, kb, CY)
    out = []
    if w_v: out.append(w_v[0])
    out += [p[0]] + list(pre) + e[0:3]
    if w_v: out.append(w_v[1])
    out += [p[1]] + e[3:6]
    if w_k: out.append(w_k[0])
    out += [q[0]] + e[6:9]
    if w_k: out.append(w_k[1])
    out += [q[1]] + e[9:16]
    return out

def dma_stage():
    b = Blk()
    b(f"s_add_u32 m0, s{sSlotW}, s{sTmp2}")
    b("s_nop 0")
    b(f"buffer_load_dwordx4 v{vKd0}, s[{sK}:{sK+3}], s{sKoff} offen lds ;#kv")
    b(f"s_add_u32 m0, s{sSlotW}, s{sMask}")
    b("s_nop 0")
    b(f"buffer_load_dwordx4 v{vKd1}, s[{sK}:{sK+3}], s{sKoff} offen lds ;#kv")
    b(f"s_add_u32 m0, s{sSlotW}, s{sC0}")
    b(f"s_mov_b64 exec, s[{sExec}:{sExec+1}]")
    b(f"buffer_load_dwordx4 v{vVd}, s[{sV}:{sV+3}], s{sVoff} offen lds ;#kv")
    b(f"buffer_load_dwordx4 v{vVd}, s[{sV}:{sV+3}], s{sVoff} offen offset:1024 lds ;#kv")
    b("s_mov_b64 exec, -1")
    b(f"s_add_u32 s{sKoff}, s{sKoff}, {4*36864}")
    b(f"s_add_u32 s{sVoff}, s{sVoff}, {4*36864}")
    b(f"s_add_u32 s{sSlotW}, s{sSlotW}, {STG}")
    b(f"s_cmp_eq_u32 s{sSlotW}, {STG*NSLOT}")
    b(f"s_cselect_b32 s{sSlotW}, 0, s{sSlotW}")
    return b.ins
def adv_read_slot():
    return [f"s_add_u32 s{sSlotR}, s{sSlotR}, {STG}",
            f"s_cmp_eq_u32 s{sSlotR}, {STG*NSLOT}",
            f"s_cselect_b32 s{sSlotR}, 0, s{sSlotR}"]

def stage_body(W, safe):
    CAx, CBx = (CA, CB) if safe else (None, None)
    o = ["s_waitcnt vmcnt(0)", "s_barrier"]
    dm = dma_stage()
    for b in range(4):
        kb, kn = KB[b % 2], KB[(b+1) % 2]
        vb, vp = VB[b % 2], VB[(b+1) % 2]
        pre = rd_V(b % 2, b)
        if b < 3: pre += rd_K((b+1) % 2, b+1)
        else:
            pre += adv_read_slot() + [f"v_add_u32 v{vKrd}, s{sSlotR}, v{vL8}"] + rd_K(0, 0)
        ph1 = phase(SA, OB, SB, QB0, QB1, vp, kb, CBx, pre=pre)
        if b == 0:
            ph1 = ph1[:len(pre)+5] + dm + ph1[len(pre)+5:]
        o += ph1
        wv = [W.wl(f"v[{vb}:{vb+3}]"), W.wl(f"v[{vb+4}:{vb+7}]")]
        wk = [W.wl(f"v[{kn}:{kn+3}]"), W.wl(f"v[{kn+4}:{kn+5}]")]
        ph2 = phase(SB, OA, SA, QA0, QA1, vb, kn, CAx, w_v=wv, w_k=wk)
        if b == 3: ph2.append(f"v_add_u32 v{vVrd}, s{sSlotR}, v{vL16}")
        o += ph2
    if "nods" in OPT: o = [x for x in o if not x.startswith("ds_read") and not x.startswith("@WL")]
    if "nodma" in OPT: o = [x for x in o if not x.startswith("buffer_load") and x != "s_barrier" and x != "s_waitcnt vmcnt(0)"]
    if "noexp" in OPT: o = [x for x in o if not x.startswith("v_exp")]
    if "nomfma" in OPT: o = [x for x in o if not x.startswith("v_mfma") and not x.startswith("v_smfmac")]
    if "nopv" in OPT: o = [x for x in o if not x.startswith("v_smfmac")]
    if "noqk" in OPT: o = [x for x in o if not x.startswith("v_mfma")]
    return o

def max_body(W):
    o = ["s_waitcnt vmcnt(0)", "s_barrier"] + dma_stage()
    for b in range(4):
        o += rd_K(0, b) + ["s_waitcnt lgkmcnt(0)"]
        o += qk(SA, QA0, QA1, KB[0], None) + qk(SB, QB0, QB1, KB[0], None)
        o += ["s_nop 7", "s_nop 3"]
        for S, M in ((SA, vMA), (SB, vMB)):
            for i in range(8): o.append(f"v_max3_f32 v{M}, v{S+2*i}, v{S+2*i+1}, v{M}")
    o += adv_read_slot() + [f"v_add_u32 v{vKrd}, s{sSlotR}, v{vL8}"]
    return o

def stream_init():
    b = Blk()
    b(f"s_mov_b32 s{sSlotR}, 0")
    b(f"s_mov_b32 s{sSlotW}, 0")
    b(f"s_lshr_b32 s{sKoff}, s{sHD}, 2")
    b(f"s_mul_i32 s{sKoff}, s{sHD}, 9")
    b(f"s_lshr_b32 s{sKoff}, s{sKoff}, 2")
    b(f"s_lshl_b32 s{sKoff}, s{sKoff}, 9")
    b(f"s_mov_b32 s{sVoff}, 0")
    b.ext(dma_stage()); b.ext(dma_stage())
    b(f"v_mov_b32 v{vKrd}, v{vL8}")
    b(f"v_mov_b32 v{vVrd}, v{vL16}")
    b(f"s_mov_b32 s{sCnt}, 16")
    return b.ins

def main_init(W, safe):
    b = Blk()
    for i in range(16): b(f"v_mov_b32 v{OA+i}, 0"); b(f"v_mov_b32 v{OB+i}, 0"); b(f"v_mov_b32 v{SB+i}, 0")
    for i in range(8): b(f"v_mov_b32 v{VB[1]+i}, 0")
    b("s_waitcnt vmcnt(4)")
    b("s_barrier")
    b.ext(rd_K(0, 0))
    b("s_waitcnt lgkmcnt(0)")
    b.ext(qk(SA, QA0, QA1, KB[0], CA if safe else None))
    b("s_nop 7"); b("s_nop 3")
    return b.ins

def gen_attn_role(prof=False):
    W = Waits()
    b = Blk()
    b(f"s_load_dwordx2 s[{sWS}:{sWS+1}], s[0:1], {KA_WS}")
    b(f"v_readfirstlane_b32 s{sW}, v0")
    b("v_and_b32 v0, 63, v0")
    b(f"s_lshr_b32 s{sW}, s{sW}, 6")
    b(f"s_and_b32 s{sHD}, s2, 7")
    b(f"s_lshr_b32 s{sTmp}, s2, 3")
    b(f"s_and_b32 s{sTmp}, s{sTmp}, 3")
    b(f"s_lshl_b32 s{sTmp}, s{sTmp}, 3")
    b(f"s_add_u32 s{sHD}, s{sHD}, s{sTmp}")
    b(f"s_lshr_b32 s{sQB}, s2, 5")
    b(f"s_and_b32 s{sQB}, s{sQB}, 7")
    b(f"s_lshl_b32 s{sTB}, s{sQB}, 3")
    b(f"s_lshl_b32 s{sTmp}, s{sW}, 1")
    b(f"s_add_u32 s{sTB}, s{sTB}, s{sTmp}")
    b(f"v_lshlrev_b32 v{vL8}, 3, v0")
    b(f"v_lshlrev_b32 v{vL16}, 4, v0")
    b(f"v_mov_b32 v{vIdx}, 0xdddddddd")
    def kpiece(dst, sj):
        b(f"s_lshl_b32 s{sTmp}, s{sj}, 10")
        b(f"v_add_u32 v{vT0}, s{sTmp}, v{vL16}")
        b(f"v_mul_u32_u24 v{vT1}, 43691, v{vT0}")
        b(f"v_lshrrev_b32 v{vT1}, 26, v{vT1}")
        b(f"v_mul_u32_u24 v{vT1}, {36864-1536}, v{vT1}")
        b(f"v_add_u32 v{dst}, v{vT0}, v{vT1}")
    kpiece(vKd0, sW)
    b(f"s_add_u32 s{sTmp2}, s{sW}, 4")
    b(f"s_cmp_lt_u32 s{sW}, 2")
    b(f"s_cselect_b32 s{sMask}, s{sTmp2}, s{sW}")
    kpiece(vKd1, sMask)
    b(f"s_lshl_b32 s{sMask}, s{sMask}, 10")
    b(f"s_mul_i32 s{sC0}, s{sHD}, 18")
    b(f"v_and_b32 v{vT0}, 31, v0")
    b(f"v_min_u32 v{vT0}, 17, v{vT0}")
    b(f"v_add_u32 v{vT0}, s{sC0}, v{vT0}")
    b(f"v_lshrrev_b32 v{vT1}, 5, v{vT0}")
    b(f"v_lshlrev_b32 v{vT1}, 11, v{vT1}")
    b(f"v_and_b32 v{vT0}, 31, v{vT0}")
    b(f"v_and_b32 v{vT2}, 32, v0")
    b(f"v_add_u32 v{vT0}, v{vT0}, v{vT2}")
    b(f"v_lshl_add_u32 v{vT0}, v{vT0}, 4, v{vT1}")
    b(f"s_mul_i32 s{sTmp}, s{sW}, 36864")
    b(f"v_add_u32 v{vVd}, s{sTmp}, v{vT0}")
    b(f"s_and_b32 s{sTmp}, s{sC0}, 7")
    b(f"v_lshrrev_b32 v{vT0}, 5, v0")
    b(f"v_lshlrev_b32 v{vT0}, 2, v{vT0}")
    b(f"v_subrev_u32 v{vT3}, s{sTmp}, v{vT0}")
    b(f"s_mov_b32 s{sExec}, 0x3ffff")
    b(f"s_mov_b32 s{sExec+1}, 0x3ffff")
    b("s_waitcnt lgkmcnt(0)")
    srd(b, sK, sWS, SZ_T, WS_K)
    srd(b, sV, sWS, SZ_T, WS_V)
    srd(b, sQ, sWS, SZ_T, WS_Q)
    srd(b, sOo, sWS, SZ_T, WS_O)
    b(f"s_mul_i32 s{sTmp}, s{sHD}, 9")
    b(f"s_lshr_b32 s{sTmp}, s{sTmp}, 2")
    b(f"s_lshl_b32 s{sTmp}, s{sTmp}, 9")
    b(f"s_mul_i32 s{sTmp2}, s{sTB}, 36864")
    b(f"s_add_u32 s{sTmp}, s{sTmp}, s{sTmp2}")
    for Q0, Q1 in ((QA0, QA1), (QB0, QB1)):
        b(f"buffer_load_dwordx2 v[{Q0}:{Q0+1}], v{vL8}, s[{sQ}:{sQ+3}], s{sTmp} offen")
        b(f"buffer_load_dwordx2 v[{Q0+2}:{Q0+3}], v{vL8}, s[{sQ}:{sQ+3}], s{sTmp} offen offset:512")
        b(f"buffer_load_dwordx2 v[{Q1}:{Q1+1}], v{vL8}, s[{sQ}:{sQ+3}], s{sTmp} offen offset:1024")
        b(f"s_add_u32 s{sTmp}, s{sTmp}, 36864")
    b(f"s_lshl_b32 s{sTmp2}, s{sW}, 10")
    b(f"s_lshl_b32 s{sC0}, s{sW}, 11")
    b(f"s_add_u32 s{sC0}, s{sC0}, 6144")
    b.ext(stream_init())
    b(f"v_and_b32 v{vT0}, 31, v0")
    b(f"v_cmp_eq_u32 vcc, 18, v{vT0}")
    b(f"v_mov_b32 v{vT1}, 0x3f803f80")
    b("s_nop 0")
    b(f"v_cndmask_b32 v16, 0, v{vT1}, vcc")
    b("v_mov_b32 v17, v16"); b("v_mov_b32 v18, v16"); b("v_mov_b32 v19, v16")
    b(f"s_mul_i32 s{sTmp}, s{sW}, 2048")
    b(f"v_add_u32 v{vT0}, s{sTmp}, v{vL16}")
    b(f"s_not_b64 exec, s[{sExec}:{sExec+1}]")
    for sl in range(NSLOT):
        for s_ in range(2):
            b(f"ds_write_b128 v{vT0}, v[16:19] offset:{sl*STG + 6144 + s_*1024}")
    b("s_mov_b64 exec, -1")
    b("v_mov_b32 v20, 0")
    b(f"v_mov_b32 v21, {FLAG}")
    b("ds_write_b32 v21, v20")
    for kb in KB: b(f"v_mov_b32 v{kb+6}, 0"); b(f"v_mov_b32 v{kb+7}, 0")
    b("s_waitcnt vmcnt(8)")
    for Q0, Q1 in ((QA0, QA1), (QB0, QB1)):
        for k in range(6):
            G, jp = k//2, k % 2
            r = (Q0 + k) if k < 4 else (Q1 + k - 4)
            b(f"v_add_u32 v{vT0}, {8*G + 2*jp}, v{vT3}")
            b(f"v_cmp_gt_u32 vcc, 18, v{vT0}")
            b("s_nop 1")
            b(f"v_cndmask_b32 v{r}, 0, v{r}, vcc")
        b(f"v_mov_b32 v{Q1+2}, 0"); b(f"v_mov_b32 v{Q1+3}, 0")
    b("s_waitcnt lgkmcnt(0)")
    b(f"s_mov_b32 s{sMode}, 0")
    pro = list(b.ins)
    ini = main_init(W, False); body = stage_body(W, False)
    loop_tail = [f"s_sub_u32 s{sCnt}, s{sCnt}, 1", f"s_cmp_lg_u32 s{sCnt}, 0"]
    inis = main_init(W, True); bodys = stage_body(W, True)
    mx = max_body(W)
    fin = Blk()
    fin.ext(pv(OB, SB, VB[1]))
    fin("s_waitcnt vmcnt(0) lgkmcnt(0)")
    fin("s_nop 7"); fin("s_nop 3")
    for O, t in ((OA, vT0), (OB, vT1)):
        fin(f"v_mov_b32 v{t}, v{O+10}")
        fin(f"v_mov_b32 v{vT2}, v{O+10}")
        fin("s_nop 1")
        fin(f"v_permlane32_swap_b32 v{t}, v{vT2}")
    chk = Blk()
    chk(f"v_mov_b32 v{vT2}, 0")
    for O in (OA, OB):
        for i in range(10): chk(f"v_fmac_f32 v{vT2}, 0, v{O+i}")
    chk(f"v_cmp_u_f32 vcc, v{vT2}, v{vT2}")
    chk("s_nop 0")
    chk(f"s_mov_b64 s[{sExec+2}:{sExec+3}], vcc")
    for t in (vT0, vT1):
        chk(f"v_cmp_nle_f32 vcc, {f32hex(2.0**-80)}, v{t}")
        chk("s_nop 0")
        chk(f"s_or_b64 s[{sExec+2}:{sExec+3}], s[{sExec+2}:{sExec+3}], vcc")
        chk(f"v_cmp_nge_f32 vcc, {f32hex(2.0**100)}, v{t}")
        chk("s_nop 0")
        chk(f"s_or_b64 s[{sExec+2}:{sExec+3}], s[{sExec+2}:{sExec+3}], vcc")
    chk(f"s_cmp_lg_u64 s[{sExec+2}:{sExec+3}], 0")
    chk(f"s_cselect_b32 s{sTmp}, 1, 0")
    chk(f"v_mov_b32 v20, s{sTmp}")
    chk(f"v_mov_b32 v21, {FLAG}")
    chk("ds_or_b32 v21, v20")
    chk("s_waitcnt lgkmcnt(0)")
    chk("s_barrier")
    chk("ds_read_b32 v20, v21")
    chk("s_waitcnt lgkmcnt(0)")
    chk(f"v_readfirstlane_b32 s{sTmp}, v20")
    chk("s_nop 3")
    chk(f"s_cmp_lg_u32 s{sTmp}, 0")
    out = Blk()
    for (O, t, k) in ((OA, vT0, 0), (OB, vT1, 1)):
        out(f"v_rcp_f32 v{t}, v{t}")
        out("s_nop 0")
        for i in range(10): out(f"v_mul_f32 v{O+i}, v{O+i}, v{t}")
        for i in range(5): out(f"v_cvt_pk_bf16_f32 v{SA+8*k+i}, v{O+2*i}, v{O+2*i+1}")
    out(f"s_mul_i32 s{sTmp}, s{sTB}, 36")
    out(f"s_add_u32 s{sTmp}, s{sTmp}, s{sHD}")
    out(f"s_lshl_b32 s{sTmp}, s{sTmp}, 10")
    out(f"buffer_store_dwordx4 v[{SA}:{SA+3}], v{vL16}, s[{sOo}:{sOo+3}], s{sTmp} offen")
    out(f"s_add_u32 s{sTmp2}, s{sTmp}, 36864")
    out(f"buffer_store_dwordx4 v[{SA+8}:{SA+11}], v{vL16}, s[{sOo}:{sOo+3}], s{sTmp2} offen")
    out(f"s_mul_i32 s{sTmp}, s{sTB}, 36")
    out(f"s_lshr_b32 s{sTmp2}, s{sHD}, 3")
    out(f"s_add_u32 s{sTmp}, s{sTmp}, s{sTmp2}")
    out(f"s_add_u32 s{sTmp}, s{sTmp}, 32")
    out(f"s_lshl_b32 s{sTmp}, s{sTmp}, 10")
    out(f"s_bfe_u32 s{sTmp2}, s{sHD}, 0x10002")
    out(f"s_lshl_b32 s{sTmp2}, s{sTmp2}, 9")
    out(f"s_add_u32 s{sTmp}, s{sTmp}, s{sTmp2}")
    out(f"s_and_b32 s{sTmp2}, s{sHD}, 3")
    out(f"s_lshl_b32 s{sTmp2}, s{sTmp2}, 2")
    out(f"s_add_u32 s{sTmp}, s{sTmp}, s{sTmp2}")
    out("s_mov_b32 exec_hi, 0")
    out(f"buffer_store_dword v{SA+4}, v{vL16}, s[{sOo}:{sOo+3}], s{sTmp} offen")
    out(f"s_add_u32 s{sTmp}, s{sTmp}, 36864")
    out(f"buffer_store_dword v{SA+12}, v{vL16}, s[{sOo}:{sOo+3}], s{sTmp} offen")
    out("s_mov_b64 exec, -1")
    mxi = Blk()
    mxi(f"v_mov_b32 v{vMA}, 0xff7fffff"); mxi(f"v_mov_b32 v{vMB}, 0xff7fffff")
    mxi("s_waitcnt vmcnt(4)"); mxi("s_barrier")
    mxe = Blk()
    for M, C in ((vMA, CA), (vMB, CB)):
        mxe(f"v_mov_b32 v{vT2}, v{M}")
        mxe("s_nop 1")
        mxe(f"v_permlane32_swap_b32 v{M}, v{vT2}")
        mxe("s_nop 0")
        mxe(f"v_max_f32 v{M}, v{M}, v{vT2}")
        for i in range(16): mxe(f"v_sub_f32 v{C+i}, 0, v{M}")
    mxe("s_waitcnt vmcnt(0)"); mxe("s_barrier")
    t_fast = pro + ini + body + loop_tail + body + loop_tail + body + fin.ins + chk.ins + out.ins
    t_safe = pro + ini + body + fin.ins + chk.ins + stream_init() + mxi.ins + mx + mx + mxe.ins + stream_init() + inis + bodys + bodys + fin.ins + out.ins
    for tr in (t_fast, t_safe): W.simulate(tr)
    R = W.resolve
    bad = len(check(R(t_fast), "attn_fast")) + len(check(R(t_safe), "attn_safe"))
    assert bad == 0 or OPT
    o = Blk(); o.ext(R(pro)); o.ext(ini)
    if "stamp" in OPT: o("s_memtime s[76:77]"); o("s_waitcnt lgkmcnt(0)")
    o.label("L_at_loop"); o.ext(R(body)); o.ext(loop_tail); o("s_cbranch_scc1 L_at_loop")
    if "stamp" in OPT:
        o("s_memtime s[78:79]"); o("s_waitcnt lgkmcnt(0)"); o("s_sub_u32 s98, s78, s76")
        o("s_sub_u32 s99, s76, s90")
    o.ext(fin); o.ext(chk)
    if "nosafe" in OPT: o("s_branch L_at_out")
    o("s_cbranch_scc0 L_at_out")
    o("s_waitcnt vmcnt(0)"); o("s_barrier")
    o.ext(stream_init()); o.ext(mxi)
    o.label("L_at_mx"); o.ext(mx); o.ext(loop_tail); o("s_cbranch_scc1 L_at_mx")
    o.ext(mxe)
    o.ext(stream_init()); o.ext(inis)
    o.label("L_at_loop2"); o.ext(R(bodys)); o.ext(loop_tail); o("s_cbranch_scc1 L_at_loop2")
    o.ext(fin)
    o.label("L_at_out")
    o.ext(out)
    return o

def gen_attn_kernel(prof=False, opts=()):
    OPT.clear(); OPT.update(opts)
    name = "attn_kernel"
    b = Blk()
    b("s_cmp_ge_u32 s2, 256")
    b("s_cbranch_scc1 L_at_end")
    if prof:
        prof_begin(b)
    b.ext(gen_attn_role())
    if prof: prof_end(b, 2, 4)
    b.label("L_at_end")
    b("s_endpgm")
    return name, kernel_text(name, b.text(), 256, 256, 100)
if __name__ == "__main__":
    n, t = gen_attn_kernel()
    open("k2a.s", "w").write('.amdgcn_target "amdgcn-amd-amdhsa--gfx950"\n' + t)
```

```python
from common import *
SLOT = 20480; NSL = 4; B_LDS = SLOT*NSL
vL16, vTRb, vTR = 1, 2, 3
vD = 4
vA = 12
vB = 36
ACC = 96
sWS, sWDp = 4, 6
sWD, sHB, sPT = 8, 12, 16
sW, sX, sTB, sNH, sSlotR, sSlotW, sWoff, sHoff, sIt, sTmp, sTmp2, sW1024 = range(24, 36)
OPT = set()

def a_reads(g):
    pass

def dma_stage():
    o = []
    for i in range(5):
        o.append(f"s_add_u32 m0, s{sSlotW}, {i*4096}")
        o.append("s_nop 0")
        o.append(f"buffer_load_dwordx4 v{vD+i}, s[{sWD}:{sWD+3}], s{sWoff} offen lds ;#w")
    o.append(f"s_add_u32 s{sWoff}, s{sWoff}, {2*18432}")
    o.append(f"s_add_u32 s{sSlotW}, s{sSlotW}, {SLOT}")
    o.append(f"s_cmp_ge_u32 s{sSlotW}, {SLOT*NSL}")
    o.append(f"s_cselect_b32 s{sTmp}, {SLOT*NSL}, 0")
    o.append(f"s_sub_u32 s{sSlotW}, s{sSlotW}, s{sTmp}")
    return o
def adv_read():
    return [f"s_add_u32 s{sSlotR}, s{sSlotR}, {SLOT}",
            f"s_cmp_eq_u32 s{sSlotR}, {SLOT*NSL}",
            f"s_cselect_b32 s{sSlotR}, 0, s{sSlotR}"]

PD = 4
def body(W):
    vT = [vTR, vTRb+7]
    def rd(g):
        st = g//18; q = g % 18
        r = vA + (g % 6)*4
        base = vT[st % 2]
        return [f"ds_read_b64_tr_b16 v[{r}:{r+1}], v{base} offset:{q*1024}",
                f"ds_read_b64_tr_b16 v[{r+2}:{r+3}], v{base} offset:{q*1024+512}"]
    o = []
    for g in range(108):
        ks = g//9; nt = g % 9; st = g//18
        if g % 18 == 0:
            o += [W.wv("w%d" % 0) if False else W.wv("wn"), "s_barrier"]
        if nt == 0: o.append(W.wv(f"b{ks}"))
        r = vA + (g % 6)*4; bb = vB + ks*4; a = ACC + nt*16
        o.append(W.wl(f"v[{r}:{r+3}]"))
        o.append(f"v_mfma_f32_32x32x16_bf16 v[{a}:{a+15}], v[{r}:{r+3}], v[{bb}:{bb+3}], v[{a}:{a+15}]")
        extra = []
        if g % 18 == 18 - PD - 2:
            extra += adv_read() + [f"v_add_u32 v{vT[(st+1) % 2]}, s{sSlotR}, v{vTRb}"]
        o += extra
        o += rd(g + PD)
        if g % 18 == 0:
            d = dma_stage()
            if st == 3:
                d = [f"s_cmp_eq_u32 s{sIt}, 1", f"s_cselect_b32 s{sWD+2}, 0, {SZ_WG}"] + d
            o += d
        if nt == 1:
            kn = (ks + 11) % 12
            rb = vB + kn*4
            o.append(f"buffer_load_dwordx4 v[{rb}:{rb+3}], v{vL16}, s[{sHB}:{sHB+3}], s{sHoff} offen ;#b{kn}")
            o.append(f"s_add_u32 s{sHoff}, s{sHoff}, 1024")
            if ks == 0:
                o += [f"s_cmp_eq_u32 s{sIt}, 1", f"s_cselect_b32 s{sHB+2}, 0, {SZ_H}"]
    return o

def gen_down_role():
    W = Waits()
    b = Blk()
    b(f"s_load_dwordx2 s[{sWS}:{sWS+1}], s[0:1], {KA_WS}")
    b(f"s_load_dwordx2 s[{sWDp}:{sWDp+1}], s[0:1], {KA_WD}")
    b(f"v_readfirstlane_b32 s{sW}, v0")
    b("v_and_b32 v0, 63, v0")
    b(f"s_lshr_b32 s{sW}, s{sW}, 6")
    b(f"s_and_b32 s{sX}, s2, 7")
    b(f"s_bfe_u32 s{sNH}, s2, 0x10003")
    b(f"s_bfe_u32 s{sTB}, s2, 0x40004")
    b(f"s_lshl_b32 s{sTB}, s{sTB}, 2")
    b(f"s_add_u32 s{sTB}, s{sTB}, s{sW}")
    b(f"s_lshl_b32 s{sW1024}, s{sW}, 10")
    b(f"v_lshlrev_b32 v{vL16}, 4, v0")
    b("v_lshrrev_b32 v10, 5, v0")
    b("v_lshlrev_b32 v10, 8, v10")
    b("v_bfe_u32 v11, v0, 2, 2")
    b("v_lshl_add_u32 v10, v11, 6, v10")
    b("v_bfe_u32 v11, v0, 4, 1")
    b("v_lshl_add_u32 v10, v11, 5, v10")
    b("v_and_b32 v11, 3, v0")
    b(f"v_lshl_add_u32 v{vTRb}, v11, 3, v10")
    b(f"v_mov_b32 v{vTR}, v{vTRb}")
    b("v_lshrrev_b32 v10, 2, v0")
    b("v_mul_u32_u24 v10, 1152, v10")
    b("v_and_b32 v11, 3, v0")
    b("v_lshl_add_u32 v10, v11, 4, v10")
    for i in range(5):
        b(f"s_add_u32 s{sTmp}, s{sW}, {4*i}")
        b(f"s_cmp_ge_u32 s{sTmp}, 9")
        b(f"s_cselect_b32 s{sTmp2}, {18432 - 9*64}, 0")
        b(f"s_cmp_ge_u32 s{sTmp}, 18")
        b(f"s_cselect_b32 s{sTmp2}, 0x7f000000, s{sTmp2}")
        b(f"s_lshl_b32 s{sTmp}, s{sTmp}, 6")
        b(f"s_add_u32 s{sTmp}, s{sTmp}, s{sTmp2}")
        b(f"v_add_u32 v{vD+i}, s{sTmp}, v10")
    b("s_waitcnt lgkmcnt(0)")
    srd(b, sWD, sWDp, SZ_WG)
    srd(b, sHB, sWS, SZ_H, WS_H)
    srd(b, sPT, sWS, NSPLIT*SZ_T, WS_P)
    b(f"s_mul_i32 s{sWoff}, s{sX}, {576*1152}")
    b(f"s_mul_i32 s{sTmp}, s{sNH}, 576")
    b(f"s_add_u32 s{sWoff}, s{sWoff}, s{sTmp}")
    b(f"s_mul_i32 s{sHoff}, s{sTB}, 288")
    b(f"s_mul_i32 s{sTmp}, s{sX}, 36")
    b(f"s_add_u32 s{sHoff}, s{sHoff}, s{sTmp}")
    b(f"s_lshl_b32 s{sHoff}, s{sHoff}, 10")
    b(f"s_mov_b32 s{sSlotW}, s{sW1024}")
    b(f"s_mov_b32 s{sSlotR}, 0")
    st0 = [x.replace(";#w", ";#w0") for x in dma_stage()]
    b.ext(st0)
    for ks in range(2):
        b(f"buffer_load_dwordx4 v[{vB+4*ks}:{vB+4*ks+3}], v{vL16}, s[{sHB}:{sHB+3}], s{sHoff} offen ;#b{ks}")
        b(f"s_add_u32 s{sHoff}, s{sHoff}, 1024")
    b.ext([x.replace(";#w", ";#w1") for x in dma_stage()])
    for ks in range(2, 6):
        b(f"buffer_load_dwordx4 v[{vB+4*ks}:{vB+4*ks+3}], v{vL16}, s[{sHB}:{sHB+3}], s{sHoff} offen ;#b{ks}")
        b(f"s_add_u32 s{sHoff}, s{sHoff}, 1024")
    b.ext([x.replace(";#w", ";#w2") for x in dma_stage()])
    for ks in range(6, 11):
        b(f"buffer_load_dwordx4 v[{vB+4*ks}:{vB+4*ks+3}], v{vL16}, s[{sHB}:{sHB+3}], s{sHoff} offen ;#b{ks}")
        b(f"s_add_u32 s{sHoff}, s{sHoff}, 1024")
    for i in range(144): b(f"v_mov_b32 v{ACC+i}, 0")
    b(W.wv("w0")); b("s_barrier")
    for g in range(PD):
        r = vA + (g % 6)*4
        b(f"ds_read_b64_tr_b16 v[{r}:{r+1}], v{vTR} offset:{g*1024}")
        b(f"ds_read_b64_tr_b16 v[{r+2}:{r+3}], v{vTR} offset:{g*1024+512}")
    b(f"s_mov_b32 s{sIt}, 3")
    pro = list(b.ins)
    bd = body(W)
    tail = [f"s_sub_u32 s{sIt}, s{sIt}, 1", f"s_cmp_lg_u32 s{sIt}, 0"]
    def trace(n):
        t = list(pro)
        st = 0; issued = 3
        for it in range(n):
            for s in bd + tail:
                if s.startswith("@WV") and s.endswith(" wn"):
                    t.append(s[:-2] + f"w{st+1}"); st += 1
                elif ";#w" in s and s.endswith(";#w"):
                    t.append(s.replace(";#w", f";#w{issued}"))
                    cnt = sum(1 for x in t if x.endswith(f";#w{issued}"))
                    if cnt == 5: issued += 1
                else: t.append(s)
        return t
    tr = trace(3)
    W.simulate(tr)
    R = W.resolve
    epi = Blk()
    epi("s_waitcnt vmcnt(0) lgkmcnt(0)")
    epi("s_nop 7"); epi("s_nop 3")
    epi(f"s_lshl_b32 s{sTmp}, s{sX}, 6")
    epi(f"s_add_u32 s{sTmp}, s{sTmp}, s{sTB}")
    epi(f"s_mul_i32 s{sTmp}, s{sTmp}, 18")
    epi(f"s_mul_i32 s{sTmp2}, s{sNH}, 9")
    epi(f"s_add_u32 s{sTmp}, s{sTmp}, s{sTmp2}")
    epi(f"s_lshl_b32 s{sTmp}, s{sTmp}, 11")
    for nt in range(9):
        a = ACC + nt*16; p = vB + (nt % 4)*8
        for i in range(8): epi(f"v_cvt_pk_bf16_f32 v{p+i}, v{a+2*i}, v{a+2*i+1}")
        epi(f"buffer_store_dwordx4 v[{p}:{p+3}], v{vL16}, s[{sPT}:{sPT+3}], s{sTmp} offen sc1")
        epi(f"buffer_store_dwordx4 v[{p+4}:{p+7}], v{vL16}, s[{sPT}:{sPT+3}], s{sTmp} offen offset:1024 sc1")
        epi(f"s_add_u32 s{sTmp}, s{sTmp}, 2048")
    assert len(check(R(tr) + epi.ins, "down")) == 0
    o = Blk(); o.ext(R(pro))
    o.label("L_dn_loop"); o.ext(R(bd)); o.ext(tail); o("s_cbranch_scc1 L_dn_loop")
    o.ext(epi)
    return o

def gen_down_kernel(prof=False):
    name = "down_kernel"
    b = Blk()
    b("s_cmp_ge_u32 s2, 256")
    b("s_cbranch_scc1 L_dn_end")
    if prof: prof_begin(b)
    b.ext(gen_down_role())
    if prof: prof_end(b, 3, 4)
    b.label("L_dn_end")
    b("s_endpgm")
    return name, kernel_text(name, b.text(), 256, 256, 100)
if __name__ == "__main__":
    n, t = gen_down_kernel()
    open("k2b.s", "w").write('.amdgcn_target "amdgcn-amd-amdhsa--gfx950"\n' + t)
```

```python
from common import *
K3_LDS = 36*1024
vL16, vTR, vDm, vDl, vXo, vOo = 1, 2, 3, 4, 5, 6
vA = 8
ACC = 20
T = ACC
vX = 36
vP = 44
vB = 128
sWS, sWOp, sXp, sOp = 4, 6, 8, 10
sWO, sOB, sPT, sX, sOut = 12, 16, 20, 24, 28
sW, sTB, sNT, sTmp, sTmp2, sOff, sW1024 = range(32, 39)
def gen_k3(prof=False, outsc1=True):
    name = "final_kernel"
    W = Waits()
    b = Blk()
    b("s_cmp_ge_u32 s2, 288")
    b("s_cbranch_scc1 L_k3_end")
    if prof: prof_begin(b)
    b(f"s_load_dwordx2 s[{sWS}:{sWS+1}], s[0:1], {KA_WS}")
    b(f"s_load_dwordx2 s[{sWOp}:{sWOp+1}], s[0:1], {KA_WO}")
    b(f"s_load_dwordx2 s[{sXp}:{sXp+1}], s[0:1], {KA_X}")
    b(f"s_load_dwordx2 s[{sOp}:{sOp+1}], s[0:1], {KA_OUT}")
    b(f"v_readfirstlane_b32 s{sW}, v0")
    b("v_and_b32 v0, 63, v0")
    b(f"s_lshr_b32 s{sW}, s{sW}, 6")
    b(f"s_lshr_b32 s{sNT}, s2, 4")
    b(f"s_and_b32 s{sTB}, s2, 7")
    b(f"s_lshl_b32 s{sTB}, s{sTB}, 1")
    b(f"s_bfe_u32 s{sTmp}, s2, 0x10003")
    b(f"s_add_u32 s{sTB}, s{sTB}, s{sTmp}")
    b(f"s_lshl_b32 s{sTB}, s{sTB}, 2")
    b(f"s_add_u32 s{sTB}, s{sTB}, s{sW}")
    b(f"s_lshl_b32 s{sW1024}, s{sW}, 10")
    b(f"v_lshlrev_b32 v{vL16}, 4, v0")
    b("v_lshrrev_b32 v8, 5, v0")
    b("v_lshlrev_b32 v8, 8, v8")
    b("v_bfe_u32 v9, v0, 2, 2")
    b("v_lshl_add_u32 v8, v9, 6, v8")
    b("v_bfe_u32 v9, v0, 4, 1")
    b("v_lshl_add_u32 v8, v9, 5, v8")
    b("v_and_b32 v9, 3, v0")
    b(f"v_lshl_add_u32 v{vTR}, v9, 3, v8")
    b("v_lshrrev_b32 v8, 2, v0")
    b(f"v_mul_u32_u24 v{vDm}, 1152, v8")
    b("v_and_b32 v9, 3, v0")
    b(f"v_lshl_add_u32 v{vDm}, v9, 4, v{vDm}")
    b("v_bfe_u32 v10, v8, 2, 1")
    b("v_lshlrev_b32 v10, 2, v10")
    b("v_lshrrev_b32 v11, 3, v8")
    b("v_lshlrev_b32 v11, 1, v11")
    b("v_add_u32 v10, v10, v11")
    b("v_bfe_u32 v11, v8, 1, 1")
    b("v_add_u32 v10, v10, v11")
    b("v_mul_u32_u24 v10, 18, v10")
    b("v_and_b32 v11, 1, v8")
    b("v_add_u32 v10, v10, v11")
    b("v_add_u32 v10, 16, v10")
    b(f"v_mul_u32_u24 v{vDl}, 1152, v10")
    b(f"v_lshl_add_u32 v{vDl}, v9, 4, v{vDl}")
    b("v_and_b32 v8, 31, v0")
    b(f"s_lshl_b32 s{sTmp}, s{sTB}, 5")
    b(f"v_add_u32 v8, s{sTmp}, v8")
    b("v_mul_u32_u24 v8, 1152, v8")
    b("v_lshrrev_b32 v9, 5, v0")
    b(f"v_lshl_add_u32 v{vXo}, v9, 3, v8")
    b(f"v_lshl_add_u32 v{vOo}, v9, 4, v8")
    b("s_waitcnt lgkmcnt(0)")
    srd(b, sWO, sWOp, SZ_WO)
    srd(b, sOB, sWS, SZ_T, WS_O)
    srd(b, sPT, sWS, NSPLIT*SZ_T, WS_P)
    srd(b, sX, sXp, SZ_X)
    srd(b, sOut, sOp, SZ_X)
    b(f"s_mul_i32 s{sOff}, s{sW}, {18*1152}")
    b(f"s_lshl_b32 s{sTmp2}, s{sNT}, 6")
    b(f"s_add_u32 s{sOff}, s{sOff}, s{sTmp2}")
    for i in range(8):
        b(f"s_add_u32 m0, s{sW1024}, {i*4096}")
        b("s_nop 0")
        b(f"buffer_load_dwordx4 v{vDm}, s[{sWO}:{sWO+3}], s{sOff} offen lds ;#w")
        b(f"s_add_u32 s{sOff}, s{sOff}, {4*18*1152}")
    b(f"s_mul_i32 s{sOff}, s{sW}, {8*18*1152}")
    b(f"s_add_u32 s{sOff}, s{sOff}, s{sTmp2}")
    b(f"s_add_u32 m0, s{sW1024}, {8*4096}")
    b("s_nop 0")
    b(f"buffer_load_dwordx4 v{vDl}, s[{sWO}:{sWO+3}], s{sOff} offen lds ;#w")
    for g in range(4):
        b(f"buffer_load_dwordx2 v[{vX+2*g}:{vX+2*g+1}], v{vXo}, s[{sX}:{sX+3}], s{sTmp2} offen offset:{g*16} ;#x")
    b(f"s_mul_i32 s{sOff}, s{sTB}, 18")
    b(f"s_add_u32 s{sOff}, s{sOff}, s{sNT}")
    b(f"s_lshl_b32 s{sOff}, s{sOff}, 11")
    for s_ in range(NSPLIT):
        for hh in range(2):
            r = vP + s_*8 + hh*4
            b(f"buffer_load_dwordx4 v[{r}:{r+3}], v{vL16}, s[{sPT}:{sPT+3}], s{sOff} offen offset:{hh*1024} ;#p{s_}")
        b(f"s_add_u32 s{sOff}, s{sOff}, {SZ_T}")
    b(f"s_mul_i32 s{sOff}, s{sTB}, 36864")
    def oload(ks):
        o = []
        if ks % 4 == 0 and ks: o.append(f"s_add_u32 s{sOff}, s{sOff}, 4096")
        o.append(f"buffer_load_dwordx4 a[{4*ks}:{4*ks+3}], v{vL16}, s[{sOB}:{sOB+3}], s{sOff} offen offset:{(ks%4)*1024} ;#o{ks}")
        return o
    for ks in range(30): b.ext(oload(ks))
    b(W.wv("w")); b("s_barrier")
    for ks in range(30, 36): b.ext(oload(ks))
    def rd(ks):
        r = vA + (ks % 3)*4
        return [f"ds_read_b64_tr_b16 v[{r}:{r+1}], v{vTR} offset:{ks*1024}",
                f"ds_read_b64_tr_b16 v[{r+2}:{r+3}], v{vTR} offset:{ks*1024+512}"]
    for ks in range(2): b.ext(rd(ks))
    fill = [W.wv("x")]
    for i in range(8):
        fill.append(f"v_lshlrev_b32 v{T+2*i}, 16, v{vX+i}")
        fill.append(f"v_and_b32 v{T+2*i+1}, 0xffff0000, v{vX+i}")
    for s_ in range(NSPLIT):
        fill.append(W.wv(f"p{s_}"))
        for i in range(8):
            r = vP + s_*8 + i
            fill.append(f"v_lshlrev_b32 v7, 16, v{r}")
            fill.append(f"v_and_b32 v{r}, 0xffff0000, v{r}")
            fill.append(f"v_add_f32 v{T+2*i}, v{T+2*i}, v7")
            fill.append(f"v_add_f32 v{T+2*i+1}, v{T+2*i+1}, v{r}")
    b.ext(fill)
    main = []
    for ks in range(36):
        r = vA + (ks % 3)*4
        main.append(W.wv(f"o{ks}"))
        main.append(W.wl(f"v[{r}:{r+3}]"))
        c = f"v[{ACC}:{ACC+15}]"
        main.append(f"v_mfma_f32_32x32x16_bf16 v[{ACC}:{ACC+15}], v[{r}:{r+3}], a[{4*ks}:{4*ks+3}], {c}")
        if ks + 2 < 36: main += rd(ks+2)
    b.ext(main)
    b("s_nop 7"); b("s_nop 3")
    for i in range(8): b(f"v_cvt_pk_bf16_f32 v{vX+i}, v{ACC+2*i}, v{ACC+2*i+1}")
    b("s_nop 1")
    for s_ in range(2):
        b(f"v_permlane32_swap_b32 v{vX+4*s_}, v{vX+4*s_+2}")
        b(f"v_permlane32_swap_b32 v{vX+4*s_+1}, v{vX+4*s_+3}")
    b("s_nop 0")
    for s_ in range(2):
        b(f"buffer_store_dwordx4 v[{vX+4*s_}:{vX+4*s_+3}], v{vOo}, s[{sOut}:{sOut+3}], s{sTmp2} offen offset:{s_*32}" + (" sc1" if outsc1 else ""))
    W.simulate(b.ins)
    b.ins = W.resolve(b.ins)
    assert len(check(b.ins, name)) == 0
    if prof: prof_end(b, 4, 4)
    b.label("L_k3_end")
    b("s_endpgm")
    return name, kernel_text(name, b.text(), 108+144, 108, 100)
if __name__ == "__main__":
    n, t = gen_k3()
    open("k3.s", "w").write('.amdgcn_target "amdgcn-amd-amdhsa--gfx950"\n' + t)
```

```python
import sys
from build import *
from k0 import gen_k0
from k1 import gen_k1, K1_LDS
from k2a import gen_attn_kernel, A_LDS
from k2b import gen_down_kernel, B_LDS
from k3 import gen_k3, K3_LDS
prof = "prof" in sys.argv
cfg = [(gen_k0(),256,256,0),(gen_k1("R8", False, ("wfirst","step3")),256,512,K1_LDS),(gen_attn_kernel(prof),256,256,A_LDS),(gen_down_kernel(prof),256,256,B_LDS),(gen_k3(prof),288,256,K3_LDS)]
out = sys.argv[1]
open(out,"w").write(build_all(cfg))
```

```python
import sys, io, contextlib
from build import *
from k0 import gen_k0
from k1 import gen_k1, K1_LDS
from k2a import gen_attn_kernel, A_LDS
from k2b import gen_down_kernel, B_LDS
from k3 import gen_k3, K3_LDS
with contextlib.redirect_stdout(io.StringIO()):
    k0, k1, ka, kb, k3 = gen_k0(), gen_k1("R8", False, ("wfirst","step3")), gen_attn_kernel(), gen_down_kernel(), gen_k3()
nop = ("nop_kernel", kernel_text("nop_kernel", "  s_endpgm\n", 8, 8, 16))
base = [(k0,256,256,0),(k1,256,512,K1_LDS),(ka,256,256,A_LDS),(kb,256,256,B_LDS),(k3,288,256,K3_LDS)]
N = (nop,1,64,0)
open("e_base.s","w").write(build_all(base))
open("e_nop4end.s","w").write(build_all(base+[N]*4))
open("e_nop4begin.s","w").write(build_all([N]*4+base))
open("e_k1twice.s","w").write(build_all([base[0],base[1],base[1]]+base[2:]))
open("e_attn2.s","w").write(build_all(base[:3]+[base[2]]+base[3:]))
open("e_down2.s","w").write(build_all(base[:4]+[base[3]]+base[4:]))
```

```python
from common import *
def gen_k0(prof=False, pf=True):
    name = "ln_kernel"
    b = Blk(name)
    b("s_cmp_ge_u32 s2, 256")
    b("s_cbranch_scc1 L_k0_end")
    if prof: prof_begin(b)
    b(f"s_load_dwordx2 s[4:5], s[0:1], {KA_X}")
    b(f"s_load_dwordx2 s[6:7], s[0:1], {KA_WS}")
    if pf:
        b(f"s_load_dwordx2 s[20:21], s[0:1], {KA_WG}")
        b(f"s_load_dwordx2 s[24:25], s[0:1], {KA_WU}")
        b(f"s_load_dwordx2 s[28:29], s[0:1], {KA_WQKV}")
    b("v_lshrrev_b32 v1, 5, v0")
    b("s_lshl_b32 s3, s2, 3")
    b("v_add_u32 v1, s3, v1")
    b("v_and_b32 v2, 31, v0")
    b("v_mul_u32_u24 v3, 1152, v1")
    b("v_lshl_add_u32 v3, v2, 2, v3")
    b("v_lshrrev_b32 v4, 5, v1")
    b("v_mul_u32_u24 v4, 36864, v4")
    b("v_lshrrev_b32 v5, 3, v2")
    b("v_lshl_add_u32 v4, v5, 10, v4")
    b("v_bfe_u32 v5, v2, 2, 1")
    b("v_lshl_add_u32 v4, v5, 9, v4")
    b("v_and_b32 v5, 31, v1")
    b("v_lshl_add_u32 v4, v5, 4, v4")
    b("v_and_b32 v5, 3, v2")
    b("v_lshl_add_u32 v4, v5, 2, v4")
    b("s_waitcnt lgkmcnt(0)")
    srd(b, 8, 4, SZ_X)
    srd(b, 12, 6, SZ_T, WS_XN)
    X = 8
    for i in range(9): b(f"buffer_load_dword v{X+i}, v3, s[8:11], 0 offen offset:{i*128}")
    NPF = 0
    if pf:
        for base, size in ((20, SZ_WG), (24, SZ_WG), (28, SZ_WQKV)):
            b(f"s_mov_b32 s{base+2}, {size}"); b(f"s_mov_b32 s{base+3}, 0x20000")
        b("s_and_b32 s17, s2, 7")
        b("s_bfe_u32 s18, s2, 0x20003")
        b("s_lshl_b32 s18, s18, 3")
        b("s_add_u32 s17, s17, s18")
        b("s_lshr_b32 s18, s2, 5")
        b("s_mul_i32 s18, s18, 72")
        b("s_mul_i32 s19, s17, 5")
        b("s_lshl_b32 s32, s17, 2")
        b("s_add_u32 s32, s32, 16")
        b("s_cmp_lt_u32 s17, 16")
        b("s_cselect_b32 s19, s19, s32")
        b("s_lshl_b32 s19, s19, 6")
        b("s_mul_i32 s32, s18, 9216")
        b("s_add_u32 s19, s19, s32")
        b("s_lshl_b32 s33, s17, 6")
        b("s_mul_i32 s32, s18, 3456")
        b("s_add_u32 s33, s33, s32")
        for n in range(3):
            b(f"v_add_u32 v50, {256*n}, v0")
            b("v_lshrrev_b32 v51, 3, v50")
            b("v_mul_u32_u24 v51, 9216, v51")
            b("v_and_b32 v52, 7, v50")
            b("v_lshl_add_u32 v51, v52, 4, v51")
            if n == 2:
                b("v_cmp_gt_u32 vcc, 576, v50")
                b("v_mov_b32 v52, 0x7f000000")
                b("s_nop 0")
                b("v_cndmask_b32 v51, v52, v51, vcc")
            b(f"buffer_load_dwordx4 v[56:59], v51, s[20:23], s19 offen")
            b(f"buffer_load_dwordx4 v[60:63], v51, s[24:27], s19 offen")
        for n in range(2):
            b(f"v_add_u32 v50, {256*n}, v0")
            b("v_lshrrev_b32 v51, 2, v50")
            b("v_mul_u32_u24 v51, 3456, v51")
            b("v_and_b32 v52, 3, v50")
            b("v_lshl_add_u32 v51, v52, 4, v51")
            if n == 1:
                b("v_cmp_gt_u32 vcc, 288, v50")
                b("v_mov_b32 v52, 0x7f000000")
                b("s_nop 0")
                b("v_cndmask_b32 v51, v52, v51, vcc")
            b(f"buffer_load_dwordx4 v[56:59], v51, s[28:31], s33 offen")
        NPF = 8
    L = 20
    for i in range(9):
        b(f"s_waitcnt vmcnt({8-i+NPF})")
        b(f"v_lshlrev_b32 v{L+2*i}, 16, v{X+i}")
        b(f"v_and_b32 v{L+2*i+1}, 0xffff0000, v{X+i}")
    def reduce32(r, t):
        b("s_nop 1")
        b(f"v_add_f32_dpp v{r}, v{r}, v{r} quad_perm:[1,0,3,2] row_mask:0xf bank_mask:0xf")
        b("s_nop 1")
        b(f"v_add_f32_dpp v{r}, v{r}, v{r} quad_perm:[2,3,0,1] row_mask:0xf bank_mask:0xf")
        b("s_nop 1")
        b(f"v_add_f32_dpp v{r}, v{r}, v{r} row_half_mirror row_mask:0xf bank_mask:0xf")
        b("s_nop 1")
        b(f"v_add_f32_dpp v{r}, v{r}, v{r} row_mirror row_mask:0xf bank_mask:0xf")
        b(f"v_mov_b32 v{t}, v{r}") if False else None
        b("s_nop 0")
        b(f"v_mov_b32 v{t}, v{r}")
        b("s_nop 1")
        b(f"v_permlane16_swap_b32 v{r}, v{t}")
        b("s_nop 0")
        b(f"v_add_f32 v{r}, v{r}, v{t}")
    b(f"v_add_f32 v40, v{L}, v{L+1}")
    b(f"v_add_f32 v41, v{L+2}, v{L+3}")
    for i in range(2, 9):
        b(f"v_add_f32 v40, v40, v{L+2*i}")
        b(f"v_add_f32 v41, v41, v{L+2*i+1}")
    b("v_add_f32 v40, v40, v41")
    reduce32(40, 42)
    b(f"v_mul_f32 v40, {f32hex(1.0/576)}, v40")
    b(f"v_sub_f32 v43, v{L}, v40")
    b(f"v_mul_f32 v44, v43, v43")
    b(f"v_sub_f32 v43, v{L+1}, v40")
    b(f"v_mul_f32 v45, v43, v43")
    for i in range(1, 9):
        b(f"v_sub_f32 v43, v{L+2*i}, v40")
        b(f"v_sub_f32 v46, v{L+2*i+1}, v40")
        b(f"v_fmac_f32 v44, v43, v43")
        b(f"v_fmac_f32 v45, v46, v46")
    b("v_add_f32 v44, v44, v45")
    reduce32(44, 42)
    b(f"v_mul_f32 v44, {f32hex(1.0/576)}, v44")
    b("v_cvt_pk_bf16_f32 v45, v40, v44")
    b("v_lshlrev_b32 v40, 16, v45")
    b("v_and_b32 v44, 0xffff0000, v45")
    b(f"v_add_f32 v44, {f32hex(1e-5)}, v44")
    b("v_cvt_pk_bf16_f32 v44, v44, v44")
    b("v_and_b32 v44, 0xffff0000, v44")
    b("v_sqrt_f32 v44, v44")
    b("s_nop 0")
    b("v_cvt_pk_bf16_f32 v44, v44, v44")
    b("v_and_b32 v44, 0xffff0000, v44")
    b("v_rcp_f32 v44, v44")
    for i in range(9):
        b(f"v_sub_f32 v{L+2*i}, v{L+2*i}, v40")
        b(f"v_sub_f32 v{L+2*i+1}, v{L+2*i+1}, v40")
        b(f"v_cvt_pk_bf16_f32 v{X+i}, v{L+2*i}, v{L+2*i+1}")
    for i in range(9):
        b(f"v_lshlrev_b32 v{L+2*i}, 16, v{X+i}")
        b(f"v_and_b32 v{L+2*i+1}, 0xffff0000, v{X+i}")
        b(f"v_mul_f32 v{L+2*i}, v{L+2*i}, v44")
        b(f"v_mul_f32 v{L+2*i+1}, v{L+2*i+1}, v44")
        b(f"v_cvt_pk_bf16_f32 v{X+i}, v{L+2*i}, v{L+2*i+1}")
        b(f"s_mov_b32 s16, {i*4096}")
        b(f"buffer_store_dword v{X+i}, v4, s[12:15], s16 offen")
    if prof: prof_end(b, 0, 4)
    b.label("L_k0_end")
    b("s_endpgm")
    if not pf: check(b.ins, name)
    return name, kernel_text(name, b.text(), 64, 64, 100)
if __name__ == "__main__":
    print(gen_k0()[1][:300])
```

```python
from common import *
import math
HALF = 73728; SCR = 2*HALF; K1_LDS = SCR + 1024
C1 = -2.0*math.sqrt(2.0/math.pi)*math.log2(math.e); C2 = C1*0.044715
QSCALE = (18.0**-0.5)*math.log2(math.e)
sWS, sWQp, sWGp, sWUp = 4, 6, 8, 10
sXN, sLD, sH, sO, sWP, sWQ = 12, 16, 20, 24, 28, 48
sW, sTB, sN1, sPh, sT, sP, sHoff, sW1024, sLDo, sLDs, sTmp, sTmp2, sScale, sOff, sRB, sCG = range(32, 48)
vL16, vL8, vDQ, vDP, vLD, vC2 = 1, 2, 3, 4, 5, 6
vTR = [7, 8, 9, 10]
vT = 12
ACC = [(16, 32), (48, 64)]
X = 80
SACC = 96
OPT = set()
W = None
PRE = 2

def gelu_epilogue(G, U):
    e = []
    for grp in range(4):
        E = [4*grp+i for i in range(4)]
        e += [f"v_mul_f32 v{vT+i}, v{G+E[i]}, v{G+E[i]}" for i in range(4)]
        e += [f"v_fmaak_f32 v{vT+i}, v{vT+i}, v{vC2}, {f32hex(C1)}" for i in range(4)]
        e += [f"v_mul_f32 v{vT+i}, v{vT+i}, v{G+E[i]}" for i in range(4)]
        e += [f"v_exp_f32 v{vT+i}, v{vT+i}" for i in range(4)]
        e += [f"v_mul_f32 v{G+E[i]}, v{G+E[i]}, v{U+E[i]}" for i in range(4)]
        e += [f"v_add_f32 v{vT+i}, 1.0, v{vT+i}" for i in range(4)]
        e += [f"v_rcp_f32 v{vT+i}, v{vT+i}" for i in range(4)]
        e += [f"v_mul_f32 v{G+E[i]}, v{G+E[i]}, v{vT+i}" for i in range(4)]
        e += [f"v_cvt_pk_bf16_f32 v{U+2*grp}, v{G+4*grp}, v{G+4*grp+1}",
              f"v_cvt_pk_bf16_f32 v{U+2*grp+1}, v{G+4*grp+2}, v{G+4*grp+3}"]
        if grp % 2 == 1:
            s = grp//2
            e += [f"buffer_store_dwordx4 v[{U+4*s}:{U+4*s+3}], v{vL16}, s[{sH}:{sH+3}], s{sHoff} offen offset:{s*1024}" + ("" if "plainst" in OPT else " sc1")]
    e.append(f"s_add_u32 s{sHoff}, s{sHoff}, 2048")
    return e

def lds_loc(half, off):
    if off < 65536 - 512: return vTR[2*half], off
    return vTR[2*half+1], off - 65536
def frag_reads(half, off, r):
    base, o = lds_loc(half, off)
    return [f"ds_read_b64_tr_b16 v[{r}:{r+1}], v{base} offset:{o}",
            f"ds_read_b64_tr_b16 v[{r+2}:{r+3}], v{base} offset:{o+256}"]
def poff(ks, mat): return (ks//4)*8192 + ((ks % 4)*2 + mat)*1024
def preg(ks, mat): return X + (ks % 3)*8 + mat*4
def pair_reads(half, ks, mat): return frag_reads(half, poff(ks, mat), preg(ks, mat))
def sreg(ks): return X + (ks % 4)*4
def single_reads(half, ks): return frag_reads(half, ks*1024, sreg(ks))
def ffreg(ks, m): return X + ((ks*4 + m) % 8)*4
def ff_reads(ks, m): return frag_reads(m//2, poff(ks, m % 2), ffreg(ks, m))

def loader(i, half):
    return [f"s_add_u32 m0, s{sW1024}, {half*HALF + i*8192}",
            f"s_nop 0",
            f"buffer_load_dwordx4 v{vLD}, s[{sLD}:{sLD+3}], s{sLDo} offen lds ;#ld",
            f"s_add_u32 s{sLDo}, s{sLDo}, s{sLDs}"]
def next_reads(half, kind):
    if kind == "pair": return pair_reads(half, 0, 0) + pair_reads(half, 0, 1), pair_reads(half, 1, 0) + pair_reads(half, 1, 1)
    return single_reads(half, 0) + single_reads(half, 1), single_reads(half, 2)
def place(main, extra):
    out = []; a = 0
    for s in main:
        out.append(s)
        if s.startswith("v_mfma"):
            out += extra.get(a, []); a += 1
    return out

def pair_body(cur, half, nxt_kind):
    G, U = ACC[cur]; Gp, Up = ACC[1-cur]
    main = []
    for ks in range(36):
        if ks == 35: main += [W.wv("ld"), "s_waitcnt lgkmcnt(0)", "s_barrier"]
        for mat, A in ((0, G), (1, U)):
            r = preg(ks, mat)
            if ks != 35: main.append(W.wl(f"v[{r}:{r+3}]"))
            c = "0" if ks == 0 else f"v[{A}:{A+15}]"
            main.append(f"v_mfma_f32_32x32x16_bf16 v[{A}:{A+15}], v[{r}:{r+3}], a[{4*ks}:{4*ks+3}], {c}")
            if ks + 2 < 36: main += pair_reads(half, ks+2, mat)
            if ks == 35: main += next_reads(1-half, nxt_kind)[mat]
    extra = {}
    for i in range(9): extra.setdefault(2*i + 1, []).extend(loader(i, 1-half))
    main = place(main, extra)
    return interleave(main, gelu_epilogue(Gp, Up), start=3, end=66)

def stream_ops(j):
    ops = []
    for h in range(2):
        ops.append([f"s_add_u32 m0, s{sW1024}, {h*HALF + j*8192}",
                    f"s_add_u32 s{sTmp}, s{sP}, {4*j*147456 + 64*h}",
                    f"buffer_load_dwordx4 v{vDP}, s[{sWP}:{sWP+3}], s{sTmp} offen lds ;#w{j}"])
    for q in range(4):
        ks = 4*j + q
        o = []
        if q == 0 and j: o.append(f"s_add_u32 s{sOff}, s{sOff}, 4096")
        o.append(f"buffer_load_dwordx4 a[{4*ks}:{4*ks+3}], v{vL16}, s[{sXN}:{sXN+3}], s{sOff} offen offset:{q*1024} ;#x{ks}")
        ops.append(o)
    return ops

def t0_loader(i):
    return [f"s_add_u32 m0, s{sW1024}, {i*8192}",
            f"s_add_u32 s{sTmp}, s{sLDo}, {i*8*55296}",
            f"buffer_load_dwordx4 v{vDQ}, s[{sWQ}:{sWQ+3}], s{sTmp} offen lds ;#ld"]

def l2_prefetch():
    ops = []
    for q in (2, 3, 4):
        o = [f"s_mul_i32 s{sTmp}, s{sRB}, {4*147456}",
             f"s_add_u32 s{sTmp}, s{sTmp}, s{sP}",
             f"s_add_u32 s{sTmp}, s{sTmp}, {64*q}"]
        if q == 4:
            o += [f"s_cmp_lt_u32 s{sCG}, 16", f"s_cselect_b32 s{sTmp}, s{sTmp}, 0x7f000000"]
        o += [f"s_mov_b32 m0, {SCR}", "s_nop 0",
              f"buffer_load_dwordx4 v{vDP}, s[{sWP}:{sWP+3}], s{sTmp} offen lds ;#pf"]
        ops.append(o)
    for q in (1, 2):
        o = [f"s_mul_i32 s{sTmp}, s{sRB}, {8*55296}",
             f"s_add_u32 s{sTmp}, s{sTmp}, s{sLDo}",
             f"s_add_u32 s{sTmp}, s{sTmp}, {16*64*q}",
             f"s_sub_u32 s{sTmp2}, s{sCG}, 16",
             f"s_cmp_lt_u32 s{sTmp2}, {16 if q == 1 else 6}",
             f"s_cselect_b32 s{sTmp}, s{sTmp}, 0x7f000000",
             f"s_mov_b32 m0, {SCR}", "s_nop 0",
             f"buffer_load_dwordx4 v{vDQ}, s[{sWQ}:{sWQ+3}], s{sTmp} offen lds ;#pf"]
        ops.append(o)
    return ops

def ff2_body():
    main = []
    accs = [ACC[0][0], ACC[0][1], ACC[1][0], ACC[1][1]]
    for ks in range(36):
        if ks % 4 == 0 and 0 < ks < 32:
            main.append(W.wv(f"w{ks//4+1}")); main.append("s_barrier")
            if "fstamp" in OPT: main += [f"s_memtime s[{64+2*(ks//4)}:{65+2*(ks//4)}]", "s_waitcnt lgkmcnt(0)"]
        if ks == 35: main += [W.wv("ld"), "s_waitcnt lgkmcnt(0)", "s_barrier"]
        for m in range(4):
            r = ffreg(ks, m); A = accs[m]
            if m == 0: main.append(W.wv(f"x{ks}"))
            if ks != 35: main.append(W.wl(f"v[{r}:{r+3}]"))
            c = "0" if ks == 0 else f"v[{A}:{A+15}]"
            main.append(f"v_mfma_f32_32x32x16_bf16 v[{A}:{A+15}], v[{r}:{r+3}], a[{4*ks}:{4*ks+3}], {c}")
            if ks + 1 < 36: main += ff_reads(ks+1, m)
            if ks == 35 and m < 2: main += next_reads(0, "single")[m]
    extra = {}
    for j in range(9 - PRE):
        for q, op in enumerate(stream_ops(j + PRE)): extra.setdefault(16*j + 2*q + 1, []).extend(op)
    for i in range(5): extra.setdefault(16*(i+1) + 14, []).extend(t0_loader(i))
    if "nopf" not in OPT:
        for q, op in enumerate(l2_prefetch()): extra.setdefault(16*7 + 3 + 4*q, []).extend(op)
    return place(main, extra)

def single_epilogue(isV):
    A = SACC
    b = Blk()
    if isV:
        b(f"s_sub_u32 s{sTmp}, s{sT}, 36")
        b(f"s_lshl_b32 s{sTmp}, s{sTmp}, 11")
        b(f"s_add_u32 s{sTmp}, s{sTmp}, {2*SZ_T}")
    else:
        b(f"s_cmp_ge_u32 s{sT}, 18")
        b(f"s_cselect_b32 s{sTmp}, {SZ_T - 18*2048}, 0")
        b(f"s_cselect_b32 s{sScale}, 1.0, {f32hex(QSCALE)}")
        b(f"s_lshl_b32 s{sTmp2}, s{sT}, 11")
        b(f"s_add_u32 s{sTmp}, s{sTmp}, s{sTmp2}")
    b(f"s_mul_i32 s{sTmp2}, s{sTB}, 36864")
    b(f"s_add_u32 s{sTmp}, s{sTmp}, s{sTmp2}")
    b("s_nop 3")
    if not isV:
        for i in range(16): b(f"v_mul_f32 v{A+i}, s{sScale}, v{A+i}")
    for i in range(8): b(f"v_cvt_pk_bf16_f32 v{A+i}, v{A+2*i}, v{A+2*i+1}")
    if isV:
        b("s_nop 1")
        for s in range(2):
            b(f"v_permlane32_swap_b32 v{A+4*s}, v{A+4*s+2}")
            b(f"v_permlane32_swap_b32 v{A+4*s+1}, v{A+4*s+3}")
        b("s_nop 0")
        for s in range(2):
            b(f"buffer_store_dwordx4 v[{A+4*s}:{A+4*s+3}], v{vL16}, s[{sO}:{sO+3}], s{sTmp} offen offset:{s*1024}")
    else:
        for g in range(4):
            b(f"buffer_store_dwordx2 v[{A+2*g}:{A+2*g+1}], v{vL8}, s[{sO}:{sO+3}], s{sTmp} offen offset:{g*512}")
    b(f"s_add_u32 s{sT}, s{sT}, 16")
    b("s_nop 0")
    return b.ins

def single_body(isV, half, gelu_set, nxt_kind, nld):
    A = SACC
    main = []
    for ks in range(36):
        r = sreg(ks)
        if ks == 35: main += [W.wv("ld"), "s_waitcnt lgkmcnt(0)", "s_barrier"]
        else: main.append(W.wl(f"v[{r}:{r+3}]"))
        c = "0" if ks == 0 else f"v[{A}:{A+15}]"
        if isV: main.append(f"v_mfma_f32_32x32x16_bf16 v[{A}:{A+15}], a[{4*ks}:{4*ks+3}], v[{r}:{r+3}], {c}")
        else:   main.append(f"v_mfma_f32_32x32x16_bf16 v[{A}:{A+15}], v[{r}:{r+3}], a[{4*ks}:{4*ks+3}], {c}")
        if ks + 3 < 36: main += single_reads(half, ks+3)
        if ks == 35:
            a, bb = next_reads(1-half, nxt_kind); main += a + bb
    extra = {}
    for i in range(nld): extra.setdefault(2*i + 1, []).extend(loader(i, 1-half))
    main = place(main, extra)
    if gelu_set is not None: main = interleave(main, gelu_epilogue(*ACC[gelu_set]), start=3, end=34)
    return main + single_epilogue(isV)

def ld_pair(q):
    return [f"s_mov_b32 s{sLD}, s{sWP}", f"s_mov_b32 s{sLD+1}, s{sWP+1}", f"s_mov_b32 s{sLD+2}, {SZ_WG}",
            f"s_add_u32 s{sLDo}, s{sP}, {64*q}", f"s_mov_b32 s{sLDs}, {4*147456}", f"v_mov_b32 v{vLD}, v{vDP}"]
def ld_single(add, cond=None):
    o = [f"s_mov_b32 s{sLD}, s{sWQ}", f"s_mov_b32 s{sLD+1}, s{sWQ+1}"]
    if cond is None: o.append(f"s_mov_b32 s{sLD+2}, {SZ_WQKV}")
    else: o += cond + [f"s_cselect_b32 s{sLD+2}, {SZ_WQKV}, 0"]
    o += [f"s_add_u32 s{sLDo}, s{sT}, {add}", f"s_lshl_b32 s{sLDo}, s{sLDo}, 6",
          f"s_mul_i32 s{sTmp}, s{sW}, 55296", f"s_add_u32 s{sLDo}, s{sLDo}, s{sTmp}",
          f"s_mov_b32 s{sLDs}, {8*55296}", f"v_mov_b32 v{vLD}, v{vDQ}"]
    return o
def ld_none(): return [f"s_mov_b32 s{sLD+2}, 0"]

def stamp(b, i, on):
    if on:
        b(f"s_memtime s[{52+2*i}:{53+2*i}]")
        b("s_waitcnt lgkmcnt(0)")

def gen_k1(xmap="R8", prof=False, opts=()):
    global W, PRE
    OPT.clear(); OPT.update(opts)
    PRE = 2
    for o in opts:
        if o.startswith("pre"): PRE = int(o[3:])
    W = Waits()
    name = "gemm1_kernel"
    b = Blk(name)
    stamp(b, 0, prof)
    b("s_cmp_ge_u32 s2, 256")
    b("s_cbranch_scc1 L_k1_end")
    if "rt" in OPT: prof_begin(b)
    b(f"s_load_dwordx2 s[{sWS}:{sWS+1}], s[0:1], {KA_WS}")
    b(f"s_load_dwordx2 s[{sWQp}:{sWQp+1}], s[0:1], {KA_WQKV}")
    b(f"s_load_dwordx2 s[{sWGp}:{sWGp+1}], s[0:1], {KA_WG}")
    b(f"s_load_dwordx2 s[{sWUp}:{sWUp+1}], s[0:1], {KA_WU}")
    b(f"v_readfirstlane_b32 s{sW}, v0")
    b("v_and_b32 v0, 63, v0")
    b(f"s_lshr_b32 s{sW}, s{sW}, 6")
    b(f"v_lshlrev_b32 v{vL16}, 4, v0")
    b(f"v_lshlrev_b32 v{vL8}, 3, v0")
    b("v_lshrrev_b32 v12, 2, v0")
    b("v_and_b32 v13, 3, v0")
    b("v_lshlrev_b32 v13, 4, v13")
    b(f"v_mul_u32_u24 v{vDQ}, 3456, v12")
    b(f"v_add_u32 v{vDQ}, v{vDQ}, v13")
    b(f"v_mul_u32_u24 v{vDP}, 9216, v12")
    b(f"v_add_u32 v{vDP}, v{vDP}, v13")
    b(f"v_mov_b32 v{vLD}, v{vDP}")
    b("v_lshrrev_b32 v12, 5, v0")
    b("v_lshlrev_b32 v12, 9, v12")
    b("v_bfe_u32 v13, v0, 2, 2")
    b("v_lshl_add_u32 v12, v13, 6, v12")
    b("v_bfe_u32 v13, v0, 4, 1")
    b("v_lshl_add_u32 v12, v13, 5, v12")
    b("v_and_b32 v13, 3, v0")
    b(f"v_lshl_add_u32 v{vTR[0]}, v13, 3, v12")
    b(f"v_add_u32 v{vTR[1]}, 0x10000, v{vTR[0]}")
    b(f"v_add_u32 v{vTR[2]}, {HALF}, v{vTR[0]}")
    b(f"v_add_u32 v{vTR[3]}, {HALF + 65536}, v{vTR[0]}")
    b(f"v_mov_b32 v{vC2}, {f32hex(C2)}")
    b(f"s_and_b32 s{sCG}, s2, 7")
    b(f"s_lshr_b32 s{sTmp}, s2, 3")
    b(f"s_and_b32 s{sTmp}, s{sTmp}, 3")
    b(f"s_lshl_b32 s{sTmp}, s{sTmp}, 3")
    b(f"s_add_u32 s{sCG}, s{sCG}, s{sTmp}")
    b(f"s_lshr_b32 s{sRB}, s2, 5")
    b(f"s_lshl_b32 s{sTB}, s{sRB}, 3")
    b(f"s_add_u32 s{sTB}, s{sTB}, s{sW}")
    b(f"s_mul_i32 s{sP}, s{sCG}, 5")
    b(f"s_lshl_b32 s{sTmp}, s{sCG}, 2")
    b(f"s_add_u32 s{sTmp}, s{sTmp}, 16")
    b(f"s_cmp_lt_u32 s{sCG}, 16")
    b(f"s_cselect_b32 s{sP}, s{sP}, s{sTmp}")
    b(f"s_mov_b32 s{sT}, s{sCG}")
    b(f"s_mov_b32 s{sPh}, 0")
    b(f"s_mul_i32 s{sHoff}, s{sTB}, 288")
    b(f"s_lshl_b32 s{sTmp}, s{sP}, 1")
    b(f"s_add_u32 s{sHoff}, s{sHoff}, s{sTmp}")
    b(f"s_lshl_b32 s{sHoff}, s{sHoff}, 10")
    b(f"s_lshl_b32 s{sP}, s{sP}, 6")
    b(f"s_lshr_b32 s{sTmp}, s{sW}, 1")
    b(f"s_mul_i32 s{sTmp}, s{sTmp}, 147456")
    b(f"s_add_u32 s{sP}, s{sP}, s{sTmp}")
    b(f"s_lshl_b32 s{sW1024}, s{sW}, 10")
    b(f"s_lshl_b32 s{sLDo}, s{sT}, 6")
    b(f"s_mul_i32 s{sTmp}, s{sW}, 55296")
    b(f"s_add_u32 s{sLDo}, s{sLDo}, s{sTmp}")
    b("s_waitcnt lgkmcnt(0)")
    srd(b, sXN, sWS, SZ_T, WS_XN)
    b(f"s_and_b32 s{sTmp}, s{sW}, 1")
    b(f"s_cmp_eq_u32 s{sTmp}, 0")
    b(f"s_cselect_b32 s{sWP}, s{sWGp}, s{sWUp}")
    b(f"s_cselect_b32 s{sWP+1}, s{sWGp+1}, s{sWUp+1}")
    b(f"s_mov_b32 s{sWP+2}, {SZ_WG}")
    b(f"s_mov_b32 s{sWP+3}, 0x20000")
    srd(b, sWQ, sWQp, SZ_WQKV)
    srd(b, sLD, sWQp, SZ_WQKV)
    srd(b, sH, sWS, SZ_H, WS_H)
    srd(b, sO, sWS, 3*SZ_T, WS_Q)
    b(f"s_mul_i32 s{sOff}, s{sTB}, 36864")
    so = [stream_ops(j) for j in range(PRE)]
    for j in range(PRE):
        b.ext(so[j][0]); b.ext(so[j][1])
    for j in range(PRE):
        for op in so[j][2:]: b.ext(op)
    b(W.wv("w0")); b("s_barrier")
    for m in range(4): b.ext(ff_reads(0, m))
    b(W.wv("w1")); b("s_barrier")
    stamp(b, 1, prof)
    pro = list(b.ins)
    FF = ff2_body()
    SG0 = ld_pair(2) + single_body(False, 0, 0, "pair", 9)
    P0a = ld_pair(3)
    P0 = pair_body(0, 1, "pair")
    P1p = ld_pair(4) + pair_body(1, 0, "pair")
    P1s = ld_single(0) + pair_body(1, 0, "single")
    ex3 = [f"s_sub_u32 s{sTmp2}, s{sCG}, 16", f"s_cmp_lt_u32 s{sTmp2}, 6"]
    SG1 = {v: ld_single(16, ex3) + single_body(v, 1, 1, "single", 5) for v in (False, True)}
    SV = ld_none() + single_body(True, 0, None, "single", 0)
    drain = ["s_waitcnt lgkmcnt(0)", "s_nop 7", "s_nop 3"] + gelu_epilogue(*ACC[0])
    trA = pro + FF + SG0 + P0a + P0 + P1p + ld_none() + P0 + drain
    trB = pro + FF + SG0 + P0a + P0 + P1s + SG1[True] + SV
    trB2 = pro + FF + SG0 + P0a + P0 + P1s + SG1[False]
    for tr in (trA, trB, trB2): W.simulate(tr)
    R = W.resolve
    b.ins = R(b.ins)
    b.ext(R(FF))
    stamp(b, 2, prof)
    b.ext(R(SG0)); b.ext(P0a)
    b.label("L_k1_p0")
    b.ext(R(P0))
    b(f"s_cmp_eq_u32 s{sPh}, 1")
    b("s_cbranch_scc1 L_k1_drain")
    b(f"s_cmp_lt_u32 s{sCG}, 16")
    b("s_cbranch_scc0 L_k1_B")
    b.ext(R(P1p)); b.ext(ld_none())
    b(f"s_mov_b32 s{sPh}, 1")
    b("s_branch L_k1_p0")
    b.label("L_k1_B")
    b.ext(R(P1s))
    stamp(b, 3, prof)
    b(f"s_cmp_ge_u32 s{sT}, 36")
    b("s_cbranch_scc1 L_k1_sg1v")
    b.ext(R(SG1[False])); b("s_branch L_k1_sg1d")
    b.label("L_k1_sg1v")
    b.ext(R(SG1[True]))
    b.label("L_k1_sg1d")
    b(f"s_sub_u32 s{sTmp2}, s{sCG}, 16")
    b(f"s_cmp_lt_u32 s{sTmp2}, 6")
    b("s_cbranch_scc0 L_k1_fin")
    b.ext(R(SV))
    b("s_branch L_k1_fin")
    b.label("L_k1_drain")
    stamp(b, 3, prof)
    b.ext(drain)
    b.label("L_k1_fin")
    b("s_waitcnt lgkmcnt(0)")
    if prof:
        stamp(b, 4, True)
        b("s_waitcnt vmcnt(0)")
        stamp(b, 5, True)
        b(f"s_lshl_b32 s{sTmp}, s2, 3")
        b(f"s_add_u32 s{sTmp}, s{sTmp}, s{sW}")
        b(f"s_lshl_b32 s{sTmp}, s{sTmp}, 5")
        srd(b, sXN, sWS, 1<<20, 40<<20)
        for i in range(6): b(f"v_mov_b32 v{16+i}, s{52+2*i}")
        if "fstamp" in OPT:
            for i in range(8): b(f"v_mov_b32 v{24+i}, s{64+2*i}")
            b("v_mov_b32 v12, 0")
            b(f"s_add_u32 s{sTmp2}, s{sTmp}, {1<<17}")
            b(f"buffer_store_dwordx4 v[24:27], v12, s[{sXN}:{sXN+3}], s{sTmp2} offen")
            b(f"buffer_store_dwordx4 v[28:31], v12, s[{sXN}:{sXN+3}], s{sTmp2} offen offset:16")
        b("v_mov_b32 v12, 0")
        b(f"buffer_store_dwordx4 v[16:19], v12, s[{sXN}:{sXN+3}], s{sTmp} offen")
        b(f"buffer_store_dwordx4 v[20:23], v12, s[{sXN}:{sXN+3}], s{sTmp} offen offset:16")
    if "rt" in OPT: prof_end(b, 1, 8)
    b.label("L_k1_end")
    b("s_endpgm")
    bad = 0
    for nm, tr in (("A", trA), ("B", trB), ("B2", trB2)): bad += len(check(R(tr), name+"_"+nm))
    assert bad == 0 or opts
    return name, kernel_text(name, b.text(), 256, 112, 100)
if __name__ == "__main__":
    n, t = gen_k1()
    open("k1.s", "w").write('.amdgcn_target "amdgcn-amd-amdhsa--gfx950"\n' + t)
```

```python
from common import *
import k2a, k2b
MIX_LDS = max(k2a.A_LDS, k2b.B_LDS)
def gen_mix(prof=False, order="ad", prio=None):
    name = "mix_kernel"
    b = Blk()
    b("s_cmp_ge_u32 s2, 512")
    b("s_cbranch_scc1 L_mix_end")
    if prof: prof_begin(b)
    b("s_cmp_ge_u32 s2, 256")
    b("s_cbranch_scc1 L_mix_second")
    first, second = (k2a.gen_attn_role, k2b.gen_down_role) if order == "ad" else (k2b.gen_down_role, k2a.gen_attn_role)
    if prio == "first": b("s_setprio 1")
    b.ext(first())
    b("s_branch L_mix_done")
    b.label("L_mix_second")
    if prio == "second": b("s_setprio 1")
    b.ext(second())
    b.label("L_mix_done")
    if prof: prof_end(b, 2, 4)
    b.label("L_mix_end")
    b("s_endpgm")
    return name, kernel_text(name, b.text(), 256, 256, 100)
```

```python
import sys
from build import *
from k0 import gen_k0
import k1, k1b
from k2a import gen_attn_kernel, A_LDS
from k2b import gen_down_kernel, B_LDS
from k2 import gen_mix, MIX_LDS
from k3 import gen_k3, K3_LDS
prof = "prof" in sys.argv
out = sys.argv[1]
extra = tuple(a[2:] for a in sys.argv if a.startswith("o:"))
if "old1" in sys.argv: gen_k1, K1_LDS, k1o = k1.gen_k1, k1.K1_LDS, ("wfirst","step3")
else: gen_k1, K1_LDS, k1o = k1b.gen_k1, k1b.K1_LDS, ()
k1o = k1o + extra + (("rt",) if prof else ())
pf = "nopf0" not in sys.argv
if "mix" in sys.argv:
    order = "da" if "da" in sys.argv else "ad"
    prio = "first" if "p1" in sys.argv else ("second" if "p2" in sys.argv else None)
    cfg = [(gen_k0(prof, pf),256,256,0),(gen_k1("R8", False, k1o),256,512,K1_LDS),(gen_mix(prof, order, prio),512,256,MIX_LDS),(gen_k3(prof),288,256,K3_LDS)]
else:
    cfg = [(gen_k0(prof, pf),256,256,0),(gen_k1("R8", False, k1o),256,512,K1_LDS),(gen_attn_kernel(prof),256,256,A_LDS),(gen_down_kernel(prof),256,256,B_LDS),(gen_k3(prof),288,256,K3_LDS)]
open(out,"w").write(build_all(cfg))
```

```python
from common import *
def gen_k0(prof=False, pf=True, PFROWS=576, PFT0=True, WOF=True):
    name = "ln_kernel"
    b = Blk(name)
    b("s_cmp_ge_u32 s2, 256")
    b("s_cbranch_scc1 L_k0_end")
    if prof: prof_begin(b)
    b(f"s_load_dwordx2 s[4:5], s[0:1], {KA_X}")
    b(f"s_load_dwordx2 s[6:7], s[0:1], {KA_WS}")
    if pf:
        b(f"s_load_dwordx2 s[20:21], s[0:1], {KA_WG}")
        b(f"s_load_dwordx2 s[24:25], s[0:1], {KA_WU}")
        b(f"s_load_dwordx2 s[28:29], s[0:1], {KA_WQKV}")
    b("v_lshrrev_b32 v1, 5, v0")
    b("s_lshl_b32 s3, s2, 3")
    b("v_add_u32 v1, s3, v1")
    b("v_and_b32 v2, 31, v0")
    b("v_mul_u32_u24 v3, 1152, v1")
    b("v_lshl_add_u32 v3, v2, 2, v3")
    b("v_lshrrev_b32 v4, 5, v1")
    b("v_mul_u32_u24 v4, 36864, v4")
    b("v_lshrrev_b32 v5, 3, v2")
    b("v_lshl_add_u32 v4, v5, 10, v4")
    b("v_bfe_u32 v5, v2, 2, 1")
    b("v_lshl_add_u32 v4, v5, 9, v4")
    b("v_and_b32 v5, 31, v1")
    b("v_lshl_add_u32 v4, v5, 4, v4")
    b("v_and_b32 v5, 3, v2")
    b("v_lshl_add_u32 v4, v5, 2, v4")
    b("s_waitcnt lgkmcnt(0)")
    srd(b, 8, 4, SZ_X)
    srd(b, 12, 6, SZ_T, WS_XN)
    X = 8
    for i in range(9): b(f"buffer_load_dword v{X+i}, v3, s[8:11], 0 offen offset:{i*128}")
    NPF = 0
    if pf:
        for base, size in ((20, SZ_WG), (24, SZ_WG), (28, SZ_WQKV)):
            b(f"s_mov_b32 s{base+2}, {size}"); b(f"s_mov_b32 s{base+3}, 0x20000")
        b("s_and_b32 s17, s2, 7")
        b("s_bfe_u32 s18, s2, 0x20003")
        b("s_lshl_b32 s18, s18, 3")
        b("s_add_u32 s17, s17, s18")
        b("s_lshr_b32 s18, s2, 5")
        b(f"s_mul_i32 s18, s18, {PFROWS//8}")
        b("s_mul_i32 s19, s17, 5")
        b("s_lshl_b32 s32, s17, 2")
        b("s_add_u32 s32, s32, 16")
        b("s_cmp_lt_u32 s17, 16")
        b("s_cselect_b32 s19, s19, s32")
        b("s_lshl_b32 s19, s19, 6")
        b("s_mul_i32 s32, s18, 9216")
        b("s_add_u32 s19, s19, s32")
        nl = (PFROWS//8*8 + 255)//256
        for n in range(nl):
            b(f"v_add_u32 v50, {256*n}, v0")
            b("v_lshrrev_b32 v51, 3, v50")
            b("v_mul_u32_u24 v51, 9216, v51")
            b("v_and_b32 v52, 7, v50")
            b("v_lshl_add_u32 v51, v52, 4, v51")
            if 256*(n+1) > PFROWS:
                b(f"v_cmp_gt_u32 vcc, {PFROWS}, v50")
                b("v_mov_b32 v52, 0x7f000000")
                b("s_nop 0")
                b("v_cndmask_b32 v51, v52, v51, vcc")
            b(f"buffer_load_dwordx4 v[56:59], v51, s[20:23], s19 offen")
            b(f"buffer_load_dwordx4 v[60:63], v51, s[24:27], s19 offen")
        NPF = 2*nl
        if PFT0:
            b("s_lshl_b32 s33, s17, 6")
            b("s_mul_i32 s32, s18, 3456") if PFROWS == 576 else None
            b("s_lshr_b32 s32, s2, 5")
            b(f"s_mul_i32 s32, s32, {72*3456}")
            b("s_add_u32 s33, s33, s32")
            for n in range(2):
                b(f"v_add_u32 v50, {256*n}, v0")
                b("v_lshrrev_b32 v51, 2, v50")
                b("v_mul_u32_u24 v51, 3456, v51")
                b("v_and_b32 v52, 3, v50")
                b("v_lshl_add_u32 v51, v52, 4, v51")
                if n == 1:
                    b("v_cmp_gt_u32 vcc, 288, v50")
                    b("v_mov_b32 v52, 0x7f000000")
                    b("s_nop 0")
                    b("v_cndmask_b32 v51, v52, v51, vcc")
                b(f"buffer_load_dwordx4 v[56:59], v51, s[28:31], s33 offen")
            NPF += 2
    if WOF:
        b(f"s_load_dwordx2 s[36:37], s[0:1], {KA_WO}")
        b("v_readfirstlane_b32 s34, v0")
        b("v_and_b32 v53, 63, v0")
        b("s_lshr_b32 s34, s34, 6")
        b("s_lshl_b32 s35, s2, 2")
        b("s_add_u32 s35, s35, s34")
        b("s_mul_i32 s40, s35, 3641")
        b("s_lshr_b32 s40, s40, 16")
        b("s_mul_i32 s41, s40, 18")
        b("s_sub_u32 s41, s35, s41")
        b("v_lshrrev_b32 v54, 2, v53")
        b("v_mul_u32_u24 v55, 1152, v54")
        b("v_bfe_u32 v64, v54, 2, 1")
        b("v_lshlrev_b32 v64, 2, v64")
        b("v_lshrrev_b32 v65, 3, v54")
        b("v_lshlrev_b32 v65, 1, v65")
        b("v_add_u32 v64, v64, v65")
        b("v_bfe_u32 v65, v54, 1, 1")
        b("v_add_u32 v64, v64, v65")
        b("v_mul_u32_u24 v64, 18, v64")
        b("v_and_b32 v65, 1, v54")
        b("v_add_u32 v64, v64, v65")
        b("v_add_u32 v64, 16, v64")
        b("v_mul_u32_u24 v64, 1152, v64")
        b("s_cmp_lt_u32 s40, 32")
        b("s_cselect_b64 vcc, -1, 0")
        b("v_cndmask_b32 v55, v64, v55, vcc")
        b("v_and_b32 v65, 3, v53")
        b("v_lshl_add_u32 v55, v65, 4, v55")
        b(f"s_mul_i32 s42, s40, {18*1152}")
        b("s_sub_u32 s43, s40, 32")
        b(f"s_mul_i32 s43, s43, {8*18*1152}")
        b("s_cmp_lt_u32 s40, 32")
        b("s_cselect_b32 s42, s42, s43")
        b("s_lshl_b32 s43, s41, 6")
        b("s_add_u32 s42, s42, s43")
        b("s_cmp_lt_u32 s35, 648")
        b("s_cselect_b32 s42, s42, 0x7f000000")
        b("s_waitcnt lgkmcnt(0)")
        b(f"s_mov_b32 s38, {SZ_WO}"); b("s_mov_b32 s39, 0x20000")
        b("s_lshl_b32 s43, s34, 10")
        b("s_mov_b32 m0, s43")
        b("s_nop 0")
        b("buffer_load_dwordx4 v55, s[36:39], s42 offen lds")
        NPF += 1
    L = 20
    for i in range(9):
        b(f"s_waitcnt vmcnt({8-i+NPF})")
        b(f"v_lshlrev_b32 v{L+2*i}, 16, v{X+i}")
        b(f"v_and_b32 v{L+2*i+1}, 0xffff0000, v{X+i}")
    def reduce32(r, t):
        b("s_nop 1")
        b(f"v_add_f32_dpp v{r}, v{r}, v{r} quad_perm:[1,0,3,2] row_mask:0xf bank_mask:0xf")
        b("s_nop 1")
        b(f"v_add_f32_dpp v{r}, v{r}, v{r} quad_perm:[2,3,0,1] row_mask:0xf bank_mask:0xf")
        b("s_nop 1")
        b(f"v_add_f32_dpp v{r}, v{r}, v{r} row_half_mirror row_mask:0xf bank_mask:0xf")
        b("s_nop 1")
        b(f"v_add_f32_dpp v{r}, v{r}, v{r} row_mirror row_mask:0xf bank_mask:0xf")
        b(f"v_mov_b32 v{t}, v{r}") if False else None
        b("s_nop 0")
        b(f"v_mov_b32 v{t}, v{r}")
        b("s_nop 1")
        b(f"v_permlane16_swap_b32 v{r}, v{t}")
        b("s_nop 0")
        b(f"v_add_f32 v{r}, v{r}, v{t}")
    b(f"v_add_f32 v40, v{L}, v{L+1}")
    b(f"v_add_f32 v41, v{L+2}, v{L+3}")
    for i in range(2, 9):
        b(f"v_add_f32 v40, v40, v{L+2*i}")
        b(f"v_add_f32 v41, v41, v{L+2*i+1}")
    b("v_add_f32 v40, v40, v41")
    reduce32(40, 42)
    b(f"v_mul_f32 v40, {f32hex(1.0/576)}, v40")
    b(f"v_sub_f32 v43, v{L}, v40")
    b(f"v_mul_f32 v44, v43, v43")
    b(f"v_sub_f32 v43, v{L+1}, v40")
    b(f"v_mul_f32 v45, v43, v43")
    for i in range(1, 9):
        b(f"v_sub_f32 v43, v{L+2*i}, v40")
        b(f"v_sub_f32 v46, v{L+2*i+1}, v40")
        b(f"v_fmac_f32 v44, v43, v43")
        b(f"v_fmac_f32 v45, v46, v46")
    b("v_add_f32 v44, v44, v45")
    reduce32(44, 42)
    b(f"v_mul_f32 v44, {f32hex(1.0/576)}, v44")
    b("v_cvt_pk_bf16_f32 v45, v40, v44")
    b("v_lshlrev_b32 v40, 16, v45")
    b("v_and_b32 v44, 0xffff0000, v45")
    b(f"v_add_f32 v44, {f32hex(1e-5)}, v44")
    b("v_cvt_pk_bf16_f32 v44, v44, v44")
    b("v_and_b32 v44, 0xffff0000, v44")
    b("v_sqrt_f32 v44, v44")
    b("s_nop 0")
    b("v_cvt_pk_bf16_f32 v44, v44, v44")
    b("v_and_b32 v44, 0xffff0000, v44")
    b("v_rcp_f32 v44, v44")
    for i in range(9):
        b(f"v_sub_f32 v{L+2*i}, v{L+2*i}, v40")
        b(f"v_sub_f32 v{L+2*i+1}, v{L+2*i+1}, v40")
        b(f"v_cvt_pk_bf16_f32 v{X+i}, v{L+2*i}, v{L+2*i+1}")
    for i in range(9):
        b(f"v_lshlrev_b32 v{L+2*i}, 16, v{X+i}")
        b(f"v_and_b32 v{L+2*i+1}, 0xffff0000, v{X+i}")
        b(f"v_mul_f32 v{L+2*i}, v{L+2*i}, v44")
        b(f"v_mul_f32 v{L+2*i+1}, v{L+2*i+1}, v44")
        b(f"v_cvt_pk_bf16_f32 v{X+i}, v{L+2*i}, v{L+2*i+1}")
        b(f"s_mov_b32 s16, {i*4096}")
        b(f"buffer_store_dword v{X+i}, v4, s[12:15], s16 offen")
    if WOF:
        b("v_lshrrev_b32 v54, 5, v53")
        b("v_lshlrev_b32 v54, 8, v54")
        b("v_bfe_u32 v55, v53, 2, 2")
        b("v_lshl_add_u32 v54, v55, 6, v54")
        b("v_bfe_u32 v55, v53, 4, 1")
        b("v_lshl_add_u32 v54, v55, 5, v54")
        b("v_and_b32 v55, 3, v53")
        b("v_lshl_add_u32 v54, v55, 3, v54")
        b("v_add_u32 v54, s43, v54")
        b("v_bfe_u32 v55, v53, 4, 1")
        b("v_lshlrev_b32 v55, 9, v55")
        b("v_lshrrev_b32 v64, 5, v53")
        b("v_lshl_add_u32 v55, v64, 8, v55")
        b("v_and_b32 v64, 15, v53")
        b("v_lshl_add_u32 v55, v64, 4, v55")
        b("s_mul_i32 s42, s40, 36")
        b("s_lshl_b32 s44, s41, 1")
        b("s_add_u32 s42, s42, s44")
        b("s_lshl_b32 s42, s42, 9")
        b("s_cmp_lt_u32 s35, 648")
        b("s_cselect_b32 s42, s42, 0x7f000000")
        srd(b, 36, 6, SZ_WO, WS_WOF)
        b("s_waitcnt vmcnt(9)")
        b("ds_read_b64_tr_b16 v[56:57], v54")
        b("ds_read_b64_tr_b16 v[58:59], v54 offset:512")
        b("s_waitcnt lgkmcnt(0)")
        b("buffer_store_dwordx4 v[56:59], v55, s[36:39], s42 offen")
    if prof: prof_end(b, 0, 4)
    b.label("L_k0_end")
    b("s_endpgm")
    if not pf: check(b.ins, name)
    return name, kernel_text(name, b.text(), 72, 72, 100)
if __name__ == "__main__":
    print(gen_k0()[1][:300])
```

```python
from common import *
import math
HALF = 73728; SCR = 2*HALF; K1_LDS = SCR + 1024
C1 = -2.0*math.sqrt(2.0/math.pi)*math.log2(math.e); C2 = C1*0.044715
QSCALE = (18.0**-0.5)*math.log2(math.e)
sWS, sWQp, sWGp, sWUp = 4, 6, 8, 10
sXN, sLD, sH, sO, sWP, sWQ = 12, 16, 20, 24, 28, 48
sWD = 12
sWDp = 62
sW, sTB, sN1, sPh, sT, sP, sHoff, sW1024, sLDo, sLDs, sTmp, sTmp2, sScale, sOff, sRB, sCG = range(32, 48)
vL16, vL8, vDQ, vDP, vLD, vC2 = 1, 2, 3, 4, 5, 6
vTR = [7, 8, 9, 10]
vT = 12
ACC = [(16, 32), (48, 64)]
X = 80
SACC = 96
OPT = set()
W = None
PRE = 2

def gelu_epilogue(G, U):
    e = []
    for grp in range(4):
        E = [4*grp+i for i in range(4)]
        e += [f"v_mul_f32 v{vT+i}, v{G+E[i]}, v{G+E[i]}" for i in range(4)]
        e += [f"v_fmaak_f32 v{vT+i}, v{vT+i}, v{vC2}, {f32hex(C1)}" for i in range(4)]
        e += [f"v_mul_f32 v{vT+i}, v{vT+i}, v{G+E[i]}" for i in range(4)]
        e += [f"v_exp_f32 v{vT+i}, v{vT+i}" for i in range(4)]
        e += [f"v_mul_f32 v{G+E[i]}, v{G+E[i]}, v{U+E[i]}" for i in range(4)]
        e += [f"v_add_f32 v{vT+i}, 1.0, v{vT+i}" for i in range(4)]
        e += [f"v_rcp_f32 v{vT+i}, v{vT+i}" for i in range(4)]
        e += [f"v_mul_f32 v{G+E[i]}, v{G+E[i]}, v{vT+i}" for i in range(4)]
        e += [f"v_cvt_pk_bf16_f32 v{U+2*grp}, v{G+4*grp}, v{G+4*grp+1}",
              f"v_cvt_pk_bf16_f32 v{U+2*grp+1}, v{G+4*grp+2}, v{G+4*grp+3}"]
        if grp % 2 == 1:
            s = grp//2
            e += [f"buffer_store_dwordx4 v[{U+4*s}:{U+4*s+3}], v{vL16}, s[{sH}:{sH+3}], s{sHoff} offen offset:{s*1024}" + ("" if "plainst" in OPT else " sc1")]
    e.append(f"s_add_u32 s{sHoff}, s{sHoff}, 2048")
    return e

def lds_loc(half, off):
    if off < 65536 - 512: return vTR[2*half], off
    return vTR[2*half+1], off - 65536
def frag_reads(half, off, r):
    base, o = lds_loc(half, off)
    return [f"ds_read_b64_tr_b16 v[{r}:{r+1}], v{base} offset:{o}",
            f"ds_read_b64_tr_b16 v[{r+2}:{r+3}], v{base} offset:{o+256}"]
def poff(ks, mat): return (ks//4)*8192 + ((ks % 4)*2 + mat)*1024
def preg(ks, mat): return X + (ks % 3)*8 + mat*4
def pair_reads(half, ks, mat): return frag_reads(half, poff(ks, mat), preg(ks, mat))
def sreg(ks): return X + (ks % 4)*4
def single_reads(half, ks): return frag_reads(half, ks*1024, sreg(ks))
def ffreg(ks, m): return X + ((ks*4 + m) % 8)*4
def ff_reads(ks, m): return frag_reads(m//2, poff(ks, m % 2), ffreg(ks, m))

def loader(i, half):
    return [f"s_add_u32 m0, s{sW1024}, {half*HALF + i*8192}",
            f"s_nop 0",
            f"buffer_load_dwordx4 v{vLD}, s[{sLD}:{sLD+3}], s{sLDo} offen lds ;#ld",
            f"s_add_u32 s{sLDo}, s{sLDo}, s{sLDs}"]
def next_reads(half, kind):
    if kind == "pair": return pair_reads(half, 0, 0) + pair_reads(half, 0, 1), pair_reads(half, 1, 0) + pair_reads(half, 1, 1)
    return single_reads(half, 0) + single_reads(half, 1), single_reads(half, 2)
def place(main, extra):
    out = []; a = 0
    for s in main:
        out.append(s)
        if s.startswith("v_mfma"):
            out += extra.get(a, []); a += 1
    return out

def pair_body(cur, half, nxt_kind, pf=()):
    G, U = ACC[cur]; Gp, Up = ACC[1-cur]
    main = []
    for ks in range(36):
        if ks == 35: main += [W.wv("ld"), "s_waitcnt lgkmcnt(0)", "s_barrier"]
        for mat, A in ((0, G), (1, U)):
            r = preg(ks, mat)
            if ks != 35: main.append(W.wl(f"v[{r}:{r+3}]"))
            c = "0" if ks == 0 else f"v[{A}:{A+15}]"
            main.append(f"v_mfma_f32_32x32x16_bf16 v[{A}:{A+15}], v[{r}:{r+3}], a[{4*ks}:{4*ks+3}], {c}")
            if ks + 2 < 36: main += pair_reads(half, ks+2, mat)
            if ks == 35: main += next_reads(1-half, nxt_kind)[mat]
    extra = {}
    for i in range(9): extra.setdefault(2*i + 1, []).extend(loader(i, 1-half))
    for q, op in enumerate(pf): extra.setdefault(21 + 4*q, []).extend(op)
    main = place(main, extra)
    return interleave(main, gelu_epilogue(Gp, Up), start=3, end=66)

def stream_ops(j):
    ops = []
    for h in range(2):
        ops.append([f"s_add_u32 m0, s{sW1024}, {h*HALF + j*8192}",
                    f"s_add_u32 s{sTmp}, s{sP}, {4*j*147456 + 64*h}",
                    f"buffer_load_dwordx4 v{vDP}, s[{sWP}:{sWP+3}], s{sTmp} offen lds ;#w{j}"])
    for q in range(4):
        ks = 4*j + q
        o = []
        if q == 0 and j: o.append(f"s_add_u32 s{sOff}, s{sOff}, 4096")
        o.append(f"buffer_load_dwordx4 a[{4*ks}:{4*ks+3}], v{vL16}, s[{sXN}:{sXN+3}], s{sOff} offen offset:{q*1024} ;#x{ks}")
        ops.append(o)
    return ops

def t0_loader(i):
    return [f"s_add_u32 m0, s{sW1024}, {i*8192}",
            f"s_add_u32 s{sTmp}, s{sLDo}, {i*8*55296}",
            f"buffer_load_dwordx4 v{vDQ}, s[{sWQ}:{sWQ+3}], s{sTmp} offen lds ;#ld"]

def l2_prefetch():
    ops = []
    for q in (2, 3, 4):
        o = [f"s_mul_i32 s{sTmp}, s{sRB}, {4*147456}",
             f"s_add_u32 s{sTmp}, s{sTmp}, s{sP}",
             f"s_add_u32 s{sTmp}, s{sTmp}, {64*q}"]
        if q == 4:
            o += [f"s_cmp_lt_u32 s{sCG}, 16", f"s_cselect_b32 s{sTmp}, s{sTmp}, 0x7f000000"]
        o += [f"s_mov_b32 m0, {SCR}", "s_nop 0",
              f"buffer_load_dwordx4 v{vDP}, s[{sWP}:{sWP+3}], s{sTmp} offen lds ;#pf"]
        ops.append(o)
    for q in (1, 2):
        o = [f"s_mul_i32 s{sTmp}, s{sRB}, {8*55296}",
             f"s_add_u32 s{sTmp}, s{sTmp}, s{sLDo}",
             f"s_add_u32 s{sTmp}, s{sTmp}, {16*64*q}",
             f"s_sub_u32 s{sTmp2}, s{sCG}, 16",
             f"s_cmp_lt_u32 s{sTmp2}, {16 if q == 1 else 6}",
             f"s_cselect_b32 s{sTmp}, s{sTmp}, 0x7f000000",
             f"s_mov_b32 m0, {SCR}", "s_nop 0",
             f"buffer_load_dwordx4 v{vDQ}, s[{sWQ}:{sWQ+3}], s{sTmp} offen lds ;#pf"]
        ops.append(o)
    return ops

def wd_prefetch():
    ops = []
    for n in range(3):
        ops.append([f"s_lshr_b32 s{sTmp}, s2, 3",
                    f"s_lshl_b32 s{sTmp}, s{sTmp}, 3",
                    f"s_add_u32 s{sTmp}, s{sTmp}, s{sW}",
                    f"s_add_u32 s{sTmp}, s{sTmp}, {256*n}",
                    f"s_lshl_b32 s{sTmp}, s{sTmp}, 10",
                    f"s_cmp_lt_u32 s{sTmp}, {576*1152}",
                    f"s_cselect_b32 s{sTmp}, s{sTmp}, 0x7f000000",
                    f"s_and_b32 s{sTmp2}, s2, 7",
                    f"s_mul_i32 s{sTmp2}, s{sTmp2}, {576*1152}",
                    f"s_add_u32 s{sTmp}, s{sTmp}, s{sTmp2}",
                    f"s_mov_b32 m0, {SCR}", "s_nop 0",
                    f"buffer_load_dwordx4 v{vL16}, s[{sWD}:{sWD+3}], s{sTmp} offen lds ;#pf"])
    return ops

def ff2_body():
    main = []
    accs = [ACC[0][0], ACC[0][1], ACC[1][0], ACC[1][1]]
    for ks in range(36):
        if ks % 4 == 0 and 0 < ks < 32:
            main.append(W.wv(f"w{ks//4+1}")); main.append("s_barrier")
            if "fstamp" in OPT: main += [f"s_memtime s[{64+2*(ks//4)}:{65+2*(ks//4)}]", "s_waitcnt lgkmcnt(0)"]
        if ks == 35: main += [W.wv("ld"), "s_waitcnt lgkmcnt(0)", "s_barrier"]
        for m in range(4):
            r = ffreg(ks, m); A = accs[m]
            if m == 0: main.append(W.wv(f"x{ks}"))
            if ks != 35: main.append(W.wl(f"v[{r}:{r+3}]"))
            c = "0" if ks == 0 else f"v[{A}:{A+15}]"
            main.append(f"v_mfma_f32_32x32x16_bf16 v[{A}:{A+15}], v[{r}:{r+3}], a[{4*ks}:{4*ks+3}], {c}")
            if ks + 1 < 36: main += ff_reads(ks+1, m)
            if ks == 35 and m < 2: main += next_reads(0, "single")[m]
    extra = {}
    for j in range(9 - PRE):
        for q, op in enumerate(stream_ops(j + PRE)): extra.setdefault(16*j + 2*q + 1, []).extend(op)
    for i in range(5): extra.setdefault(16*(i+1) + 14, []).extend(t0_loader(i))
    if "nopf" not in OPT:
        for q, op in enumerate(l2_prefetch()): extra.setdefault(16*7 + 3 + 4*q, []).extend(op)
    return place(main, extra)

def single_epilogue(isV):
    A = SACC
    b = Blk()
    if isV:
        b(f"s_sub_u32 s{sTmp}, s{sT}, 36")
        b(f"s_lshl_b32 s{sTmp}, s{sTmp}, 11")
        b(f"s_add_u32 s{sTmp}, s{sTmp}, {2*SZ_T}")
    else:
        b(f"s_cmp_ge_u32 s{sT}, 18")
        b(f"s_cselect_b32 s{sTmp}, {SZ_T - 18*2048}, 0")
        b(f"s_cselect_b32 s{sScale}, 1.0, {f32hex(QSCALE)}")
        b(f"s_lshl_b32 s{sTmp2}, s{sT}, 11")
        b(f"s_add_u32 s{sTmp}, s{sTmp}, s{sTmp2}")
    b(f"s_mul_i32 s{sTmp2}, s{sTB}, 36864")
    b(f"s_add_u32 s{sTmp}, s{sTmp}, s{sTmp2}")
    b("s_nop 3")
    if not isV:
        for i in range(16): b(f"v_mul_f32 v{A+i}, s{sScale}, v{A+i}")
    for i in range(8): b(f"v_cvt_pk_bf16_f32 v{A+i}, v{A+2*i}, v{A+2*i+1}")
    if isV:
        b("s_nop 1")
        for s in range(2):
            b(f"v_permlane32_swap_b32 v{A+4*s}, v{A+4*s+2}")
            b(f"v_permlane32_swap_b32 v{A+4*s+1}, v{A+4*s+3}")
        b("s_nop 0")
        for s in range(2):
            b(f"buffer_store_dwordx4 v[{A+4*s}:{A+4*s+3}], v{vL16}, s[{sO}:{sO+3}], s{sTmp} offen offset:{s*1024}" + ("" if "plainqkv" in OPT else " sc1"))
    else:
        for g in range(4):
            b(f"buffer_store_dwordx2 v[{A+2*g}:{A+2*g+1}], v{vL8}, s[{sO}:{sO+3}], s{sTmp} offen offset:{g*512}" + ("" if "plainqkv" in OPT else " sc1"))
    b(f"s_add_u32 s{sT}, s{sT}, 16")
    b("s_nop 0")
    return b.ins

def single_body(isV, half, gelu_set, nxt_kind, nld):
    A = SACC
    main = []
    for ks in range(36):
        r = sreg(ks)
        if ks == 35: main += [W.wv("ld"), "s_waitcnt lgkmcnt(0)", "s_barrier"]
        else: main.append(W.wl(f"v[{r}:{r+3}]"))
        c = "0" if ks == 0 else f"v[{A}:{A+15}]"
        if isV: main.append(f"v_mfma_f32_32x32x16_bf16 v[{A}:{A+15}], a[{4*ks}:{4*ks+3}], v[{r}:{r+3}], {c}")
        else:   main.append(f"v_mfma_f32_32x32x16_bf16 v[{A}:{A+15}], v[{r}:{r+3}], a[{4*ks}:{4*ks+3}], {c}")
        if ks + 3 < 36: main += single_reads(half, ks+3)
        if ks == 35:
            a, bb = next_reads(1-half, nxt_kind); main += a + bb
    extra = {}
    for i in range(nld): extra.setdefault(2*i + 1, []).extend(loader(i, 1-half))
    main = place(main, extra)
    if gelu_set is not None: main = interleave(main, gelu_epilogue(*ACC[gelu_set]), start=3, end=34)
    return main + single_epilogue(isV)

def ld_pair(q):
    return [f"s_mov_b32 s{sLD}, s{sWP}", f"s_mov_b32 s{sLD+1}, s{sWP+1}", f"s_mov_b32 s{sLD+2}, {SZ_WG}",
            f"s_add_u32 s{sLDo}, s{sP}, {64*q}", f"s_mov_b32 s{sLDs}, {4*147456}", f"v_mov_b32 v{vLD}, v{vDP}"]
def ld_single(add, cond=None):
    o = [f"s_mov_b32 s{sLD}, s{sWQ}", f"s_mov_b32 s{sLD+1}, s{sWQ+1}"]
    if cond is None: o.append(f"s_mov_b32 s{sLD+2}, {SZ_WQKV}")
    else: o += cond + [f"s_cselect_b32 s{sLD+2}, {SZ_WQKV}, 0"]
    o += [f"s_add_u32 s{sLDo}, s{sT}, {add}", f"s_lshl_b32 s{sLDo}, s{sLDo}, 6",
          f"s_mul_i32 s{sTmp}, s{sW}, 55296", f"s_add_u32 s{sLDo}, s{sLDo}, s{sTmp}",
          f"s_mov_b32 s{sLDs}, {8*55296}", f"v_mov_b32 v{vLD}, v{vDQ}"]
    return o
def ld_none(): return [f"s_mov_b32 s{sLD+2}, 0"]

def stamp(b, i, on):
    if on:
        b(f"s_memtime s[{52+2*i}:{53+2*i}]")
        b("s_waitcnt lgkmcnt(0)")

def gen_k1(xmap="R8", prof=False, opts=()):
    global W, PRE
    OPT.clear(); OPT.update(opts)
    PRE = 2
    for o in opts:
        if o.startswith("pre"): PRE = int(o[3:])
    W = Waits()
    name = "gemm1_kernel"
    b = Blk(name)
    stamp(b, 0, prof)
    b("s_cmp_ge_u32 s2, 256")
    b("s_cbranch_scc1 L_k1_end")
    if "rt" in OPT: prof_begin(b)
    b(f"s_load_dwordx2 s[{sWS}:{sWS+1}], s[0:1], {KA_WS}")
    b(f"s_load_dwordx2 s[{sWQp}:{sWQp+1}], s[0:1], {KA_WQKV}")
    b(f"s_load_dwordx2 s[{sWGp}:{sWGp+1}], s[0:1], {KA_WG}")
    b(f"s_load_dwordx2 s[{sWUp}:{sWUp+1}], s[0:1], {KA_WU}")
    b(f"s_load_dwordx2 s[{sWDp}:{sWDp+1}], s[0:1], {KA_WD}")
    b(f"v_readfirstlane_b32 s{sW}, v0")
    b("v_and_b32 v0, 63, v0")
    b(f"s_lshr_b32 s{sW}, s{sW}, 6")
    b(f"v_lshlrev_b32 v{vL16}, 4, v0")
    b(f"v_lshlrev_b32 v{vL8}, 3, v0")
    b("v_lshrrev_b32 v12, 2, v0")
    b("v_and_b32 v13, 3, v0")
    b("v_lshlrev_b32 v13, 4, v13")
    b(f"v_mul_u32_u24 v{vDQ}, 3456, v12")
    b(f"v_add_u32 v{vDQ}, v{vDQ}, v13")
    b(f"v_mul_u32_u24 v{vDP}, 9216, v12")
    b(f"v_add_u32 v{vDP}, v{vDP}, v13")
    b(f"v_mov_b32 v{vLD}, v{vDP}")
    b("v_lshrrev_b32 v12, 5, v0")
    b("v_lshlrev_b32 v12, 9, v12")
    b("v_bfe_u32 v13, v0, 2, 2")
    b("v_lshl_add_u32 v12, v13, 6, v12")
    b("v_bfe_u32 v13, v0, 4, 1")
    b("v_lshl_add_u32 v12, v13, 5, v12")
    b("v_and_b32 v13, 3, v0")
    b(f"v_lshl_add_u32 v{vTR[0]}, v13, 3, v12")
    b(f"v_add_u32 v{vTR[1]}, 0x10000, v{vTR[0]}")
    b(f"v_add_u32 v{vTR[2]}, {HALF}, v{vTR[0]}")
    b(f"v_add_u32 v{vTR[3]}, {HALF + 65536}, v{vTR[0]}")
    b(f"v_mov_b32 v{vC2}, {f32hex(C2)}")
    b(f"s_and_b32 s{sCG}, s2, 7")
    b(f"s_lshr_b32 s{sTmp}, s2, 3")
    b(f"s_and_b32 s{sTmp}, s{sTmp}, 3")
    b(f"s_lshl_b32 s{sTmp}, s{sTmp}, 3")
    b(f"s_add_u32 s{sCG}, s{sCG}, s{sTmp}")
    b(f"s_lshr_b32 s{sRB}, s2, 5")
    b(f"s_lshl_b32 s{sTB}, s{sRB}, 3")
    b(f"s_add_u32 s{sTB}, s{sTB}, s{sW}")
    b(f"s_mul_i32 s{sP}, s{sCG}, 5")
    b(f"s_lshl_b32 s{sTmp}, s{sCG}, 2")
    b(f"s_add_u32 s{sTmp}, s{sTmp}, 16")
    b(f"s_cmp_lt_u32 s{sCG}, 16")
    b(f"s_cselect_b32 s{sP}, s{sP}, s{sTmp}")
    b(f"s_mov_b32 s{sT}, s{sCG}")
    b(f"s_mov_b32 s{sPh}, 0")
    b(f"s_mul_i32 s{sHoff}, s{sTB}, 288")
    b(f"s_lshl_b32 s{sTmp}, s{sP}, 1")
    b(f"s_add_u32 s{sHoff}, s{sHoff}, s{sTmp}")
    b(f"s_lshl_b32 s{sHoff}, s{sHoff}, 10")
    b(f"s_lshl_b32 s{sP}, s{sP}, 6")
    b(f"s_lshr_b32 s{sTmp}, s{sW}, 1")
    b(f"s_mul_i32 s{sTmp}, s{sTmp}, 147456")
    b(f"s_add_u32 s{sP}, s{sP}, s{sTmp}")
    b(f"s_lshl_b32 s{sW1024}, s{sW}, 10")
    b(f"s_lshl_b32 s{sLDo}, s{sT}, 6")
    b(f"s_mul_i32 s{sTmp}, s{sW}, 55296")
    b(f"s_add_u32 s{sLDo}, s{sLDo}, s{sTmp}")
    b("s_waitcnt lgkmcnt(0)")
    srd(b, sXN, sWS, SZ_T, WS_XN)
    b(f"s_and_b32 s{sTmp}, s{sW}, 1")
    b(f"s_cmp_eq_u32 s{sTmp}, 0")
    b(f"s_cselect_b32 s{sWP}, s{sWGp}, s{sWUp}")
    b(f"s_cselect_b32 s{sWP+1}, s{sWGp+1}, s{sWUp+1}")
    b(f"s_mov_b32 s{sWP+2}, {SZ_WG}")
    b(f"s_mov_b32 s{sWP+3}, 0x20000")
    srd(b, sWQ, sWQp, SZ_WQKV)
    srd(b, sLD, sWQp, SZ_WQKV)
    srd(b, sH, sWS, SZ_H, WS_H)
    srd(b, sO, sWS, 3*SZ_T, WS_Q)
    b(f"s_mul_i32 s{sOff}, s{sTB}, 36864")
    so = [stream_ops(j) for j in range(PRE)]
    for j in range(PRE):
        b.ext(so[j][0]); b.ext(so[j][1])
    for j in range(PRE):
        for op in so[j][2:]: b.ext(op)
    if "noself" not in OPT:
        b(f"s_add_u32 s{sTmp2}, s{sRB}, 1")
        b(f"s_mul_i32 s{sTmp2}, s{sTmp2}, {4*147456}")
        b(f"s_add_u32 s{sTmp2}, s{sTmp2}, s{sP}")
        for h in range(2):
            b(f"s_mov_b32 m0, {SCR}")
            b(f"s_add_u32 s{sTmp}, s{sTmp2}, {64*h}")
            b(f"buffer_load_dwordx4 v{vDP}, s[{sWP}:{sWP+3}], s{sTmp} offen lds ;#pf")
        b(f"s_mul_i32 s{sTmp}, s{sRB}, {8*55296}")
        b(f"s_add_u32 s{sTmp}, s{sTmp}, s{sLDo}")
        b(f"buffer_load_dwordx4 v{vDQ}, s[{sWQ}:{sWQ+3}], s{sTmp} offen lds ;#pf")
    b(W.wv("w0")); b("s_barrier")
    for m in range(4): b.ext(ff_reads(0, m))
    b(W.wv("w1")); b("s_barrier")
    stamp(b, 1, prof)
    pro = list(b.ins)
    FF = ff2_body()
    SG0 = ld_pair(2) + single_body(False, 0, 0, "pair", 9)
    P0a = ld_pair(3)
    P0 = pair_body(0, 1, "pair")
    wdsrd = Blk(); srd(wdsrd, sWD, sWDp, SZ_WG)
    wpf = wd_prefetch() if "nowd" not in OPT else ()
    P1p = wdsrd.ins + ld_pair(4) + pair_body(1, 0, "pair", wpf)
    P1s = wdsrd.ins + ld_single(0) + pair_body(1, 0, "single", wpf)
    ex3 = [f"s_sub_u32 s{sTmp2}, s{sCG}, 16", f"s_cmp_lt_u32 s{sTmp2}, 6"]
    SG1 = {v: ld_single(16, ex3) + single_body(v, 1, 1, "single", 5) for v in (False, True)}
    SV = ld_none() + single_body(True, 0, None, "single", 0)
    drain = ["s_waitcnt lgkmcnt(0)", "s_nop 7", "s_nop 3"] + gelu_epilogue(*ACC[0])
    trA = pro + FF + SG0 + P0a + P0 + P1p + ld_none() + P0 + drain
    trB = pro + FF + SG0 + P0a + P0 + P1s + SG1[True] + SV
    trB2 = pro + FF + SG0 + P0a + P0 + P1s + SG1[False]
    for tr in (trA, trB, trB2): W.simulate(tr)
    R = W.resolve
    b.ins = R(b.ins)
    b.ext(R(FF))
    stamp(b, 2, prof)
    b.ext(R(SG0)); b.ext(P0a)
    b.label("L_k1_p0")
    b.ext(R(P0))
    b(f"s_cmp_eq_u32 s{sPh}, 1")
    b("s_cbranch_scc1 L_k1_drain")
    b(f"s_cmp_lt_u32 s{sCG}, 16")
    b("s_cbranch_scc0 L_k1_B")
    b.ext(R(P1p)); b.ext(ld_none())
    b(f"s_mov_b32 s{sPh}, 1")
    b("s_branch L_k1_p0")
    b.label("L_k1_B")
    b.ext(R(P1s))
    stamp(b, 3, prof)
    b(f"s_cmp_ge_u32 s{sT}, 36")
    b("s_cbranch_scc1 L_k1_sg1v")
    b.ext(R(SG1[False])); b("s_branch L_k1_sg1d")
    b.label("L_k1_sg1v")
    b.ext(R(SG1[True]))
    b.label("L_k1_sg1d")
    b(f"s_sub_u32 s{sTmp2}, s{sCG}, 16")
    b(f"s_cmp_lt_u32 s{sTmp2}, 6")
    b("s_cbranch_scc0 L_k1_fin")
    b.ext(R(SV))
    b("s_branch L_k1_fin")
    b.label("L_k1_drain")
    stamp(b, 3, prof)
    b.ext(drain)
    b.label("L_k1_fin")
    b("s_waitcnt lgkmcnt(0)")
    if prof:
        stamp(b, 4, True)
        b("s_waitcnt vmcnt(0)")
        stamp(b, 5, True)
        b(f"s_lshl_b32 s{sTmp}, s2, 3")
        b(f"s_add_u32 s{sTmp}, s{sTmp}, s{sW}")
        b(f"s_lshl_b32 s{sTmp}, s{sTmp}, 5")
        srd(b, sXN, sWS, 1<<20, 40<<20)
        for i in range(6): b(f"v_mov_b32 v{16+i}, s{52+2*i}")
        if "fstamp" in OPT:
            for i in range(8): b(f"v_mov_b32 v{24+i}, s{64+2*i}")
            b("v_mov_b32 v12, 0")
            b(f"s_add_u32 s{sTmp2}, s{sTmp}, {1<<17}")
            b(f"buffer_store_dwordx4 v[24:27], v12, s[{sXN}:{sXN+3}], s{sTmp2} offen")
            b(f"buffer_store_dwordx4 v[28:31], v12, s[{sXN}:{sXN+3}], s{sTmp2} offen offset:16")
        b("v_mov_b32 v12, 0")
        b(f"buffer_store_dwordx4 v[16:19], v12, s[{sXN}:{sXN+3}], s{sTmp} offen")
        b(f"buffer_store_dwordx4 v[20:23], v12, s[{sXN}:{sXN+3}], s{sTmp} offen offset:16")
    if "rt" in OPT: prof_end(b, 1, 8)
    b.label("L_k1_end")
    b("s_endpgm")
    bad = 0
    for nm, tr in (("A", trA), ("B", trB), ("B2", trB2)): bad += len(check(R(tr), name+"_"+nm))
    assert bad == 0 or opts
    return name, kernel_text(name, b.text(), 256, 112, 100)
if __name__ == "__main__":
    n, t = gen_k1()
    open("k1.s", "w").write('.amdgcn_target "amdgcn-amd-amdhsa--gfx950"\n' + t)
```

```python
from common import *
import k2a, k2b as _k2b, k2c, sys
k2b = k2c if 'd16' in sys.argv else _k2b
MIX_LDS = max(k2a.A_LDS, k2b.B_LDS)
def gen_mix(prof=False, order="ad", prio=None, aopts=(), dopts=()):
    k2a.OPT.clear(); k2a.OPT.update(aopts)
    name = "mix_kernel"
    b = Blk()
    b("s_cmp_ge_u32 s2, 512")
    b("s_cbranch_scc1 L_mix_end")
    if prof: prof_begin(b)
    b("s_cmp_ge_u32 s2, 256")
    b("s_cbranch_scc1 L_mix_second")
    dn = lambda: k2b.gen_down_role(dopts)
    first, second = (k2a.gen_attn_role, dn) if order == "ad" else (dn, k2a.gen_attn_role)
    if prio == "first": b("s_setprio 1")
    b.ext(first())
    b("s_branch L_mix_done")
    b.label("L_mix_second")
    if prio == "second": b("s_setprio 1")
    b.ext(second())
    b.label("L_mix_done")
    if prof: prof_end(b, 2, 4)
    b.label("L_mix_end")
    b("s_endpgm")
    return name, kernel_text(name, b.text(), 256, 256, 100)
```

```python
from common import *
STG = 14336; NSLOT = 4; A_LDS = STG*NSLOT + 64
FLAG = STG*NSLOT
vL8, vL16, vKrd, vVrd, vKd0, vKd1, vVd, vIdx, vT0, vT1, vT2, vT3 = 1,2,3,4,5,6,7,8,9,10,11,12
vQoff = 13
SA, SB, OA, OB = 16, 32, 48, 64
QA0, QA1, QB0, QB1 = 80, 84, 88, 92
KB = [96, 104]
VB = [112, 120]
CA, CB = 128, 144
vMA, vMB = 160, 161
sWS = 4
sK, sV, sQ, sOo = 8, 12, 16, 20
sW, sHD, sQB, sVd, sSp, sCnt, sKoff, sVoff, sTmp, sTmp2, sMode, sTB, sC0, sMask = range(24, 38)
sExec = 40

OPT = set()
def rd_K(buf, b, slot):
    o = slot*STG
    assert o % 512 == 0
    u = o//512 + 3*b
    return [f"ds_read2st64_b64 v[{KB[buf]}:{KB[buf]+3}], v{vL8} offset0:{u} offset1:{u+1}",
            f"ds_read_b64 v[{KB[buf]+4}:{KB[buf]+5}], v{vL8} offset:{(u+2)*512}"]
def rd_V(buf, b, slot):
    o = slot*STG + 6144 + b*2048
    return [f"ds_read_b128 v[{VB[buf]}:{VB[buf]+3}], v{vL16} offset:{o}",
            f"ds_read_b128 v[{VB[buf]+4}:{VB[buf]+7}], v{vL16} offset:{o+1024}"]
def qk(S, Q0, Q1, kb, C):
    c = "0" if C is None else f"v[{C}:{C+15}]"
    return [f"v_mfma_f32_32x32x16_bf16 v[{S}:{S+15}], v[{kb}:{kb+3}], v[{Q0}:{Q0+3}], {c}",
            f"v_mfma_f32_32x32x16_bf16 v[{S}:{S+15}], v[{kb+4}:{kb+7}], v[{Q1}:{Q1+3}], v[{S}:{S+15}]" if "k8" not in OPT else
            f"v_mfma_f32_32x32x8bf16_1k v[{S}:{S+15}], v[{kb+4}:{kb+5}], v[{Q1}:{Q1+1}], v[{S}:{S+15}]"]
def pv(O, S, vb):
    return [f"v_smfmac_f32_32x32x32_bf16 v[{O}:{O+15}], v[{vb}:{vb+3}], v[{S}:{S+7}], v{vIdx}",
            f"v_smfmac_f32_32x32x32_bf16 v[{O}:{O+15}], v[{vb+4}:{vb+7}], v[{S+8}:{S+15}], v{vIdx}"]
def phase(SX, OY, SY, QY0, QY1, vb, kb, CY, pre=(), w_v=None, w_k=None):
    e = [f"v_exp_f32 v{SX+i}, v{SX+i}" for i in range(16)]
    p = pv(OY, SY, vb); q = qk(SY, QY0, QY1, kb, CY)
    out = []
    if w_v: out.append(w_v[0])
    out += [p[0]] + list(pre) + e[0:3]
    if w_v: out.append(w_v[1])
    out += [p[1]] + e[3:6]
    if w_k: out.append(w_k[0])
    out += [q[0]] + e[6:9]
    if w_k: out.append(w_k[1])
    out += [q[1]] + e[9:16]
    return out

def dma_stage(slot):
    b = Blk()
    b(f"s_add_u32 m0, s{sTmp2}, {slot*STG}")
    b(f"s_add_u32 s{sVoff}, s{sKoff}, s{sVd}")
    b(f"buffer_load_dwordx4 v{vKd0}, s[{sK}:{sK+3}], s{sKoff} offen lds ;#kv")
    b(f"s_add_u32 m0, s{sMask}, {slot*STG}")
    b(f"s_mov_b64 s[{sExec+2}:{sExec+3}], s[{sExec}:{sExec+1}]") if False else None
    b("s_nop 0")
    b(f"buffer_load_dwordx4 v{vKd1}, s[{sK}:{sK+3}], s{sKoff} offen lds ;#kv")
    b(f"s_add_u32 m0, s{sC0}, {slot*STG}")
    b(f"s_mov_b64 exec, s[{sExec}:{sExec+1}]")
    b(f"buffer_load_dwordx4 v{vVd}, s[{sV}:{sV+3}], s{sVoff} offen lds ;#kv")
    b(f"buffer_load_dwordx4 v{vVd}, s[{sV}:{sV+3}], s{sVoff} offen offset:1024 lds ;#kvl")
    b("s_mov_b64 exec, -1")
    b(f"s_add_u32 s{sKoff}, s{sKoff}, {4*36864}")
    return b.ins

LOOK = 3
def stage_body(W, safe, slot):
    CAx, CBx = (CA, CB) if safe else (None, None)
    o = [W.wv("kvl%d" % ((slot+1) % NSLOT)), "s_barrier"]
    dm = [x.replace(";#kvl", ";#kvl%d" % ((slot+LOOK) % NSLOT)) for x in dma_stage((slot+LOOK) % NSLOT)]
    i1 = next(i for i, x in enumerate(dm) if x.startswith("buffer_load")) + 1
    i2 = next(i for i, x in enumerate(dm) if x.startswith("buffer_load") and i >= i1) + 1
    parts = [dm[:i1], dm[i1:i2], dm[i2:], []] if "burst" not in OPT else [dm, [], [], []]
    for b in range(4):
        kb, kn = KB[b % 2], KB[(b+1) % 2]
        vb, vp = VB[b % 2], VB[(b+1) % 2]
        pre = rd_V(b % 2, b, slot)
        pre += rd_K((b+1) % 2, b+1, slot) if b < 3 else rd_K(0, 0, (slot+1) % NSLOT)
        ph1 = phase(SA, OB, SB, QB0, QB1, vp, kb, CBx, pre=pre)
        ph1 = ph1[:len(pre)+5] + parts[b] + ph1[len(pre)+5:]
        o += ph1
        wall = W.wl(f"v[{vb}:{vb+7}]", f"v[{kn}:{kn+5}]")
        ph2 = phase(SB, OA, SA, QA0, QA1, vb, kn, CAx)
        o += [wall] + ph2
    if "nods" in OPT: o = [x for x in o if not x.startswith("ds_read") and not x.startswith("@WL")]
    if "nodma" in OPT: o = [x for x in o if not x.startswith("buffer_load") and x != "s_barrier" and not x.startswith("@WV")]
    if "nobar" in OPT: o = [x for x in o if x != "s_barrier"]
    if "noload" in OPT: o = [x for x in o if not x.startswith("buffer_load")]
    if "noexp" in OPT: o = [x for x in o if not x.startswith("v_exp")]
    return o

def max_body(W, slot):
    o = ["s_waitcnt vmcnt(0)", "s_barrier"] + dma_stage((slot+LOOK) % NSLOT)
    for b in range(4):
        o += rd_K(0, b, slot) + ["s_waitcnt lgkmcnt(0)"]
        o += qk(SA, QA0, QA1, KB[0], None) + qk(SB, QB0, QB1, KB[0], None)
        o += ["s_nop 7", "s_nop 3"]
        for S, M in ((SA, vMA), (SB, vMB)):
            for i in range(8): o.append(f"v_max3_f32 v{M}, v{S+2*i}, v{S+2*i+1}, v{M}")
    return o

def stream_init():
    b = Blk()
    b(f"s_mul_i32 s{sKoff}, s{sHD}, 9")
    b(f"s_lshr_b32 s{sKoff}, s{sKoff}, 2")
    b(f"s_lshl_b32 s{sKoff}, s{sKoff}, 9")
    b(f"s_sub_u32 s{sVd}, 0, s{sKoff}")
    for st in range(LOOK): b.ext([x.replace(";#kvl", ";#kvl%d" % st) for x in dma_stage(st)])
    b(f"s_mov_b32 s{sCnt}, 4")
    return b.ins

def main_init(W, safe):
    b = Blk()
    for i in range(16): b(f"v_mov_b32 v{OA+i}, 0"); b(f"v_mov_b32 v{OB+i}, 0"); b(f"v_mov_b32 v{SB+i}, 0")
    for i in range(8): b(f"v_mov_b32 v{VB[1]+i}, 0")
    b(W.wv("kvl0"))
    b("s_barrier")
    b.ext(rd_K(0, 0, 0))
    b("s_waitcnt lgkmcnt(0)")
    b.ext(qk(SA, QA0, QA1, KB[0], CA if safe else None))
    b("s_nop 7"); b("s_nop 3")
    return b.ins

def gen_attn_role(prof=False):
    W = Waits()
    b = Blk()
    b(f"s_load_dwordx2 s[{sWS}:{sWS+1}], s[0:1], {KA_WS}")
    b(f"v_readfirstlane_b32 s{sW}, v0")
    b("v_and_b32 v0, 63, v0")
    b(f"s_lshr_b32 s{sW}, s{sW}, 6")
    b(f"s_and_b32 s{sHD}, s2, 7")
    b(f"s_lshr_b32 s{sTmp}, s2, 3")
    b(f"s_and_b32 s{sTmp}, s{sTmp}, 3")
    b(f"s_lshl_b32 s{sTmp}, s{sTmp}, 3")
    b(f"s_add_u32 s{sHD}, s{sHD}, s{sTmp}")
    b(f"s_lshr_b32 s{sQB}, s2, 5")
    b(f"s_and_b32 s{sQB}, s{sQB}, 7")
    b(f"s_lshl_b32 s{sTB}, s{sQB}, 3")
    b(f"s_lshl_b32 s{sTmp}, s{sW}, 1")
    b(f"s_add_u32 s{sTB}, s{sTB}, s{sTmp}")
    b(f"v_lshlrev_b32 v{vL8}, 3, v0")
    b(f"v_lshlrev_b32 v{vL16}, 4, v0")
    b(f"v_mov_b32 v{vIdx}, 0xdddddddd")
    def kpiece(dst, sj):
        b(f"s_lshl_b32 s{sTmp}, s{sj}, 10")
        b(f"v_add_u32 v{vT0}, s{sTmp}, v{vL16}")
        b(f"v_mul_u32_u24 v{vT1}, 43691, v{vT0}")
        b(f"v_lshrrev_b32 v{vT1}, 26, v{vT1}")
        b(f"v_mul_u32_u24 v{vT1}, {36864-1536}, v{vT1}")
        b(f"v_add_u32 v{dst}, v{vT0}, v{vT1}")
    kpiece(vKd0, sW)
    b(f"s_add_u32 s{sTmp2}, s{sW}, 4")
    b(f"s_cmp_lt_u32 s{sW}, 2")
    b(f"s_cselect_b32 s{sMask}, s{sTmp2}, s{sW}")
    kpiece(vKd1, sMask)
    b(f"s_lshl_b32 s{sMask}, s{sMask}, 10")
    b(f"s_mul_i32 s{sC0}, s{sHD}, 18")
    b(f"v_and_b32 v{vT0}, 31, v0")
    b(f"v_min_u32 v{vT0}, 17, v{vT0}")
    b(f"v_add_u32 v{vT0}, s{sC0}, v{vT0}")
    b(f"v_lshrrev_b32 v{vT1}, 5, v{vT0}")
    b(f"v_lshlrev_b32 v{vT1}, 11, v{vT1}")
    b(f"v_and_b32 v{vT0}, 31, v{vT0}")
    b(f"v_and_b32 v{vT2}, 32, v0")
    b(f"v_add_u32 v{vT0}, v{vT0}, v{vT2}")
    b(f"v_lshl_add_u32 v{vT0}, v{vT0}, 4, v{vT1}")
    b(f"s_mul_i32 s{sTmp}, s{sW}, 36864")
    b(f"v_add_u32 v{vVd}, s{sTmp}, v{vT0}")
    b(f"s_and_b32 s{sTmp}, s{sC0}, 7")
    b(f"v_lshrrev_b32 v{vT0}, 5, v0")
    b(f"v_lshlrev_b32 v{vT0}, 2, v{vT0}")
    b(f"v_subrev_u32 v{vT3}, s{sTmp}, v{vT0}")
    b(f"s_mov_b32 s{sExec}, 0x3ffff")
    b(f"s_mov_b32 s{sExec+1}, 0x3ffff")
    b("s_waitcnt lgkmcnt(0)")
    srd(b, sK, sWS, SZ_T, WS_K)
    srd(b, sV, sWS, SZ_T, WS_V)
    srd(b, sQ, sWS, SZ_T, WS_Q)
    srd(b, sOo, sWS, SZ_T, WS_O)
    b(f"s_mul_i32 s{sTmp}, s{sHD}, 9")
    b(f"s_lshr_b32 s{sTmp}, s{sTmp}, 2")
    b(f"s_lshl_b32 s{sTmp}, s{sTmp}, 9")
    b(f"s_mul_i32 s{sTmp2}, s{sTB}, 36864")
    b(f"s_add_u32 s{sTmp}, s{sTmp}, s{sTmp2}")
    for Q0, Q1 in ((QA0, QA1), (QB0, QB1)):
        b(f"buffer_load_dwordx2 v[{Q0}:{Q0+1}], v{vL8}, s[{sQ}:{sQ+3}], s{sTmp} offen")
        b(f"buffer_load_dwordx2 v[{Q0+2}:{Q0+3}], v{vL8}, s[{sQ}:{sQ+3}], s{sTmp} offen offset:512")
        b(f"buffer_load_dwordx2 v[{Q1}:{Q1+1}], v{vL8}, s[{sQ}:{sQ+3}], s{sTmp} offen offset:1024")
        b(f"s_add_u32 s{sTmp}, s{sTmp}, 36864")
    b(f"s_lshl_b32 s{sTmp2}, s{sW}, 10")
    b(f"s_lshl_b32 s{sC0}, s{sW}, 11")
    b(f"s_add_u32 s{sC0}, s{sC0}, 6144")
    b.ext(stream_init())
    b(f"v_and_b32 v{vT0}, 31, v0")
    b(f"v_cmp_eq_u32 vcc, 18, v{vT0}")
    b(f"v_mov_b32 v{vT1}, 0x3f803f80")
    b("s_nop 0")
    b(f"v_cndmask_b32 v16, 0, v{vT1}, vcc")
    b("v_mov_b32 v17, v16"); b("v_mov_b32 v18, v16"); b("v_mov_b32 v19, v16")
    b(f"s_mul_i32 s{sTmp}, s{sW}, 2048")
    b(f"v_add_u32 v{vT0}, s{sTmp}, v{vL16}")
    b(f"s_not_b64 exec, s[{sExec}:{sExec+1}]")
    for sl in range(NSLOT):
        for s_ in range(2):
            b(f"ds_write_b128 v{vT0}, v[16:19] offset:{sl*STG + 6144 + s_*1024}")
    b("s_mov_b64 exec, -1")
    b("v_mov_b32 v20, 0")
    b(f"v_mov_b32 v21, {FLAG}")
    b("ds_write_b32 v21, v20")
    for kb in KB: b(f"v_mov_b32 v{kb+6}, 0"); b(f"v_mov_b32 v{kb+7}, 0")
    b(f"s_waitcnt vmcnt({4*LOOK})")
    for Q0, Q1 in ((QA0, QA1), (QB0, QB1)):
        for k in range(6):
            G, jp = k//2, k % 2
            r = (Q0 + k) if k < 4 else (Q1 + k - 4)
            b(f"v_add_u32 v{vT0}, {8*G + 2*jp}, v{vT3}")
            b(f"v_cmp_gt_u32 vcc, 18, v{vT0}")
            b("s_nop 1")
            b(f"v_cndmask_b32 v{r}, 0, v{r}, vcc")
        b(f"v_mov_b32 v{Q1+2}, 0"); b(f"v_mov_b32 v{Q1+3}, 0")
    b("s_waitcnt lgkmcnt(0)")
    b(f"s_mov_b32 s{sMode}, 0")
    pro = list(b.ins)
    ini = main_init(W, False); body = sum((stage_body(W, False, sl) for sl in range(NSLOT)), [])
    loop_tail = [f"s_sub_u32 s{sCnt}, s{sCnt}, 1", f"s_cmp_lg_u32 s{sCnt}, 0"]
    inis = main_init(W, True); bodys = sum((stage_body(W, True, sl) for sl in range(NSLOT)), [])
    mx = sum((max_body(W, sl) for sl in range(NSLOT)), [])
    fin = Blk()
    fin("s_nop 1")
    fin.ext(pv(OB, SB, VB[1]))
    fin("s_waitcnt vmcnt(0) lgkmcnt(0)")
    fin("s_nop 7"); fin("s_nop 3")
    for O, t in ((OA, vT0), (OB, vT1)):
        fin(f"v_mov_b32 v{t}, v{O+10}")
        fin(f"v_mov_b32 v{vT2}, v{O+10}")
        fin("s_nop 1")
        fin(f"v_permlane32_swap_b32 v{t}, v{vT2}")
    chk = Blk()
    chk(f"v_mov_b32 v{vT2}, 0")
    for O in (OA, OB):
        for i in range(10): chk(f"v_fmac_f32 v{vT2}, 0, v{O+i}")
    chk(f"v_cmp_u_f32 vcc, v{vT2}, v{vT2}")
    chk("s_nop 0")
    chk(f"s_mov_b64 s[{sExec+2}:{sExec+3}], vcc")
    for t in (vT0, vT1):
        chk(f"v_cmp_nle_f32 vcc, {f32hex(2.0**-80)}, v{t}")
        chk("s_nop 0")
        chk(f"s_or_b64 s[{sExec+2}:{sExec+3}], s[{sExec+2}:{sExec+3}], vcc")
        chk(f"v_cmp_nge_f32 vcc, {f32hex(2.0**100)}, v{t}")
        chk("s_nop 0")
        chk(f"s_or_b64 s[{sExec+2}:{sExec+3}], s[{sExec+2}:{sExec+3}], vcc")
    chk(f"s_cmp_lg_u64 s[{sExec+2}:{sExec+3}], 0")
    chk(f"s_cselect_b32 s{sTmp}, 1, 0")
    chk(f"v_mov_b32 v20, s{sTmp}")
    chk(f"v_mov_b32 v21, {FLAG}")
    chk("ds_or_b32 v21, v20")
    chk("s_waitcnt lgkmcnt(0)")
    chk("s_barrier")
    chk("ds_read_b32 v20, v21")
    chk("s_waitcnt lgkmcnt(0)")
    chk(f"v_readfirstlane_b32 s{sTmp}, v20")
    chk("s_nop 3")
    chk(f"s_cmp_lg_u32 s{sTmp}, 0")
    out = Blk()
    for (O, t, k) in ((OA, vT0, 0), (OB, vT1, 1)):
        out(f"v_rcp_f32 v{t}, v{t}")
        out("s_nop 0")
        for i in range(10): out(f"v_mul_f32 v{O+i}, v{O+i}, v{t}")
        for i in range(5): out(f"v_cvt_pk_bf16_f32 v{SA+8*k+i}, v{O+2*i}, v{O+2*i+1}")
    out(f"s_mul_i32 s{sTmp}, s{sTB}, 36")
    out(f"s_add_u32 s{sTmp}, s{sTmp}, s{sHD}")
    out(f"s_lshl_b32 s{sTmp}, s{sTmp}, 10")
    out(f"buffer_store_dwordx4 v[{SA}:{SA+3}], v{vL16}, s[{sOo}:{sOo+3}], s{sTmp} offen sc1")
    out(f"s_add_u32 s{sTmp2}, s{sTmp}, 36864")
    out(f"buffer_store_dwordx4 v[{SA+8}:{SA+11}], v{vL16}, s[{sOo}:{sOo+3}], s{sTmp2} offen sc1")
    out(f"s_mul_i32 s{sTmp}, s{sTB}, 36")
    out(f"s_lshr_b32 s{sTmp2}, s{sHD}, 3")
    out(f"s_add_u32 s{sTmp}, s{sTmp}, s{sTmp2}")
    out(f"s_add_u32 s{sTmp}, s{sTmp}, 32")
    out(f"s_lshl_b32 s{sTmp}, s{sTmp}, 10")
    out(f"s_bfe_u32 s{sTmp2}, s{sHD}, 0x10002")
    out(f"s_lshl_b32 s{sTmp2}, s{sTmp2}, 9")
    out(f"s_add_u32 s{sTmp}, s{sTmp}, s{sTmp2}")
    out(f"s_and_b32 s{sTmp2}, s{sHD}, 3")
    out(f"s_lshl_b32 s{sTmp2}, s{sTmp2}, 2")
    out(f"s_add_u32 s{sTmp}, s{sTmp}, s{sTmp2}")
    out("s_mov_b32 exec_hi, 0")
    out(f"buffer_store_dword v{SA+4}, v{vL16}, s[{sOo}:{sOo+3}], s{sTmp} offen")
    out(f"s_add_u32 s{sTmp}, s{sTmp}, 36864")
    out(f"buffer_store_dword v{SA+12}, v{vL16}, s[{sOo}:{sOo+3}], s{sTmp} offen")
    out("s_mov_b64 exec, -1")
    mxi = Blk()
    mxi(f"v_mov_b32 v{vMA}, 0xff7fffff"); mxi(f"v_mov_b32 v{vMB}, 0xff7fffff")
    mxi("s_waitcnt vmcnt(0)"); mxi("s_barrier")
    mxe = Blk()
    for M, C in ((vMA, CA), (vMB, CB)):
        mxe(f"v_mov_b32 v{vT2}, v{M}")
        mxe("s_nop 1")
        mxe(f"v_permlane32_swap_b32 v{M}, v{vT2}")
        mxe("s_nop 0")
        mxe(f"v_max_f32 v{M}, v{M}, v{vT2}")
        for i in range(16): mxe(f"v_sub_f32 v{C+i}, 0, v{M}")
    mxe("s_waitcnt vmcnt(0)"); mxe("s_barrier")
    t_fast = pro + ini + body + loop_tail + body + loop_tail + body + fin.ins + chk.ins + out.ins
    t_safe = pro + ini + body + fin.ins + chk.ins + stream_init() + mxi.ins + mx + mx + mxe.ins + stream_init() + inis + bodys + bodys + fin.ins + out.ins
    for tr in (t_fast, t_safe): W.simulate(tr)
    R = W.resolve
    bad = len(check(R(t_fast), "attn_fast")) + len(check(R(t_safe), "attn_safe"))
    assert bad == 0 or (OPT - {'k8'})
    o = Blk(); o.ext(R(pro)); o.ext(R(ini))
    if "stamp" in OPT: o("s_memtime s[76:77]"); o("s_waitcnt lgkmcnt(0)")
    o.label("L_at_loop"); o.ext(R(body)); o.ext(loop_tail); o("s_cbranch_scc1 L_at_loop")
    if "stamp" in OPT:
        o("s_memtime s[78:79]"); o("s_waitcnt lgkmcnt(0)"); o("s_sub_u32 s98, s78, s76")
        o("s_sub_u32 s99, s76, s90")
    o.ext(fin); o.ext(chk)
    if "nosafe" in OPT: o("s_branch L_at_out")
    o("s_cbranch_scc0 L_at_out")
    o("s_waitcnt vmcnt(0)"); o("s_barrier")
    o.ext(stream_init()); o.ext(mxi)
    o.label("L_at_mx"); o.ext(mx); o.ext(loop_tail); o("s_cbranch_scc1 L_at_mx")
    o.ext(mxe)
    o.ext(stream_init()); o.ext(R(inis))
    o.label("L_at_loop2"); o.ext(R(bodys)); o.ext(loop_tail); o("s_cbranch_scc1 L_at_loop2")
    o.ext(fin)
    o.label("L_at_out")
    o.ext(out)
    return o

def gen_attn_kernel(prof=False, opts=()):
    OPT.clear(); OPT.update(opts)
    name = "attn_kernel"
    b = Blk()
    b("s_cmp_ge_u32 s2, 256")
    b("s_cbranch_scc1 L_at_end")
    if prof:
        prof_begin(b)
    b.ext(gen_attn_role())
    if prof: prof_end(b, 2, 4)
    b.label("L_at_end")
    b("s_endpgm")
    return name, kernel_text(name, b.text(), 256, 256, 100)
if __name__ == "__main__":
    n, t = gen_attn_kernel()
    open("k2a.s", "w").write('.amdgcn_target "amdgcn-amd-amdhsa--gfx950"\n' + t)
```

```python
from common import *
SLOT = 20480; NSL = 4; B_LDS = SLOT*NSL
vL16, vTRb, vTR = 1, 2, 3
vD = 4
vA = 12
vB = 36
ACC = 96
sWS, sWDp = 4, 6
sWD, sHB, sPT = 8, 12, 16
sW, sX, sTB, sNH, sSlotR, sSlotW, sWoff, sHoff, sIt, sTmp, sTmp2, sW1024 = range(24, 36)
OPT = set()

def a_reads(g):
    pass

def dma_stage():
    o = []
    for i in range(5):
        o.append(f"s_add_u32 m0, s{sSlotW}, {i*4096}")
        o.append("s_nop 0")
        o.append(f"buffer_load_dwordx4 v{vD+i}, s[{sWD}:{sWD+3}], s{sWoff} offen lds ;#w")
    o.append(f"s_add_u32 s{sWoff}, s{sWoff}, {2*18432}")
    o.append(f"s_add_u32 s{sSlotW}, s{sSlotW}, {SLOT}")
    o.append(f"s_cmp_ge_u32 s{sSlotW}, {SLOT*NSL}")
    o.append(f"s_cselect_b32 s{sTmp}, {SLOT*NSL}, 0")
    o.append(f"s_sub_u32 s{sSlotW}, s{sSlotW}, s{sTmp}")
    return o
def adv_read():
    return [f"s_add_u32 s{sSlotR}, s{sSlotR}, {SLOT}",
            f"s_cmp_eq_u32 s{sSlotR}, {SLOT*NSL}",
            f"s_cselect_b32 s{sSlotR}, 0, s{sSlotR}"]

PD = 4
def body(W):
    vT = [vTR, vTRb+7]
    def rd(g):
        st = g//18; q = g % 18
        r = vA + (g % 6)*4
        base = vT[st % 2]
        o0 = (q//9)*16*576 + (q % 9)*64
        return [f"ds_read_b64_tr_b16 v[{r}:{r+1}], v{base} offset:{o0}",
                f"ds_read_b64_tr_b16 v[{r+2}:{r+3}], v{base} offset:{o0+8*576}"]
    o = []
    for g in range(108):
        ks = g//9; nt = g % 9; st = g//18
        if g % 18 == 0:
            o += [W.wv("w%d" % 0) if False else W.wv("wn"), "s_barrier"]
        if nt == 0: o.append(W.wv(f"b{ks}"))
        r = vA + (g % 6)*4; bb = vB + ks*4; a = ACC + nt*16
        o.append(W.wl(f"v[{r}:{r+3}]"))
        o.append(f"v_mfma_f32_32x32x16_bf16 v[{a}:{a+15}], v[{r}:{r+3}], v[{bb}:{bb+3}], v[{a}:{a+15}]")
        extra = []
        if g % 18 == 18 - PD - 2:
            extra += adv_read() + [f"v_add_u32 v{vT[(st+1) % 2]}, s{sSlotR}, v{vTRb}"]
        o += extra
        o += rd(g + PD)
        if "burst" in OPT:
            if g % 18 == 0:
                d = dma_stage()
                if st == 3: d = [f"s_cmp_eq_u32 s{sIt}, 1", f"s_cselect_b32 s{sWD+2}, 0, {SZ_WG}"] + d
                o += d
        else:
            d = dma_stage()
            q = g % 18
            if q == 0 and st == 3: o += [f"s_cmp_eq_u32 s{sIt}, 1", f"s_cselect_b32 s{sWD+2}, 0, {SZ_WG}"]
            if q in (2, 5, 8, 11, 14):
                i = (q - 2)//3
                o += [d[3*i], d[3*i+2]] if False else d[3*i:3*i+3]
            if q == 15: o += d[15:]
        if nt == 1:
            kn = (ks + 11) % 12
            rb = vB + kn*4
            o.append(f"buffer_load_dwordx4 v[{rb}:{rb+3}], v{vL16}, s[{sHB}:{sHB+3}], s{sHoff} offen ;#b{kn}")
            o.append(f"s_add_u32 s{sHoff}, s{sHoff}, 1024")
            if ks == 0:
                o += [f"s_cmp_eq_u32 s{sIt}, 1", f"s_cselect_b32 s{sHB+2}, 0, {SZ_H}"]
    if "nods" in OPT: o = [x for x in o if not x.startswith("ds_read") and not x.startswith("@WL")]
    if "nodma" in OPT: o = [x for x in o if not (x.startswith("buffer_load") and " lds" in x)]
    if "noB" in OPT: o = [x for x in o if not (x.startswith("buffer_load") and " lds" not in x)]
    if "nobar" in OPT: o = [x for x in o if x != "s_barrier"]
    return o

def gen_down_role(opts=()):
    OPT.clear(); OPT.update(opts)
    W = Waits()
    b = Blk()
    b(f"s_load_dwordx2 s[{sWS}:{sWS+1}], s[0:1], {KA_WS}")
    b(f"s_load_dwordx2 s[{sWDp}:{sWDp+1}], s[0:1], {KA_WD}")
    b(f"v_readfirstlane_b32 s{sW}, v0")
    b("v_and_b32 v0, 63, v0")
    b(f"s_lshr_b32 s{sW}, s{sW}, 6")
    b(f"s_and_b32 s{sX}, s2, 7")
    b(f"s_bfe_u32 s{sNH}, s2, 0x10003")
    b(f"s_bfe_u32 s{sTB}, s2, 0x40004")
    b(f"s_lshl_b32 s{sTB}, s{sTB}, 2")
    b(f"s_add_u32 s{sTB}, s{sTB}, s{sW}")
    b(f"s_lshl_b32 s{sW1024}, s{sW}, 10")
    b(f"v_lshlrev_b32 v{vL16}, 4, v0")
    b("v_lshrrev_b32 v10, 5, v0")
    b("v_lshlrev_b32 v10, 2, v10")
    b("v_bfe_u32 v11, v0, 2, 2")
    b("v_add_u32 v10, v10, v11")
    b("v_mul_u32_u24 v10, 576, v10")
    b("v_bfe_u32 v11, v0, 4, 1")
    b("v_lshl_add_u32 v10, v11, 5, v10")
    b("v_and_b32 v11, 3, v0")
    b(f"v_lshl_add_u32 v{vTRb}, v11, 3, v10")
    b(f"v_mov_b32 v{vTR}, v{vTRb}")
    for i in range(5):
        b(f"s_add_u32 s{sTmp}, s{sW}, {4*i}")
        b(f"s_lshl_b32 s{sTmp2}, s{sTmp}, 10")
        b(f"v_add_u32 v10, s{sTmp2}, v{vL16}")
        b("v_lshrrev_b32 v11, 6, v10")
        b("v_mul_u32_u24 v11, 7282, v11")
        b("v_lshrrev_b32 v11, 16, v11")
        b("v_mul_u32_u24 v11, 576, v11")
        b(f"v_add_u32 v{vD+i}, v10, v11")
        if i == 4:
            b(f"s_cmp_ge_u32 s{sTmp}, 18")
            b(f"s_cselect_b32 s{sTmp2}, 0x7f000000, 0")
            b(f"v_add_u32 v{vD+i}, s{sTmp2}, v{vD+i}")
    b("s_waitcnt lgkmcnt(0)")
    srd(b, sWD, sWDp, SZ_WG)
    srd(b, sHB, sWS, SZ_H, WS_H)
    srd(b, sPT, sWS, NSPLIT*SZ_T, WS_P)
    b(f"s_mul_i32 s{sWoff}, s{sX}, {576*1152}")
    b(f"s_mul_i32 s{sTmp}, s{sNH}, 576")
    b(f"s_add_u32 s{sWoff}, s{sWoff}, s{sTmp}")
    b(f"s_mul_i32 s{sHoff}, s{sTB}, 288")
    b(f"s_mul_i32 s{sTmp}, s{sX}, 36")
    b(f"s_add_u32 s{sHoff}, s{sHoff}, s{sTmp}")
    b(f"s_lshl_b32 s{sHoff}, s{sHoff}, 10")
    b(f"s_mov_b32 s{sSlotW}, s{sW1024}")
    b(f"s_mov_b32 s{sSlotR}, 0")
    st0 = [x.replace(";#w", ";#w0") for x in dma_stage()]
    b.ext(st0)
    for ks in range(2):
        b(f"buffer_load_dwordx4 v[{vB+4*ks}:{vB+4*ks+3}], v{vL16}, s[{sHB}:{sHB+3}], s{sHoff} offen ;#b{ks}")
        b(f"s_add_u32 s{sHoff}, s{sHoff}, 1024")
    b.ext([x.replace(";#w", ";#w1") for x in dma_stage()])
    for ks in range(2, 6):
        b(f"buffer_load_dwordx4 v[{vB+4*ks}:{vB+4*ks+3}], v{vL16}, s[{sHB}:{sHB+3}], s{sHoff} offen ;#b{ks}")
        b(f"s_add_u32 s{sHoff}, s{sHoff}, 1024")
    b.ext([x.replace(";#w", ";#w2") for x in dma_stage()])
    for ks in range(6, 11):
        b(f"buffer_load_dwordx4 v[{vB+4*ks}:{vB+4*ks+3}], v{vL16}, s[{sHB}:{sHB+3}], s{sHoff} offen ;#b{ks}")
        b(f"s_add_u32 s{sHoff}, s{sHoff}, 1024")
    for i in range(144): b(f"v_mov_b32 v{ACC+i}, 0")
    b(W.wv("w0")); b("s_barrier")
    for g in range(PD):
        r = vA + (g % 6)*4
        b(f"ds_read_b64_tr_b16 v[{r}:{r+1}], v{vTR} offset:{g*64}")
        b(f"ds_read_b64_tr_b16 v[{r+2}:{r+3}], v{vTR} offset:{g*64+8*576}")
    b(f"s_mov_b32 s{sIt}, 3")
    pro = list(b.ins)
    bd = body(W)
    tail = [f"s_sub_u32 s{sIt}, s{sIt}, 1", f"s_cmp_lg_u32 s{sIt}, 0"]
    def trace(n):
        t = list(pro)
        st = 0; issued = 3
        for it in range(n):
            for s in bd + tail:
                if s.startswith("@WV") and s.endswith(" wn"):
                    t.append(s[:-2] + f"w{st+1}"); st += 1
                elif ";#w" in s and s.endswith(";#w"):
                    t.append(s.replace(";#w", f";#w{issued}"))
                    cnt = sum(1 for x in t if x.endswith(f";#w{issued}"))
                    if cnt == 5: issued += 1
                else: t.append(s)
        return t
    tr = trace(3)
    W.simulate(tr)
    R = W.resolve
    epi = Blk()
    epi("s_waitcnt vmcnt(0) lgkmcnt(0)")
    epi("s_nop 7"); epi("s_nop 3")
    epi(f"s_lshl_b32 s{sTmp}, s{sX}, 6")
    epi(f"s_add_u32 s{sTmp}, s{sTmp}, s{sTB}")
    epi(f"s_mul_i32 s{sTmp}, s{sTmp}, 18")
    epi(f"s_mul_i32 s{sTmp2}, s{sNH}, 9")
    epi(f"s_add_u32 s{sTmp}, s{sTmp}, s{sTmp2}")
    epi(f"s_lshl_b32 s{sTmp}, s{sTmp}, 11")
    for nt in range(9):
        a = ACC + nt*16; p = vB + (nt % 4)*8
        for i in range(8): epi(f"v_cvt_pk_bf16_f32 v{p+i}, v{a+2*i}, v{a+2*i+1}")
        epi(f"buffer_store_dwordx4 v[{p}:{p+3}], v{vL16}, s[{sPT}:{sPT+3}], s{sTmp} offen sc1")
        epi(f"buffer_store_dwordx4 v[{p+4}:{p+7}], v{vL16}, s[{sPT}:{sPT+3}], s{sTmp} offen offset:1024 sc1")
        epi(f"s_add_u32 s{sTmp}, s{sTmp}, 2048")
    if "nowo" not in OPT:
        epi(f"s_lshr_b32 s{sTmp}, s2, 3")
        epi(f"s_and_b32 s{sTmp}, s{sTmp}, 31")
        epi(f"s_lshl_b32 s{sTmp}, s{sTmp}, 2")
        epi(f"s_add_u32 s{sTmp}, s{sTmp}, s{sW}")
        epi(f"s_mul_i32 s{sTmp}, s{sTmp}, {6*1024}")
        srd(epi, sWD, sWS, SZ_WO, WS_WOF)
        for i in range(6):
            epi(f"buffer_load_dwordx4 v[{ACC+4*i}:{ACC+4*i+3}], v{vL16}, s[{sWD}:{sWD+3}], s{sTmp} offen")
            epi(f"s_add_u32 s{sTmp}, s{sTmp}, 1024")
    assert len(check(R(tr) + epi.ins, "down")) == 0 or (OPT - {"hi1","hi2","hi3"})
    o = Blk(); o.ext(R(pro))
    if "stamp" in OPT: o("s_memtime s[76:77]"); o("s_waitcnt lgkmcnt(0)")
    hi = [x for x in OPT if x.startswith("hi")]
    if hi: o("s_setprio 2")
    o.label("L_dn_loop"); o.ext(R(bd))
    if hi:
        n = int(hi[0][2:])
        o(f"s_cmp_eq_u32 s{sIt}, {4-n}")
        o("s_cbranch_scc0 L_dn_keep")
        o("s_setprio 0")
        o.label("L_dn_keep")
    o.ext(tail); o("s_cbranch_scc1 L_dn_loop")
    if "stamp" in OPT:
        o("s_memtime s[78:79]"); o("s_waitcnt lgkmcnt(0)"); o("s_sub_u32 s98, s78, s76")
    o.ext(epi)
    return o

def gen_down_kernel(prof=False, opts=()):
    name = "down_kernel"
    b = Blk()
    b("s_cmp_ge_u32 s2, 256")
    b("s_cbranch_scc1 L_dn_end")
    if prof: prof_begin(b)
    b.ext(gen_down_role(opts))
    if prof: prof_end(b, 3, 4)
    b.label("L_dn_end")
    b("s_endpgm")
    return name, kernel_text(name, b.text(), 256, 256, 100)
if __name__ == "__main__":
    n, t = gen_down_kernel()
    open("k2b.s", "w").write('.amdgcn_target "amdgcn-amd-amdhsa--gfx950"\n' + t)
```

```python
from common import *
RING = 24
OB_LDS = 5*RING*1024
K3_LDS = OB_LDS + 36*1024
vL16, vTR, vDm, vDl, vXo, vOo, vBr = 1, 2, 3, 4, 5, 6, 7
vA = 8
vB = 20
ACC = 32
T = 48
vX = 64
vP = 72
vTmp = 136
sWS, sWOp, sXp, sOp = 4, 6, 8, 10
sWO, sOB, sPT, sX, sOut = 12, 16, 20, 24, 28
sW, sTB, sQ, sTmp, sTmp2, sOff, sRing, sN0, sOffL, sU = range(32, 42)
def gen_k3(prof=False, outsc1=False):
    name = "final_kernel"
    W = Waits()
    b = Blk()
    b("s_cmp_ge_u32 s2, 256")
    b("s_cbranch_scc1 L_k3_end")
    if prof: prof_begin(b)
    b(f"s_load_dwordx2 s[{sWS}:{sWS+1}], s[0:1], {KA_WS}")
    b(f"s_load_dwordx2 s[{sWOp}:{sWOp+1}], s[0:1], {KA_WO}")
    b(f"s_load_dwordx2 s[{sXp}:{sXp+1}], s[0:1], {KA_X}")
    b(f"s_load_dwordx2 s[{sOp}:{sOp+1}], s[0:1], {KA_OUT}")
    b(f"v_readfirstlane_b32 s{sW}, v0")
    b("v_and_b32 v0, 63, v0")
    b(f"s_lshr_b32 s{sW}, s{sW}, 6")
    b(f"s_and_b32 s{sTB}, s2, 7")
    b(f"s_lshr_b32 s{sTmp}, s2, 5")
    b(f"s_lshl_b32 s{sTmp}, s{sTmp}, 3")
    b(f"s_add_u32 s{sTB}, s{sTB}, s{sTmp}")
    b(f"s_bfe_u32 s{sQ}, s2, 0x20003")
    b(f"s_mul_i32 s{sN0}, s{sQ}, 288")
    b(f"s_lshl_b32 s{sTmp}, s{sW}, 6")
    b(f"s_add_u32 s{sN0}, s{sN0}, s{sTmp}")
    b(f"s_mul_i32 s{sU}, s{sQ}, 9")
    b(f"s_lshl_b32 s{sTmp}, s{sW}, 1")
    b(f"s_add_u32 s{sU}, s{sU}, s{sTmp}")
    b(f"s_mul_i32 s{sRing}, s{sW}, {RING*1024}")
    b(f"v_lshlrev_b32 v{vL16}, 4, v0")
    b(f"v_add_u32 v{vBr}, {OB_LDS}, v{vL16}")
    b("v_lshrrev_b32 v8, 5, v0")
    b("v_lshlrev_b32 v8, 8, v8")
    b("v_bfe_u32 v9, v0, 2, 2")
    b("v_lshl_add_u32 v8, v9, 6, v8")
    b("v_bfe_u32 v9, v0, 4, 1")
    b("v_lshl_add_u32 v8, v9, 5, v8")
    b("v_and_b32 v9, 3, v0")
    b(f"v_lshl_add_u32 v{vTR}, v9, 3, v8")
    b(f"v_add_u32 v{vTR}, s{sRing}, v{vTR}")
    b("v_lshrrev_b32 v8, 2, v0")
    b(f"v_mul_u32_u24 v{vDm}, 1152, v8")
    b("v_and_b32 v9, 3, v0")
    b(f"v_lshl_add_u32 v{vDm}, v9, 4, v{vDm}")
    b("v_bfe_u32 v10, v8, 2, 1")
    b("v_lshlrev_b32 v10, 2, v10")
    b("v_lshrrev_b32 v11, 3, v8")
    b("v_lshlrev_b32 v11, 1, v11")
    b("v_add_u32 v10, v10, v11")
    b("v_bfe_u32 v11, v8, 1, 1")
    b("v_add_u32 v10, v10, v11")
    b("v_mul_u32_u24 v10, 18, v10")
    b("v_and_b32 v11, 1, v8")
    b("v_add_u32 v10, v10, v11")
    b("v_add_u32 v10, 16, v10")
    b(f"v_mul_u32_u24 v{vDl}, 1152, v10")
    b(f"v_lshl_add_u32 v{vDl}, v9, 4, v{vDl}")
    b("v_and_b32 v8, 31, v0")
    b(f"s_lshl_b32 s{sTmp}, s{sTB}, 5")
    b(f"v_add_u32 v8, s{sTmp}, v8")
    b("v_mul_u32_u24 v8, 1152, v8")
    b("v_lshrrev_b32 v9, 5, v0")
    b(f"v_lshl_add_u32 v{vXo}, v9, 3, v8")
    b(f"v_lshl_add_u32 v{vOo}, v9, 4, v8")
    b("s_waitcnt lgkmcnt(0)")
    srd(b, sWO, sWOp, SZ_WO)
    srd(b, sOB, sWS, SZ_T, WS_O)
    srd(b, sPT, sWS, NSPLIT*SZ_T, WS_P)
    srd(b, sX, sXp, SZ_X)
    srd(b, sOut, sOp, SZ_X)
    b(f"s_cmp_ge_u32 s{sW}, 4")
    b("s_cbranch_scc1 L_k3_noo")
    osec = Blk()
    osec(f"s_mul_i32 s{sOff}, s{sTB}, 36864")
    osec(f"s_lshl_b32 s{sTmp}, s{sW}, 10")
    osec(f"s_add_u32 s{sOff}, s{sOff}, s{sTmp}")
    osec(f"s_add_u32 s{sTmp2}, s{sTmp}, {OB_LDS}")
    for i in range(9):
        osec(f"s_add_u32 m0, s{sTmp2}, {i*4096}")
        osec("s_nop 0")
        osec(f"buffer_load_dwordx4 v{vL16}, s[{sOB}:{sOB+3}], s{sOff} offen lds ;#o")
        osec(f"s_add_u32 s{sOff}, s{sOff}, 4096")
    b.ext(osec)
    b.label("L_k3_noo")
    def wo_dma(sg):
        slot = sg % RING
        o = [f"s_add_u32 m0, s{sRing}, {slot*1024}"]
        if sg < 32:
            o.append(f"s_add_u32 s{sTmp}, s{sN0}, {sg*18*1152}")
            o.append(f"buffer_load_dwordx4 v{vDm}, s[{sWO}:{sWO+3}], s{sTmp} offen lds ;#w{sg}")
        else:
            o.append(f"s_add_u32 s{sTmp}, s{sN0}, {(sg-32)*8*18*1152}")
            o.append(f"buffer_load_dwordx4 v{vDl}, s[{sWO}:{sWO+3}], s{sTmp} offen lds ;#w{sg}")
        return o
    rest = Blk()
    for sg in range(RING): rest.ext(wo_dma(sg))
    rest(f"s_mul_i32 s{sOff}, s{sTB}, 36")
    rest(f"s_add_u32 s{sOff}, s{sOff}, s{sU}")
    rest(f"s_lshl_b32 s{sOff}, s{sOff}, 10")
    rest(f"s_movk_i32 s{sOffL}, 1024")
    rest(f"s_cmp_ge_u32 s{sW}, 4")
    rest(f"s_cselect_b32 s{sOffL}, 0x7f000000, s{sOffL}")
    for s_ in range(NSPLIT):
        r = vP + s_*8
        rest(f"buffer_load_dwordx4 v[{r}:{r+3}], v{vL16}, s[{sPT}:{sPT+3}], s{sOff} offen ;#p{s_}")
        rest(f"s_add_u32 s{sTmp}, s{sOff}, s{sOffL}")
        rest(f"buffer_load_dwordx4 v[{r+4}:{r+7}], v{vL16}, s[{sPT}:{sPT+3}], s{sTmp} offen ;#p{s_}")
        rest(f"s_add_u32 s{sOff}, s{sOff}, {SZ_T}")
    for g in range(4):
        rest(f"buffer_load_dwordx2 v[{vX+2*g}:{vX+2*g+1}], v{vXo}, s[{sX}:{sX+3}], s{sN0} offen offset:{g*16} ;#x")
    rest(W.wv("o")); rest("s_barrier")
    def rdA(ks):
        r = vA + (ks % 3)*4; o = (ks % RING)*1024
        return [f"ds_read_b64_tr_b16 v[{r}:{r+1}], v{vTR} offset:{o}",
                f"ds_read_b64_tr_b16 v[{r+2}:{r+3}], v{vTR} offset:{o+512}"]
    def rdB(ks):
        r = vB + (ks % 3)*4
        return [f"ds_read_b128 v[{r}:{r+3}], v{vBr} offset:{ks*1024}"]
    for ks in range(2):
        rest(W.wv(f"w{ks}")); rest.ext(rdA(ks)); rest.ext(rdB(ks))
    for ks in range(36):
        ra = vA + (ks % 3)*4; rb = vB + (ks % 3)*4
        rest(W.wl(f"v[{ra}:{ra+3}]", f"v[{rb}:{rb+3}]"))
        c = "0" if ks == 0 else f"v[{ACC}:{ACC+15}]"
        rest(f"v_mfma_f32_32x32x16_bf16 v[{ACC}:{ACC+15}], v[{ra}:{ra+3}], v[{rb}:{rb+3}], {c}")
        if ks + RING < 36: rest.ext(wo_dma(ks + RING))
        if ks + 2 < 36:
            rest(W.wv(f"w{ks+2}")); rest.ext(rdA(ks+2)); rest.ext(rdB(ks+2))
    rest(W.wv("p0"))
    for i in range(8):
        r = vP + i
        rest(f"v_lshlrev_b32 v{T+2*i}, 16, v{r}")
        rest(f"v_and_b32 v{T+2*i+1}, 0xffff0000, v{r}")
    for s_ in range(1, NSPLIT):
        rest(W.wv(f"p{s_}"))
        for i in range(8):
            r = vP + s_*8 + i
            rest(f"v_lshlrev_b32 v{vTmp}, 16, v{r}")
            rest(f"v_and_b32 v{r}, 0xffff0000, v{r}")
            rest(f"v_add_f32 v{T+2*i}, v{T+2*i}, v{vTmp}")
            rest(f"v_add_f32 v{T+2*i+1}, v{T+2*i+1}, v{r}")
    rest(W.wv("x"))
    for i in range(8):
        r = vX + i
        rest(f"v_lshlrev_b32 v{vTmp}, 16, v{r}")
        rest(f"v_and_b32 v{r}, 0xffff0000, v{r}")
        rest(f"v_add_f32 v{T+2*i}, v{T+2*i}, v{vTmp}")
        rest(f"v_add_f32 v{T+2*i+1}, v{T+2*i+1}, v{r}")
    for i in range(16): rest(f"v_add_f32 v{ACC+i}, v{ACC+i}, v{T+i}")
    for i in range(8): rest(f"v_cvt_pk_bf16_f32 v{vX+i}, v{ACC+2*i}, v{ACC+2*i+1}")
    rest("s_nop 1")
    for s_ in range(2):
        rest(f"v_permlane32_swap_b32 v{vX+4*s_}, v{vX+4*s_+2}")
        rest(f"v_permlane32_swap_b32 v{vX+4*s_+1}, v{vX+4*s_+3}")
    sfx = " sc1" if outsc1 else ""
    rest(f"s_add_u32 s{sTmp}, s{sN0}, 32")
    rest(f"s_cmp_ge_u32 s{sW}, 4")
    rest(f"s_cselect_b32 s{sTmp}, 0x7f000000, s{sTmp}")
    rest(f"buffer_store_dwordx4 v[{vX}:{vX+3}], v{vOo}, s[{sOut}:{sOut+3}], s{sN0} offen" + sfx)
    rest(f"buffer_store_dwordx4 v[{vX+4}:{vX+7}], v{vOo}, s[{sOut}:{sOut+3}], s{sTmp} offen" + sfx)
    head = b.ins[:b.ins.index("L_k3_noo:") - len(osec.ins)]
    W.simulate(head + osec.ins + rest.ins)
    W.simulate(head + rest.ins)
    r_ = W.resolve(rest.ins)
    assert len(check(head + osec.ins + r_, name)) == 0
    assert len(check(head + r_, name + "_w4")) == 0
    b.ext(r_)
    if prof: prof_end(b, 4, 5)
    b.label("L_k3_end")
    b("s_endpgm")
    return name, kernel_text(name, b.text(), 144, 144, 100)
if __name__ == "__main__":
    n, t = gen_k3()
    open("k3.s", "w").write('.amdgcn_target "amdgcn-amd-amdhsa--gfx950"\n' + t)
```

```python
from common import *
X_LDS = 36*1024
K3_LDS = X_LDS + 9*1024
vL16, vAo, vXd, vXr, vOo, vBr = 1, 2, 3, 4, 5, 6
vB = 8
ACC = 20
T = 36
vX = 52
vP = 60
vTmp = 7
RING = 24
AHEAD = 12
sWS, sXp, sOp = 4, 8, 10
sWO, sOB, sPT, sX, sOut = 12, 16, 20, 24, 28
sW, sTB, sQ, sTmp, sTmp2, sOff, sN0, sOffL, sU, sA = range(32, 42)
def gen_k3(prof=False, outsc1=False, stamp=0):
    name = "final_kernel"
    W = Waits()
    b = Blk()
    b("s_cmp_ge_u32 s2, 256")
    b("s_cbranch_scc1 L_k3_end")
    if prof: prof_begin(b)
    b(f"s_load_dwordx2 s[{sWS}:{sWS+1}], s[0:1], {KA_WS}")
    b(f"s_load_dwordx2 s[{sXp}:{sXp+1}], s[0:1], {KA_X}")
    b(f"s_load_dwordx2 s[{sOp}:{sOp+1}], s[0:1], {KA_OUT}")
    b(f"v_readfirstlane_b32 s{sW}, v0")
    b("v_and_b32 v0, 63, v0")
    b(f"s_lshr_b32 s{sW}, s{sW}, 6")
    b(f"s_and_b32 s{sTB}, s2, 7")
    b(f"s_lshr_b32 s{sTmp}, s2, 5")
    b(f"s_lshl_b32 s{sTmp}, s{sTmp}, 3")
    b(f"s_add_u32 s{sTB}, s{sTB}, s{sTmp}")
    b(f"s_bfe_u32 s{sQ}, s2, 0x20003")
    b(f"s_mul_i32 s{sN0}, s{sQ}, 288")
    b(f"s_lshl_b32 s{sTmp}, s{sW}, 6")
    b(f"s_add_u32 s{sN0}, s{sN0}, s{sTmp}")
    b(f"s_mul_i32 s{sU}, s{sQ}, 9")
    b(f"s_lshl_b32 s{sTmp}, s{sW}, 1")
    b(f"s_add_u32 s{sU}, s{sU}, s{sTmp}")
    b(f"v_lshlrev_b32 v{vL16}, 4, v0")
    b("v_bfe_u32 v8, v0, 4, 1")
    b("v_lshlrev_b32 v8, 9, v8")
    b("v_lshrrev_b32 v9, 5, v0")
    b("v_lshl_add_u32 v8, v9, 8, v8")
    b("v_and_b32 v10, 15, v0")
    b(f"v_lshl_add_u32 v{vAo}, v10, 4, v8")
    b("v_and_b32 v8, 31, v0")
    b("v_mul_u32_u24 v10, 288, v8")
    b("v_lshl_add_u32 v10, v9, 3, v10")
    b(f"s_add_u32 s{sTmp}, s{sTmp}, 0") if False else None
    b(f"s_lshl_b32 s{sTmp}, s{sW}, 6")
    b(f"s_add_u32 s{sTmp}, s{sTmp}, {X_LDS}")
    b(f"v_add_u32 v{vXr}, s{sTmp}, v10")
    b(f"s_lshl_b32 s{sTmp}, s{sTB}, 5")
    b(f"v_add_u32 v8, s{sTmp}, v8")
    b("v_mul_u32_u24 v8, 1152, v8")
    b(f"v_lshl_add_u32 v{vOo}, v9, 4, v8")
    b("s_waitcnt lgkmcnt(0)")
    srd(b, sWO, sWS, SZ_WO, WS_WOF)
    srd(b, sOB, sWS, SZ_T, WS_O)
    srd(b, sPT, sWS, NSPLIT*SZ_T, WS_P)
    srd(b, sX, sXp, SZ_X)
    srd(b, sOut, sOp, SZ_X)
    if prof and stamp == 4: b("s_memtime s[76:77]"); b("s_waitcnt lgkmcnt(0)"); b("s_sub_u32 s98, s76, s90")
    b(f"s_cmp_ge_u32 s{sW}, 4")
    b("s_cbranch_scc1 L_k3_xdma")
    head = list(b.ins)
    osec = Blk()
    osec(f"s_mul_i32 s{sOff}, s{sTB}, 36864")
    osec(f"s_lshl_b32 s{sTmp}, s{sW}, 10")
    osec(f"s_add_u32 s{sOff}, s{sOff}, s{sTmp}")
    for i in range(9):
        osec(f"s_add_u32 m0, s{sTmp}, {i*4096}")
        osec("s_nop 0")
        osec(f"buffer_load_dwordx4 v{vL16}, s[{sOB}:{sOB+3}], s{sOff} offen lds ;#o")
        osec(f"s_add_u32 s{sOff}, s{sOff}, 4096")
    xsec = Blk()
    xsec(f"s_mul_i32 s{sOff}, s{sTB}, {32*1152}")
    xsec(f"s_mul_i32 s{sTmp}, s{sQ}, 288")
    xsec(f"s_add_u32 s{sOff}, s{sOff}, s{sTmp}")
    for i in range(9):
        xsec(f"v_add_u32 v8, {64*i}, v0")
        xsec("v_mul_u32_u24 v9, 3641, v8")
        xsec("v_lshrrev_b32 v9, 16, v9")
        xsec("v_mul_u32_u24 v9, 864, v9")
        xsec("v_lshl_add_u32 v8, v8, 4, v9")
        xsec(f"s_mov_b32 m0, {X_LDS + i*1024}")
        xsec("s_nop 0")
        xsec(f"buffer_load_dwordx4 v8, s[{sX}:{sX+3}], s{sOff} offen lds ;#o")
    b.ext(osec); b("s_branch L_k3_join")
    b.label("L_k3_xdma"); b.ext(xsec)
    b.label("L_k3_join")
    rest = Blk()
    rest(f"s_lshl_b32 s{sA}, s{sU}, 9")
    def a_load(sg):
        r = (sg % RING)*4
        return [f"buffer_load_dwordx4 a[{r}:{r+3}], v{vAo}, s[{sWO}:{sWO+3}], s{sA} offen ;#a{sg}",
                f"s_add_u32 s{sA}, s{sA}, {36*512}"]
    rest(f"s_mul_i32 s{sOff}, s{sTB}, 36")
    rest(f"s_add_u32 s{sOff}, s{sOff}, s{sU}")
    rest(f"s_lshl_b32 s{sOff}, s{sOff}, 10")
    rest(f"s_movk_i32 s{sOffL}, 1024")
    rest(f"s_cmp_ge_u32 s{sW}, 4")
    rest(f"s_cselect_b32 s{sOffL}, 0x7f000000, s{sOffL}")
    def p_load(s_):
        r = vP + s_*8
        return [f"buffer_load_dwordx4 v[{r}:{r+3}], v{vL16}, s[{sPT}:{sPT+3}], s{sOff} offen ;#p{s_}",
                f"s_add_u32 s{sTmp}, s{sOff}, s{sOffL}",
                f"buffer_load_dwordx4 v[{r+4}:{r+7}], v{vL16}, s[{sPT}:{sPT+3}], s{sTmp} offen ;#p{s_}",
                f"s_add_u32 s{sOff}, s{sOff}, {SZ_T}"]
    def p_add(s_):
        o = [W.wv(f"p{s_}")]
        for i in range(8):
            r = vP + s_*8 + i
            o += [f"v_lshlrev_b32 v{vTmp}, 16, v{r}", f"v_and_b32 v{r}, 0xffff0000, v{r}",
                  f"v_add_f32 v{T+2*i}, v{T+2*i}, v{vTmp}", f"v_add_f32 v{T+2*i+1}, v{T+2*i+1}, v{r}"]
        return o
    def rdB(ks):
        r = vB + (ks % 3)*4
        return [f"ds_read_b128 v[{r}:{r+3}], v{vL16} offset:{ks*1024}"]
    for s_ in range(4): rest.ext(p_load(s_))
    rest(W.wv("o")); rest("s_barrier")
    if prof and stamp == 1: rest("s_memtime s[76:77]"); rest("s_waitcnt lgkmcnt(0)"); rest("s_sub_u32 s98, s76, s90")
    for g in range(4): rest(f"ds_read_b64 v[{vX+2*g}:{vX+2*g+1}], v{vXr} offset:{g*16}")
    for ks in range(2): rest.ext(rdB(ks))
    rest.ext(p_load(4))
    rest(W.wl(f"v[{vX}:{vX+7}]"))
    for i in range(8):
        rest(f"v_lshlrev_b32 v{T+2*i}, 16, v{vX+i}")
        rest(f"v_and_b32 v{T+2*i+1}, 0xffff0000, v{vX+i}")
    rest.ext(p_add(0)); rest.ext(p_load(5)); rest.ext(p_add(1)); rest.ext(p_load(6)); rest.ext(p_add(2)); rest.ext(p_load(7)); rest.ext(p_add(3))
    na = AHEAD//4
    for k in range(4):
        for sg in range(k*na, (k+1)*na): rest.ext(a_load(sg))
        rest.ext(p_add(4+k))
    if prof and stamp == 2: rest("s_memtime s[76:77]"); rest("s_waitcnt lgkmcnt(0)"); rest("s_sub_u32 s98, s76, s90")
    for ks in range(36):
        ra = (ks % RING)*4; rb = vB + (ks % 3)*4
        rest(W.wv(f"a{ks}"))
        rest(W.wl(f"v[{rb}:{rb+3}]"))
        c = f"v[{T}:{T+15}]" if ks == 0 else f"v[{ACC}:{ACC+15}]"
        rest(f"v_mfma_f32_32x32x16_bf16 v[{ACC}:{ACC+15}], a[{ra}:{ra+3}], v[{rb}:{rb+3}], {c}")
        if ks + AHEAD < 36: rest.ext(a_load(ks + AHEAD))
        if ks + 2 < 36: rest.ext(rdB(ks+2))
    rest("s_nop 7"); rest("s_nop 3")
    if prof and stamp == 3: rest("s_memtime s[76:77]"); rest("s_waitcnt lgkmcnt(0)"); rest("s_sub_u32 s98, s76, s90")
    for i in range(8): rest(f"v_cvt_pk_bf16_f32 v{vX+i}, v{ACC+2*i}, v{ACC+2*i+1}")
    rest("s_nop 1")
    for s_ in range(2):
        rest(f"v_permlane32_swap_b32 v{vX+4*s_}, v{vX+4*s_+2}")
        rest(f"v_permlane32_swap_b32 v{vX+4*s_+1}, v{vX+4*s_+3}")
    sfx = " sc1" if outsc1 else ""
    rest(f"s_add_u32 s{sTmp}, s{sN0}, 32")
    rest(f"s_cmp_ge_u32 s{sW}, 4")
    rest(f"s_cselect_b32 s{sTmp}, 0x7f000000, s{sTmp}")
    rest(f"buffer_store_dwordx4 v[{vX}:{vX+3}], v{vOo}, s[{sOut}:{sOut+3}], s{sN0} offen" + sfx)
    rest(f"buffer_store_dwordx4 v[{vX+4}:{vX+7}], v{vOo}, s[{sOut}:{sOut+3}], s{sTmp} offen" + sfx)
    W.simulate(head + osec.ins + rest.ins)
    W.simulate(head + xsec.ins + rest.ins)
    r_ = W.resolve(rest.ins)
    assert len(check(head + osec.ins + r_, name)) == 0
    assert len(check(head + xsec.ins + r_, name + "_w4")) == 0
    b.ext(r_)
    if prof: prof_end(b, 4, 5)
    b.label("L_k3_end")
    b("s_endpgm")
    return name, kernel_text(name, b.text(), 124 + 96, 124, 100)
if __name__ == "__main__":
    n, t = gen_k3()
    open("k3.s", "w").write('.amdgcn_target "amdgcn-amd-amdhsa--gfx950"\n' + t)
```

```python
import sys
from build import *
from k0 import gen_k0
import k1, k1b
from k2a import gen_attn_kernel, A_LDS
from k2b import gen_down_kernel, B_LDS
from k2 import gen_mix, MIX_LDS
import k3, k3c, k3d
if 'oldk3' in sys.argv: gen_k3, K3_LDS, K3G, K3B = k3.gen_k3, k3.K3_LDS, 288, 256
elif 'k3c' in sys.argv: gen_k3, K3_LDS, K3G, K3B = k3c.gen_k3, k3c.K3_LDS, 256, 320
else: gen_k3, K3_LDS, K3G, K3B = k3d.gen_k3, k3d.K3_LDS, 256, 320
prof = "prof" in sys.argv
out = sys.argv[1]
extra = tuple(a[2:] for a in sys.argv if a.startswith("o:"))
if "old1" in sys.argv: gen_k1, K1_LDS, k1o = k1.gen_k1, k1.K1_LDS, ("wfirst","step3")
else: gen_k1, K1_LDS, k1o = k1b.gen_k1, k1b.K1_LDS, ()
k1o = k1o + extra + (("rt",) if prof else ())
pf = "nopf0" not in sys.argv
pfrows = 576
for a in sys.argv:
    if a.startswith("rows"): pfrows = int(a[4:])
if "mix" in sys.argv:
    order = "da" if "da" in sys.argv else "ad"
    prio = "first" if "p1" in sys.argv else ("second" if "p2" in sys.argv else None)
    cfg = [(gen_k0(prof, pf, pfrows, "not0" not in sys.argv),256,256,4096),(gen_k1("R8", False, k1o),256,512,K1_LDS),(gen_mix(prof, order, prio, tuple(a[2:] for a in sys.argv if a.startswith("a:")), tuple(a[2:] for a in sys.argv if a.startswith("d:"))),512,256,MIX_LDS),(gen_k3(prof, "outsc1" in sys.argv, *([int(a[2:]) for a in sys.argv if a.startswith("s:")])),K3G,K3B,K3_LDS)]
else:
    cfg = [(gen_k0(prof, pf, pfrows, "not0" not in sys.argv),256,256,4096),(gen_k1("R8", False, k1o),256,512,K1_LDS),(gen_attn_kernel(prof),256,256,A_LDS),(gen_down_kernel(prof),256,256,B_LDS),(gen_k3(prof, "outsc1" in sys.argv, *([int(a[2:]) for a in sys.argv if a.startswith("s:")])),K3G,K3B,K3_LDS)]
open(out,"w").write(build_all(cfg))
```

```python
from common import *
K0_LDS = 4096
def ln_part(b):
    b("v_lshrrev_b32 v1, 5, v0")
    b("s_lshl_b32 s3, s2, 3")
    b("v_add_u32 v1, s3, v1")
    b("v_and_b32 v2, 31, v0")
    b("v_mul_u32_u24 v3, 1152, v1")
    b("v_lshl_add_u32 v3, v2, 2, v3")
    b("v_lshrrev_b32 v4, 5, v1")
    b("v_mul_u32_u24 v4, 36864, v4")
    b("v_lshrrev_b32 v5, 3, v2")
    b("v_lshl_add_u32 v4, v5, 10, v4")
    b("v_bfe_u32 v5, v2, 2, 1")
    b("v_lshl_add_u32 v4, v5, 9, v4")
    b("v_and_b32 v5, 31, v1")
    b("v_lshl_add_u32 v4, v5, 4, v4")
    b("v_and_b32 v5, 3, v2")
    b("v_lshl_add_u32 v4, v5, 2, v4")
    b("s_waitcnt lgkmcnt(0)")
    srd(b, 8, 4, SZ_X)
    srd(b, 12, 6, SZ_T, WS_XN)
    X = 8
    for i in range(9): b(f"buffer_load_dword v{X+i}, v3, s[8:11], 0 offen offset:{i*128}")
    L = 20
    for i in range(9):
        b(f"s_waitcnt vmcnt({8-i})")
        b(f"v_lshlrev_b32 v{L+2*i}, 16, v{X+i}")
        b(f"v_and_b32 v{L+2*i+1}, 0xffff0000, v{X+i}")
    def reduce32(r, t):
        b("s_nop 1")
        b(f"v_add_f32_dpp v{r}, v{r}, v{r} quad_perm:[1,0,3,2] row_mask:0xf bank_mask:0xf")
        b("s_nop 1")
        b(f"v_add_f32_dpp v{r}, v{r}, v{r} quad_perm:[2,3,0,1] row_mask:0xf bank_mask:0xf")
        b("s_nop 1")
        b(f"v_add_f32_dpp v{r}, v{r}, v{r} row_half_mirror row_mask:0xf bank_mask:0xf")
        b("s_nop 1")
        b(f"v_add_f32_dpp v{r}, v{r}, v{r} row_mirror row_mask:0xf bank_mask:0xf")
        b("s_nop 0")
        b(f"v_mov_b32 v{t}, v{r}")
        b("s_nop 1")
        b(f"v_permlane16_swap_b32 v{r}, v{t}")
        b("s_nop 0")
        b(f"v_add_f32 v{r}, v{r}, v{t}")
    b(f"v_add_f32 v40, v{L}, v{L+1}")
    b(f"v_add_f32 v41, v{L+2}, v{L+3}")
    for i in range(2, 9):
        b(f"v_add_f32 v40, v40, v{L+2*i}")
        b(f"v_add_f32 v41, v41, v{L+2*i+1}")
    b("v_add_f32 v40, v40, v41")
    reduce32(40, 42)
    b(f"v_mul_f32 v40, {f32hex(1.0/576)}, v40")
    b(f"v_sub_f32 v43, v{L}, v40")
    b(f"v_mul_f32 v44, v43, v43")
    b(f"v_sub_f32 v43, v{L+1}, v40")
    b(f"v_mul_f32 v45, v43, v43")
    for i in range(1, 9):
        b(f"v_sub_f32 v43, v{L+2*i}, v40")
        b(f"v_sub_f32 v46, v{L+2*i+1}, v40")
        b(f"v_fmac_f32 v44, v43, v43")
        b(f"v_fmac_f32 v45, v46, v46")
    b("v_add_f32 v44, v44, v45")
    reduce32(44, 42)
    b(f"v_mul_f32 v44, {f32hex(1.0/576)}, v44")
    b("v_cvt_pk_bf16_f32 v45, v40, v44")
    b("v_lshlrev_b32 v40, 16, v45")
    b("v_and_b32 v44, 0xffff0000, v45")
    b(f"v_add_f32 v44, {f32hex(1e-5)}, v44")
    b("v_cvt_pk_bf16_f32 v44, v44, v44")
    b("v_and_b32 v44, 0xffff0000, v44")
    b("v_sqrt_f32 v44, v44")
    b("s_nop 0")
    b("v_cvt_pk_bf16_f32 v44, v44, v44")
    b("v_and_b32 v44, 0xffff0000, v44")
    b("v_rcp_f32 v44, v44")
    for i in range(9):
        b(f"v_sub_f32 v{L+2*i}, v{L+2*i}, v40")
        b(f"v_sub_f32 v{L+2*i+1}, v{L+2*i+1}, v40")
        b(f"v_cvt_pk_bf16_f32 v{X+i}, v{L+2*i}, v{L+2*i+1}")
    for i in range(9):
        b(f"v_lshlrev_b32 v{L+2*i}, 16, v{X+i}")
        b(f"v_and_b32 v{L+2*i+1}, 0xffff0000, v{X+i}")
        b(f"v_mul_f32 v{L+2*i}, v{L+2*i}, v44")
        b(f"v_mul_f32 v{L+2*i+1}, v{L+2*i+1}, v44")
        b(f"v_cvt_pk_bf16_f32 v{X+i}, v{L+2*i}, v{L+2*i+1}")
        b(f"s_mov_b32 s16, {i*4096}")
        b(f"buffer_store_dword v{X+i}, v4, s[12:15], s16 offen")

def aux_part(b, r128):
    b(f"s_load_dwordx2 s[20:21], s[0:1], {KA_WG}")
    b(f"s_load_dwordx2 s[24:25], s[0:1], {KA_WU}")
    b(f"s_load_dwordx2 s[28:29], s[0:1], {KA_WQKV}")
    b(f"s_load_dwordx2 s[36:37], s[0:1], {KA_WO}")
    b("v_readfirstlane_b32 s34, v0")
    b("v_and_b32 v53, 63, v0")
    b("s_lshr_b32 s34, s34, 6")
    b("s_lshl_b32 s35, s2, 2")
    b("s_add_u32 s35, s35, s34")
    b("s_mul_i32 s40, s35, 3641")
    b("s_lshr_b32 s40, s40, 16")
    b("s_mul_i32 s41, s40, 18")
    b("s_sub_u32 s41, s35, s41")
    b("v_lshrrev_b32 v54, 2, v53")
    b("v_mul_u32_u24 v55, 1152, v54")
    b("v_bfe_u32 v64, v54, 2, 1")
    b("v_lshlrev_b32 v64, 2, v64")
    b("v_lshrrev_b32 v65, 3, v54")
    b("v_lshlrev_b32 v65, 1, v65")
    b("v_add_u32 v64, v64, v65")
    b("v_bfe_u32 v65, v54, 1, 1")
    b("v_add_u32 v64, v64, v65")
    b("v_mul_u32_u24 v64, 18, v64")
    b("v_and_b32 v65, 1, v54")
    b("v_add_u32 v64, v64, v65")
    b("v_add_u32 v64, 16, v64")
    b("v_mul_u32_u24 v64, 1152, v64")
    b("s_cmp_lt_u32 s40, 32")
    b("s_cselect_b64 vcc, -1, 0")
    b("v_cndmask_b32 v55, v64, v55, vcc")
    b("v_and_b32 v65, 3, v53")
    b("v_lshl_add_u32 v55, v65, 4, v55")
    b(f"s_mul_i32 s42, s40, {18*1152}")
    b("s_sub_u32 s43, s40, 32")
    b(f"s_mul_i32 s43, s43, {8*18*1152}")
    b("s_cmp_lt_u32 s40, 32")
    b("s_cselect_b32 s42, s42, s43")
    b("s_lshl_b32 s43, s41, 6")
    b("s_add_u32 s42, s42, s43")
    b("s_cmp_lt_u32 s35, 648")
    b("s_cselect_b32 s42, s42, 0x7f000000")
    b("s_waitcnt lgkmcnt(0)")
    b(f"s_mov_b32 s38, {SZ_WO}"); b("s_mov_b32 s39, 0x20000")
    b("s_lshl_b32 s43, s34, 10")
    b("s_mov_b32 m0, s43")
    b("s_nop 0")
    b("buffer_load_dwordx4 v55, s[36:39], s42 offen lds")
    for base, size in ((20, SZ_WG), (24, SZ_WG), (28, SZ_WQKV)):
        b(f"s_mov_b32 s{base+2}, {size}"); b(f"s_mov_b32 s{base+3}, 0x20000")
    b("s_and_b32 s17, s2, 7")
    b("s_bfe_u32 s18, s2, 0x20003")
    b("s_lshl_b32 s18, s18, 3")
    b("s_add_u32 s17, s17, s18")
    b("s_lshr_b32 s18, s2, 5")
    b("s_mul_i32 s18, s18, 72")
    b("s_mul_i32 s19, s17, 5")
    if r128:
        b("s_add_u32 s19, s19, 1"); b("s_and_b32 s19, s19, -2")
    b("s_lshl_b32 s32, s17, 2")
    b("s_add_u32 s32, s32, 16")
    b("s_cmp_lt_u32 s17, 16")
    b("s_cselect_b32 s19, s19, s32")
    b("s_lshl_b32 s19, s19, 6")
    b("s_mul_i32 s32, s18, 9216")
    b("s_add_u32 s19, s19, s32")
    b("s_lshl_b32 s33, s17, 6")
    b("s_mul_i32 s32, s18, 3456")
    b("s_add_u32 s33, s33, s32")
    for n in range(3):
        b(f"v_add_u32 v50, {256*n}, v0")
        b("v_lshrrev_b32 v51, 3, v50")
        b("v_mul_u32_u24 v51, 9216, v51")
        b("v_and_b32 v52, 7, v50")
        b("v_lshl_add_u32 v51, v52, 4, v51")
        if n == 2:
            b("v_cmp_gt_u32 vcc, 576, v50")
            b("v_mov_b32 v52, 0x7f000000")
            b("s_nop 0")
            b("v_cndmask_b32 v51, v52, v51, vcc")
        b(f"buffer_load_dwordx4 v[56:59], v51, s[20:23], s19 offen")
        b(f"buffer_load_dwordx4 v[60:63], v51, s[24:27], s19 offen")
    for n in range(2):
        b(f"v_add_u32 v50, {256*n}, v0")
        b("v_lshrrev_b32 v51, 2, v50")
        b("v_mul_u32_u24 v51, 3456, v51")
        b("v_and_b32 v52, 3, v50")
        b("v_lshl_add_u32 v51, v52, 4, v51")
        if n == 1:
            b("v_cmp_gt_u32 vcc, 288, v50")
            b("v_mov_b32 v52, 0x7f000000")
            b("s_nop 0")
            b("v_cndmask_b32 v51, v52, v51, vcc")
        b(f"buffer_load_dwordx4 v[56:59], v51, s[28:31], s33 offen")
    b("v_lshrrev_b32 v54, 5, v53")
    b("v_lshlrev_b32 v54, 8, v54")
    b("v_bfe_u32 v55, v53, 2, 2")
    b("v_lshl_add_u32 v54, v55, 6, v54")
    b("v_bfe_u32 v55, v53, 4, 1")
    b("v_lshl_add_u32 v54, v55, 5, v54")
    b("v_and_b32 v55, 3, v53")
    b("v_lshl_add_u32 v54, v55, 3, v54")
    b("v_add_u32 v54, s43, v54")
    b("v_bfe_u32 v55, v53, 4, 1")
    b("v_lshlrev_b32 v55, 9, v55")
    b("v_lshrrev_b32 v64, 5, v53")
    b("v_lshl_add_u32 v55, v64, 8, v55")
    b("v_and_b32 v64, 15, v53")
    b("v_lshl_add_u32 v55, v64, 4, v55")
    b("s_mul_i32 s42, s40, 36")
    b("s_lshl_b32 s44, s41, 1")
    b("s_add_u32 s42, s42, s44")
    b("s_lshl_b32 s42, s42, 9")
    b("s_cmp_lt_u32 s35, 648")
    b("s_cselect_b32 s42, s42, 0x7f000000")
    srd(b, 36, 6, SZ_WO, WS_WOF)
    b("s_waitcnt vmcnt(8)")
    b("ds_read_b64_tr_b16 v[66:67], v54")
    b("ds_read_b64_tr_b16 v[68:69], v54 offset:512")
    b("s_waitcnt lgkmcnt(0)")
    b("buffer_store_dwordx4 v[66:69], v55, s[36:39], s42 offen")

def gen_k0(prof=False, r128=False, opts=()):
    name = "ln_kernel"
    b = Blk(name)
    b("s_cmp_ge_u32 s2, 256")
    b("s_cbranch_scc1 L_k0_end")
    if prof: prof_begin(b)
    b(f"s_load_dwordx2 s[4:5], s[0:1], {KA_X}")
    b(f"s_load_dwordx2 s[6:7], s[0:1], {KA_WS}")
    b("v_readfirstlane_b32 s45, v0")
    b("s_nop 3")
    b("s_cmp_ge_u32 s45, 256")
    b("s_cbranch_scc1 L_k0_aux")
    l = Blk(); ln_part(l); check(l.ins, "ln")
    b.ext(l)
    b("s_branch L_k0_done")
    b.label("L_k0_aux")
    b("v_subrev_u32 v0, 256, v0")
    b("s_nop 0")
    aux_part(b, r128)
    if "k0wait" in opts: b("s_waitcnt vmcnt(0)")
    b.label("L_k0_done")
    if prof: prof_end(b, 0, 8)
    b.label("L_k0_end")
    b("s_endpgm")
    return name, kernel_text(name, b.text(), 72, 72, 100)
```

```python
from common import *
import math
HALF = 73728; SCR = 2*HALF; K1_LDS = SCR + 1024
C1 = -2.0*math.sqrt(2.0/math.pi)*math.log2(math.e); C2 = C1*0.044715
QSCALE = (18.0**-0.5)*math.log2(math.e)
sWS, sWQp, sWGp, sWUp = 4, 6, 8, 10
sXN, sLD, sH, sO, sWP, sWQ = 12, 16, 20, 24, 28, 48
sWD = 12
sWDp = 58
sR2, sR3, sR4, sD1, sD2 = 52, 53, 54, 55, 56
vDF = 11
vFF = [12, 13, 14, 15]
sW, sTB, sN1, sPh, sT, sP, sHoff, sW1024, sLDo, sLDs, sTmp, sTmp2, sScale, sOff, sRB, sCG = range(32, 48)
vL16, vL8, vDQ, vDP, vLD, vC2 = 1, 2, 3, 4, 5, 6
vTR = [7, 8, 9, 10]
vT = 12
ACC = [(16, 32), (48, 64)]
X = 80
SACC = 96
OPT = set()
W = None
PRE = 2

def gelu_epilogue(G, U, delta='2048'):
    e = []
    for grp in range(4):
        E = [4*grp+i for i in range(4)]
        e += [f"v_mul_f32 v{vT+i}, v{G+E[i]}, v{G+E[i]}" for i in range(4)]
        e += [f"v_fmaak_f32 v{vT+i}, v{vT+i}, v{vC2}, {f32hex(C1)}" for i in range(4)]
        e += [f"v_mul_f32 v{vT+i}, v{vT+i}, v{G+E[i]}" for i in range(4)]
        e += [f"v_exp_f32 v{vT+i}, v{vT+i}" for i in range(4)]
        e += [f"v_mul_f32 v{G+E[i]}, v{G+E[i]}, v{U+E[i]}" for i in range(4)]
        e += [f"v_add_f32 v{vT+i}, 1.0, v{vT+i}" for i in range(4)]
        e += [f"v_rcp_f32 v{vT+i}, v{vT+i}" for i in range(4)]
        e += [f"v_mul_f32 v{G+E[i]}, v{G+E[i]}, v{vT+i}" for i in range(4)]
        e += [f"v_cvt_pk_bf16_f32 v{U+2*grp}, v{G+4*grp}, v{G+4*grp+1}",
              f"v_cvt_pk_bf16_f32 v{U+2*grp+1}, v{G+4*grp+2}, v{G+4*grp+3}"]
        if grp % 2 == 1:
            s = grp//2
            e += [f"buffer_store_dwordx4 v[{U+4*s}:{U+4*s+3}], v{vL16}, s[{sH}:{sH+3}], s{sHoff} offen offset:{s*1024}" + ("" if "plainst" in OPT else " sc1")]
    e.append(f"s_add_u32 s{sHoff}, s{sHoff}, {delta}")
    return e

def lds_loc(half, off):
    if off < 65536 - 512: return vTR[2*half], off
    return vTR[2*half+1], off - 65536
def frag_reads(half, off, r):
    base, o = lds_loc(half, off)
    return [f"ds_read_b64_tr_b16 v[{r}:{r+1}], v{base} offset:{o}",
            f"ds_read_b64_tr_b16 v[{r+2}:{r+3}], v{base} offset:{o+256}"]
def poff(ks, mat): return (ks//4)*8192 + ((ks % 4)*2 + mat)*1024
def preg(ks, mat): return X + (ks % 3)*8 + mat*4
def pair_reads(half, ks, mat): return frag_reads(half, poff(ks, mat), preg(ks, mat))
def sreg(ks): return X + (ks % 4)*4
def single_reads(half, ks): return frag_reads(half, ks*1024, sreg(ks))
def ffreg(ks, m): return X + ((ks*4 + m) % 8)*4
def ff_reads(ks, m):
    if "r128" not in OPT: return frag_reads(m//2, poff(ks, m % 2), ffreg(ks, m))
    t = m//2; off = poff(ks, m % 2); r = ffreg(ks, m)
    base = vFF[2*t] if off < 65536 else vFF[2*t+1]
    o = off if off < 65536 else off - 65536
    return [f"ds_read_b64_tr_b16 v[{r}:{r+1}], v{base} offset:{o}",
            f"ds_read_b64_tr_b16 v[{r+2}:{r+3}], v{base} offset:{o+512}"]

def loader(i, half):
    return [f"s_add_u32 m0, s{sW1024}, {half*HALF + i*8192}",
            f"s_nop 0",
            f"buffer_load_dwordx4 v{vLD}, s[{sLD}:{sLD+3}], s{sLDo} offen lds ;#ld",
            f"s_add_u32 s{sLDo}, s{sLDo}, s{sLDs}"]
def next_reads(half, kind):
    if kind == "pair": return pair_reads(half, 0, 0) + pair_reads(half, 0, 1), pair_reads(half, 1, 0) + pair_reads(half, 1, 1)
    return single_reads(half, 0) + single_reads(half, 1), single_reads(half, 2)
def place(main, extra):
    out = []; a = 0
    for s in main:
        out.append(s)
        if s.startswith("v_mfma"):
            out += extra.get(a, []); a += 1
    return out

def pair_body(cur, half, nxt_kind, pf=(), delta="2048"):
    G, U = ACC[cur]; Gp, Up = ACC[1-cur]
    main = []
    for ks in range(36):
        if ks == 35: main += [W.wv("ld"), "s_waitcnt lgkmcnt(0)", "s_barrier"]
        for mat, A in ((0, G), (1, U)):
            r = preg(ks, mat)
            if ks != 35: main.append(W.wl(f"v[{r}:{r+3}]"))
            c = "0" if ks == 0 else f"v[{A}:{A+15}]"
            main.append(f"v_mfma_f32_32x32x16_bf16 v[{A}:{A+15}], v[{r}:{r+3}], a[{4*ks}:{4*ks+3}], {c}")
            if ks + 2 < 36: main += pair_reads(half, ks+2, mat)
            if ks == 35: main += next_reads(1-half, nxt_kind)[mat]
    extra = {}
    for i in range(9): extra.setdefault(2*i + 1, []).extend(loader(i, 1-half))
    for q, op in enumerate(pf): extra.setdefault(21 + 4*q, []).extend(op)
    main = place(main, extra)
    return interleave(main, gelu_epilogue(Gp, Up, delta), start=3, end=66)

def stream_ops(j):
    ops = []
    for h in range(2):
        if "r128" in OPT:
            ops.append([f"s_add_u32 m0, s{sW1024}, {h*HALF + j*8192}",
                        f"s_add_u32 s{sTmp}, s{sP}, {4*j*147456 + 8*9216*h}",
                        f"buffer_load_dwordx4 v{vDF}, s[{sWP}:{sWP+3}], s{sTmp} offen lds ;#w{j}"])
            continue
        ops.append([f"s_add_u32 m0, s{sW1024}, {h*HALF + j*8192}",
                    f"s_add_u32 s{sTmp}, s{sP}, {4*j*147456 + 64*h}",
                    f"buffer_load_dwordx4 v{vDP}, s[{sWP}:{sWP+3}], s{sTmp} offen lds ;#w{j}"])
    for q in range(4):
        ks = 4*j + q
        o = []
        if q == 0 and j: o.append(f"s_add_u32 s{sOff}, s{sOff}, 4096")
        o.append(f"buffer_load_dwordx4 a[{4*ks}:{4*ks+3}], v{vL16}, s[{sXN}:{sXN+3}], s{sOff} offen offset:{q*1024} ;#x{ks}")
        ops.append(o)
    return ops

def t0_loader(i):
    return [f"s_add_u32 m0, s{sW1024}, {i*8192}",
            f"s_add_u32 s{sTmp}, s{sLDo}, {i*8*55296}",
            f"buffer_load_dwordx4 v{vDQ}, s[{sWQ}:{sWQ+3}], s{sTmp} offen lds ;#ld"]

def l2_prefetch():
    ops = []
    for q in (2, 3, 4):
        o = [f"s_mul_i32 s{sTmp}, s{sRB}, {4*147456}",
             f"s_add_u32 s{sTmp}, s{sTmp}, s{sP}",
             f"s_add_u32 s{sTmp}, s{sTmp}, s{ {2: sR2, 3: sR3, 4: sR4}[q] }"]
        if q == 4:
            o += [f"s_cmp_lt_u32 s{sCG}, 16", f"s_cselect_b32 s{sTmp}, s{sTmp}, 0x7f000000"]
        o += [f"s_mov_b32 m0, {SCR}", "s_nop 0",
              f"buffer_load_dwordx4 v{vDP}, s[{sWP}:{sWP+3}], s{sTmp} offen lds ;#pf"]
        ops.append(o)
    for q in (1, 2):
        o = [f"s_mul_i32 s{sTmp}, s{sRB}, {8*55296}",
             f"s_add_u32 s{sTmp}, s{sTmp}, s{sLDo}",
             f"s_add_u32 s{sTmp}, s{sTmp}, {16*64*q}",
             f"s_sub_u32 s{sTmp2}, s{sCG}, 16",
             f"s_cmp_lt_u32 s{sTmp2}, {16 if q == 1 else 6}",
             f"s_cselect_b32 s{sTmp}, s{sTmp}, 0x7f000000",
             f"s_mov_b32 m0, {SCR}", "s_nop 0",
             f"buffer_load_dwordx4 v{vDQ}, s[{sWQ}:{sWQ+3}], s{sTmp} offen lds ;#pf"]
        ops.append(o)
    return ops

def wd_prefetch():
    ops = []
    for n in range(3):
        ops.append([f"s_lshr_b32 s{sTmp}, s2, 3",
                    f"s_lshl_b32 s{sTmp}, s{sTmp}, 3",
                    f"s_add_u32 s{sTmp}, s{sTmp}, s{sW}",
                    f"s_add_u32 s{sTmp}, s{sTmp}, {256*n}",
                    f"s_lshl_b32 s{sTmp}, s{sTmp}, 10",
                    f"s_cmp_lt_u32 s{sTmp}, {576*1152}",
                    f"s_cselect_b32 s{sTmp}, s{sTmp}, 0x7f000000",
                    f"s_and_b32 s{sTmp2}, s2, 7",
                    f"s_mul_i32 s{sTmp2}, s{sTmp2}, {576*1152}",
                    f"s_add_u32 s{sTmp}, s{sTmp}, s{sTmp2}",
                    f"s_mov_b32 m0, {SCR}", "s_nop 0",
                    f"buffer_load_dwordx4 v{vL16}, s[{sWD}:{sWD+3}], s{sTmp} offen lds ;#pf"])
    return ops

def ff2_body():
    main = []
    accs = [ACC[0][0], ACC[0][1], ACC[1][0], ACC[1][1]]
    for ks in range(36):
        if ks % 4 == 0 and 0 < ks < 32:
            main.append(W.wv(f"w{ks//4+1}")); main.append("s_barrier")
            if "fstamp" in OPT: main += [f"s_memtime s[{70+2*(ks//4)}:{71+2*(ks//4)}]", "s_waitcnt lgkmcnt(0)"]
        if ks == 35: main += [W.wv("ld"), "s_waitcnt lgkmcnt(0)", "s_barrier"]
        for m in range(4):
            r = ffreg(ks, m); A = accs[m]
            if m == 0: main.append(W.wv(f"x{ks}"))
            if ks != 35: main.append(W.wl(f"v[{r}:{r+3}]"))
            c = "0" if ks == 0 else f"v[{A}:{A+15}]"
            main.append(f"v_mfma_f32_32x32x16_bf16 v[{A}:{A+15}], v[{r}:{r+3}], a[{4*ks}:{4*ks+3}], {c}")
            if ks + 1 < 36: main += ff_reads(ks+1, m)
            if ks == 35 and m < 2: main += next_reads(0, "single")[m]
    extra = {}
    for j in range(9 - PRE):
        for q, op in enumerate(stream_ops(j + PRE)): extra.setdefault(16*j + 2*q + 1, []).extend(op)
    for i in range(5): extra.setdefault(16*(i+1) + 14, []).extend(t0_loader(i))
    if "nopf" not in OPT:
        for q, op in enumerate(l2_prefetch()): extra.setdefault(16*7 + 3 + 4*q, []).extend(op)
    return place(main, extra)

def single_epilogue(isV):
    A = SACC
    b = Blk()
    if isV:
        b(f"s_sub_u32 s{sTmp}, s{sT}, 36")
        b(f"s_lshl_b32 s{sTmp}, s{sTmp}, 11")
        b(f"s_add_u32 s{sTmp}, s{sTmp}, {2*SZ_T}")
    else:
        b(f"s_cmp_ge_u32 s{sT}, 18")
        b(f"s_cselect_b32 s{sTmp}, {SZ_T - 18*2048}, 0")
        b(f"s_cselect_b32 s{sScale}, 1.0, {f32hex(QSCALE)}")
        b(f"s_lshl_b32 s{sTmp2}, s{sT}, 11")
        b(f"s_add_u32 s{sTmp}, s{sTmp}, s{sTmp2}")
    b(f"s_mul_i32 s{sTmp2}, s{sTB}, 36864")
    b(f"s_add_u32 s{sTmp}, s{sTmp}, s{sTmp2}")
    b("s_nop 3")
    if not isV:
        for i in range(16): b(f"v_mul_f32 v{A+i}, s{sScale}, v{A+i}")
    for i in range(8): b(f"v_cvt_pk_bf16_f32 v{A+i}, v{A+2*i}, v{A+2*i+1}")
    if isV:
        b("s_nop 1")
        for s in range(2):
            b(f"v_permlane32_swap_b32 v{A+4*s}, v{A+4*s+2}")
            b(f"v_permlane32_swap_b32 v{A+4*s+1}, v{A+4*s+3}")
        b("s_nop 0")
        for s in range(2):
            b(f"buffer_store_dwordx4 v[{A+4*s}:{A+4*s+3}], v{vL16}, s[{sO}:{sO+3}], s{sTmp} offen offset:{s*1024}" + ("" if "plainqkv" in OPT else " sc1"))
    else:
        for g in range(4):
            b(f"buffer_store_dwordx2 v[{A+2*g}:{A+2*g+1}], v{vL8}, s[{sO}:{sO+3}], s{sTmp} offen offset:{g*512}" + ("" if "plainqkv" in OPT else " sc1"))
    b(f"s_add_u32 s{sT}, s{sT}, 16")
    b("s_nop 0")
    return b.ins

def single_body(isV, half, gelu_set, nxt_kind, nld):
    A = SACC
    main = []
    for ks in range(36):
        r = sreg(ks)
        if ks == 35: main += [W.wv("ld"), "s_waitcnt lgkmcnt(0)", "s_barrier"]
        else: main.append(W.wl(f"v[{r}:{r+3}]"))
        c = "0" if ks == 0 else f"v[{A}:{A+15}]"
        if isV: main.append(f"v_mfma_f32_32x32x16_bf16 v[{A}:{A+15}], a[{4*ks}:{4*ks+3}], v[{r}:{r+3}], {c}")
        else:   main.append(f"v_mfma_f32_32x32x16_bf16 v[{A}:{A+15}], v[{r}:{r+3}], a[{4*ks}:{4*ks+3}], {c}")
        if ks + 3 < 36: main += single_reads(half, ks+3)
        if ks == 35:
            a, bb = next_reads(1-half, nxt_kind); main += a + bb
    extra = {}
    for i in range(nld): extra.setdefault(2*i + 1, []).extend(loader(i, 1-half))
    main = place(main, extra)
    if gelu_set is not None: main = interleave(main, gelu_epilogue(*ACC[gelu_set]), start=3, end=34)
    return main + single_epilogue(isV)

def ld_pair(q):
    return [f"s_mov_b32 s{sLD}, s{sWP}", f"s_mov_b32 s{sLD+1}, s{sWP+1}", f"s_mov_b32 s{sLD+2}, {SZ_WG}",
            f"s_add_u32 s{sLDo}, s{sP}, s{ {2: sR2, 3: sR3, 4: sR4}[q] }", f"s_mov_b32 s{sLDs}, {4*147456}", f"v_mov_b32 v{vLD}, v{vDP}"]
def ld_single(add, cond=None):
    o = [f"s_mov_b32 s{sLD}, s{sWQ}", f"s_mov_b32 s{sLD+1}, s{sWQ+1}"]
    if cond is None: o.append(f"s_mov_b32 s{sLD+2}, {SZ_WQKV}")
    else: o += cond + [f"s_cselect_b32 s{sLD+2}, {SZ_WQKV}, 0"]
    o += [f"s_add_u32 s{sLDo}, s{sT}, {add}", f"s_lshl_b32 s{sLDo}, s{sLDo}, 6",
          f"s_mul_i32 s{sTmp}, s{sW}, 55296", f"s_add_u32 s{sLDo}, s{sLDo}, s{sTmp}",
          f"s_mov_b32 s{sLDs}, {8*55296}", f"v_mov_b32 v{vLD}, v{vDQ}"]
    return o
def ld_none(): return [f"s_mov_b32 s{sLD+2}, 0"]

def stamp(b, i, on):
    if on:
        b(f"s_memtime s[{60+2*i}:{61+2*i}]")
        b("s_waitcnt lgkmcnt(0)")

def gen_k1(xmap="R8", prof=False, opts=()):
    global W, PRE
    OPT.clear(); OPT.update(opts)
    PRE = 2
    for o in opts:
        if o.startswith("pre"): PRE = int(o[3:])
    W = Waits()
    name = "gemm1_kernel"
    b = Blk(name)
    stamp(b, 0, prof)
    b("s_cmp_ge_u32 s2, 256")
    b("s_cbranch_scc1 L_k1_end")
    if "rt" in OPT: prof_begin(b)
    b(f"s_load_dwordx2 s[{sWS}:{sWS+1}], s[0:1], {KA_WS}")
    b(f"s_load_dwordx2 s[{sWQp}:{sWQp+1}], s[0:1], {KA_WQKV}")
    b(f"s_load_dwordx2 s[{sWGp}:{sWGp+1}], s[0:1], {KA_WG}")
    b(f"s_load_dwordx2 s[{sWUp}:{sWUp+1}], s[0:1], {KA_WU}")
    b(f"s_load_dwordx2 s[{sWDp}:{sWDp+1}], s[0:1], {KA_WD}")
    b(f"v_readfirstlane_b32 s{sW}, v0")
    b("v_and_b32 v0, 63, v0")
    b(f"s_lshr_b32 s{sW}, s{sW}, 6")
    b(f"v_lshlrev_b32 v{vL16}, 4, v0")
    b(f"v_lshlrev_b32 v{vL8}, 3, v0")
    b("v_lshrrev_b32 v12, 2, v0")
    b("v_and_b32 v13, 3, v0")
    b("v_lshlrev_b32 v13, 4, v13")
    b(f"v_mul_u32_u24 v{vDQ}, 3456, v12")
    b(f"v_add_u32 v{vDQ}, v{vDQ}, v13")
    b(f"v_mul_u32_u24 v{vDP}, 9216, v12")
    b(f"v_add_u32 v{vDP}, v{vDP}, v13")
    b(f"v_mov_b32 v{vLD}, v{vDP}")
    b("v_lshrrev_b32 v12, 5, v0")
    b("v_lshlrev_b32 v12, 9, v12")
    b("v_bfe_u32 v13, v0, 2, 2")
    b("v_lshl_add_u32 v12, v13, 6, v12")
    b("v_bfe_u32 v13, v0, 4, 1")
    b("v_lshl_add_u32 v12, v13, 5, v12")
    b("v_and_b32 v13, 3, v0")
    b(f"v_lshl_add_u32 v{vTR[0]}, v13, 3, v12")
    b(f"v_add_u32 v{vTR[1]}, 0x10000, v{vTR[0]}")
    b(f"v_add_u32 v{vTR[2]}, {HALF}, v{vTR[0]}")
    b(f"v_add_u32 v{vTR[3]}, {HALF + 65536}, v{vTR[0]}")
    b(f"v_mov_b32 v{vC2}, {f32hex(C2)}")
    if "r128" in OPT:
        b("v_lshrrev_b32 v12, 3, v0")
        b(f"v_mul_u32_u24 v{vDF}, 9216, v12")
        b("v_bfe_u32 v13, v0, 4, 1")
        b("v_bfe_u32 v14, v0, 2, 1")
        b("v_xor_b32 v13, v13, v14")
        b(f"v_lshl_add_u32 v{vDF}, v13, 6, v{vDF}")
        b("v_and_b32 v13, 3, v0")
        b(f"v_lshl_add_u32 v{vDF}, v13, 4, v{vDF}")
        b("v_lshrrev_b32 v16, 5, v0")
        b(f"v_mul_u32_u24 v16, {HALF}, v16")
        b("v_bfe_u32 v17, v0, 2, 2")
        b("v_lshl_add_u32 v16, v17, 7, v16")
        b("v_bfe_u32 v17, v0, 4, 1")
        b("v_lshl_add_u32 v16, v17, 5, v16")
        b("v_and_b32 v17, 3, v0")
        b("v_lshl_add_u32 v16, v17, 3, v16")
        b("v_bfe_u32 v17, v0, 3, 1")
        b(f"v_lshl_add_u32 v{vFF[0]}, v17, 6, v16")
        b(f"v_xor_b32 v17, 1, v17")
        b(f"v_lshl_add_u32 v{vFF[2]}, v17, 6, v16")
        b(f"v_add_u32 v{vFF[1]}, 0x10000, v{vFF[0]}")
        b(f"v_add_u32 v{vFF[3]}, 0x10000, v{vFF[2]}")
    b(f"s_and_b32 s{sCG}, s2, 7")
    b(f"s_lshr_b32 s{sTmp}, s2, 3")
    b(f"s_and_b32 s{sTmp}, s{sTmp}, 3")
    b(f"s_lshl_b32 s{sTmp}, s{sTmp}, 3")
    b(f"s_add_u32 s{sCG}, s{sCG}, s{sTmp}")
    b(f"s_lshr_b32 s{sRB}, s2, 5")
    b(f"s_lshl_b32 s{sTB}, s{sRB}, 3")
    b(f"s_add_u32 s{sTB}, s{sTB}, s{sW}")
    b(f"s_mul_i32 s{sP}, s{sCG}, 5")
    b(f"s_lshl_b32 s{sTmp}, s{sCG}, 2")
    b(f"s_add_u32 s{sTmp}, s{sTmp}, 16")
    b(f"s_cmp_lt_u32 s{sCG}, 16")
    b(f"s_cselect_b32 s{sP}, s{sP}, s{sTmp}")
    if "r128" in OPT:
        b(f"s_and_b32 s{sTmp}, s{sP}, 1")
        b(f"s_add_u32 s{sP}, s{sP}, s{sTmp}")
        b(f"s_cmp_eq_u32 s{sTmp}, 0")
        b(f"s_movk_i32 s{sR2}, 128")
        b(f"s_cselect_b32 s{sR2}, s{sR2}, {-64 & 0xffffffff}")
        b(f"s_cselect_b32 s{sR3}, 192, 128") if False else None
        b(f"s_movk_i32 s{sR3}, 192"); b(f"s_movk_i32 s{sR4}, 256")
        b(f"s_cselect_b32 s{sTmp2}, 0, 64")
        b(f"s_sub_u32 s{sR3}, s{sR3}, s{sTmp2}")
        b(f"s_sub_u32 s{sR4}, s{sR4}, s{sTmp2}")
        b(f"s_cmp_eq_u32 s{sTmp}, 0")
        b(f"s_movk_i32 s{sD1}, 2048"); b(f"s_movk_i32 s{sD2}, 2048")
        b(f"s_cselect_b32 s{sD1}, s{sD1}, {-4096 & 0xffffffff}")
        b(f"s_cselect_b32 s{sD2}, s{sD2}, 6144")
    else:
        b(f"s_movk_i32 s{sR2}, 128"); b(f"s_movk_i32 s{sR3}, 192"); b(f"s_movk_i32 s{sR4}, 256")
        b(f"s_movk_i32 s{sD1}, 2048"); b(f"s_movk_i32 s{sD2}, 2048")
    b(f"s_mov_b32 s{sT}, s{sCG}")
    b(f"s_mov_b32 s{sPh}, 0")
    b(f"s_mul_i32 s{sHoff}, s{sTB}, 288")
    b(f"s_lshl_b32 s{sTmp}, s{sP}, 1")
    b(f"s_add_u32 s{sHoff}, s{sHoff}, s{sTmp}")
    b(f"s_lshl_b32 s{sHoff}, s{sHoff}, 10")
    b(f"s_lshl_b32 s{sP}, s{sP}, 6")
    b(f"s_lshr_b32 s{sTmp}, s{sW}, 1")
    b(f"s_mul_i32 s{sTmp}, s{sTmp}, 147456")
    b(f"s_add_u32 s{sP}, s{sP}, s{sTmp}")
    b(f"s_lshl_b32 s{sW1024}, s{sW}, 10")
    b(f"s_lshl_b32 s{sLDo}, s{sT}, 6")
    b(f"s_mul_i32 s{sTmp}, s{sW}, 55296")
    b(f"s_add_u32 s{sLDo}, s{sLDo}, s{sTmp}")
    b("s_waitcnt lgkmcnt(0)")
    srd(b, sXN, sWS, SZ_T, WS_XN)
    b(f"s_and_b32 s{sTmp}, s{sW}, 1")
    b(f"s_cmp_eq_u32 s{sTmp}, 0")
    b(f"s_cselect_b32 s{sWP}, s{sWGp}, s{sWUp}")
    b(f"s_cselect_b32 s{sWP+1}, s{sWGp+1}, s{sWUp+1}")
    b(f"s_mov_b32 s{sWP+2}, {SZ_WG}")
    b(f"s_mov_b32 s{sWP+3}, 0x20000")
    srd(b, sWQ, sWQp, SZ_WQKV)
    srd(b, sLD, sWQp, SZ_WQKV)
    srd(b, sH, sWS, SZ_H, WS_H)
    srd(b, sO, sWS, 3*SZ_T, WS_Q)
    b(f"s_mul_i32 s{sOff}, s{sTB}, 36864")
    so = [stream_ops(j) for j in range(PRE)]
    for j in range(PRE):
        b.ext(so[j][0]); b.ext(so[j][1])
    for j in range(PRE):
        for op in so[j][2:]: b.ext(op)
    if "noself" not in OPT:
        b(f"s_add_u32 s{sTmp2}, s{sRB}, 1")
        b(f"s_mul_i32 s{sTmp2}, s{sTmp2}, {4*147456}")
        b(f"s_add_u32 s{sTmp2}, s{sTmp2}, s{sP}")
        for h in range(2):
            b(f"s_mov_b32 m0, {SCR}")
            b(f"s_add_u32 s{sTmp}, s{sTmp2}, {64*h}")
            b(f"buffer_load_dwordx4 v{vDP}, s[{sWP}:{sWP+3}], s{sTmp} offen lds ;#pf")
        b(f"s_mul_i32 s{sTmp}, s{sRB}, {8*55296}")
        b(f"s_add_u32 s{sTmp}, s{sTmp}, s{sLDo}")
        b(f"buffer_load_dwordx4 v{vDQ}, s[{sWQ}:{sWQ+3}], s{sTmp} offen lds ;#pf")
    b(W.wv("w0")); b("s_barrier")
    for m in range(4): b.ext(ff_reads(0, m))
    b(W.wv("w1")); b("s_barrier")
    stamp(b, 1, prof)
    pro = list(b.ins)
    FF = ff2_body()
    SG0 = ld_pair(2) + single_body(False, 0, 0, "pair", 9)
    P0a = ld_pair(3)
    P0 = pair_body(0, 1, "pair", delta=f"s{sD1}")
    wdsrd = Blk(); srd(wdsrd, sWD, sWDp, SZ_WG)
    wpf = wd_prefetch() if "nowd" not in OPT else ()
    P1p = wdsrd.ins + ld_pair(4) + pair_body(1, 0, "pair", wpf, delta=f"s{sD2}")
    P1s = wdsrd.ins + ld_single(0) + pair_body(1, 0, "single", wpf, delta=f"s{sD2}")
    ex3 = [f"s_sub_u32 s{sTmp2}, s{sCG}, 16", f"s_cmp_lt_u32 s{sTmp2}, 6"]
    SG1 = {v: ld_single(16, ex3) + single_body(v, 1, 1, "single", 5) for v in (False, True)}
    SV = ld_none() + single_body(True, 0, None, "single", 0)
    drain = ["s_waitcnt lgkmcnt(0)", "s_nop 7", "s_nop 3"] + gelu_epilogue(*ACC[0])
    trA = pro + FF + SG0 + P0a + P0 + P1p + ld_none() + P0 + drain
    trB = pro + FF + SG0 + P0a + P0 + P1s + SG1[True] + SV
    trB2 = pro + FF + SG0 + P0a + P0 + P1s + SG1[False]
    for tr in (trA, trB, trB2): W.simulate(tr)
    R = W.resolve
    b.ins = R(b.ins)
    b.ext(R(FF))
    stamp(b, 2, prof)
    b.ext(R(SG0)); b.ext(P0a)
    b.label("L_k1_p0")
    b.ext(R(P0))
    b(f"s_cmp_eq_u32 s{sPh}, 1")
    b("s_cbranch_scc1 L_k1_drain")
    b(f"s_cmp_lt_u32 s{sCG}, 16")
    b("s_cbranch_scc0 L_k1_B")
    b.ext(R(P1p)); b.ext(ld_none())
    b(f"s_mov_b32 s{sPh}, 1")
    b(f"s_movk_i32 s{sD1}, 2048")
    b("s_branch L_k1_p0")
    b.label("L_k1_B")
    b.ext(R(P1s))
    stamp(b, 3, prof)
    b(f"s_cmp_ge_u32 s{sT}, 36")
    b("s_cbranch_scc1 L_k1_sg1v")
    b.ext(R(SG1[False])); b("s_branch L_k1_sg1d")
    b.label("L_k1_sg1v")
    b.ext(R(SG1[True]))
    b.label("L_k1_sg1d")
    b(f"s_sub_u32 s{sTmp2}, s{sCG}, 16")
    b(f"s_cmp_lt_u32 s{sTmp2}, 6")
    b("s_cbranch_scc0 L_k1_fin")
    b.ext(R(SV))
    b("s_branch L_k1_fin")
    b.label("L_k1_drain")
    stamp(b, 3, prof)
    b.ext(drain)
    b.label("L_k1_fin")
    b("s_waitcnt lgkmcnt(0)")
    if prof:
        stamp(b, 4, True)
        b("s_waitcnt vmcnt(0)")
        stamp(b, 5, True)
        b(f"s_lshl_b32 s{sTmp}, s2, 3")
        b(f"s_add_u32 s{sTmp}, s{sTmp}, s{sW}")
        b(f"s_lshl_b32 s{sTmp}, s{sTmp}, 5")
        srd(b, sXN, sWS, 1<<20, 40<<20)
        for i in range(6): b(f"v_mov_b32 v{16+i}, s{60+2*i}")
        if "fstamp" in OPT:
            for i in range(8): b(f"v_mov_b32 v{24+i}, s{70+2*i}")
            b("v_mov_b32 v12, 0")
            b(f"s_add_u32 s{sTmp2}, s{sTmp}, {1<<17}")
            b(f"buffer_store_dwordx4 v[24:27], v12, s[{sXN}:{sXN+3}], s{sTmp2} offen")
            b(f"buffer_store_dwordx4 v[28:31], v12, s[{sXN}:{sXN+3}], s{sTmp2} offen offset:16")
        b("v_mov_b32 v12, 0")
        b(f"buffer_store_dwordx4 v[16:19], v12, s[{sXN}:{sXN+3}], s{sTmp} offen")
        b(f"buffer_store_dwordx4 v[20:23], v12, s[{sXN}:{sXN+3}], s{sTmp} offen offset:16")
    if "rt" in OPT: prof_end(b, 1, 8)
    b.label("L_k1_end")
    b("s_endpgm")
    bad = 0
    for nm, tr in (("A", trA), ("B", trB), ("B2", trB2)): bad += len(check(R(tr), name+"_"+nm))
    assert bad == 0 or opts
    return name, kernel_text(name, b.text(), 256, 112, 100)
if __name__ == "__main__":
    n, t = gen_k1()
    open("k1.s", "w").write('.amdgcn_target "amdgcn-amd-amdhsa--gfx950"\n' + t)
```

```python
import sys
from build import *
import k0, k0b
import k1, k1b, k1c
from k2a import gen_attn_kernel, A_LDS
from k2b import gen_down_kernel, B_LDS
from k2 import gen_mix, MIX_LDS
import k3, k3c, k3d
if 'oldk3' in sys.argv: gen_k3, K3_LDS, K3G, K3B = k3.gen_k3, k3.K3_LDS, 288, 256
elif 'k3c' in sys.argv: gen_k3, K3_LDS, K3G, K3B = k3c.gen_k3, k3c.K3_LDS, 256, 320
else: gen_k3, K3_LDS, K3G, K3B = k3d.gen_k3, k3d.K3_LDS, 256, 320
prof = "prof" in sys.argv
out = sys.argv[1]
extra = tuple(a[2:] for a in sys.argv if a.startswith("o:"))
if "old1" in sys.argv: gen_k1, K1_LDS, k1o = k1.gen_k1, k1.K1_LDS, ("wfirst","step3")
elif 'm16' in sys.argv: gen_k1, K1_LDS, k1o = k1c.gen_k1, k1c.K1_LDS, ()
else: gen_k1, K1_LDS, k1o = k1b.gen_k1, k1b.K1_LDS, ()
k1o = k1o + extra + (("rt",) if prof else ())
pf = "nopf0" not in sys.argv
pfrows = 576
for a in sys.argv:
    if a.startswith("rows"): pfrows = int(a[4:])
K0 = (k0.gen_k0(prof, pf, pfrows, 'not0' not in sys.argv),256,256,4096) if 'oldk0' in sys.argv else (k0b.gen_k0(prof, 'r128' in extra, sys.argv),256,512,4096)
if "mix" in sys.argv:
    order = "da" if "da" in sys.argv else "ad"
    prio = "first" if "p1" in sys.argv else ("second" if "p2" in sys.argv else None)
    cfg = [K0,(gen_k1("R8", False, k1o),256,512,K1_LDS),(gen_mix(prof, order, prio, tuple(a[2:] for a in sys.argv if a.startswith("a:")), tuple(a[2:] for a in sys.argv if a.startswith("d:"))),512,256,MIX_LDS),(gen_k3(prof, "outsc1" in sys.argv, *([int(a[2:]) for a in sys.argv if a.startswith("s:")])),K3G,K3B,K3_LDS)]
else:
    cfg = [K0,(gen_k1("R8", False, k1o),256,512,K1_LDS),(gen_attn_kernel(prof),256,256,A_LDS),(gen_down_kernel(prof),256,256,B_LDS),(gen_k3(prof, "outsc1" in sys.argv, *([int(a[2:]) for a in sys.argv if a.startswith("s:")])),K3G,K3B,K3_LDS)]
open(out,"w").write(build_all(cfg))
```

```python
import sys, importlib
from common import *
DESIGN = """;
"""
def build_all(cfg):
    head = open("parallel_sum__softmax_full_mha__glu_gated_geglu__prompt.s.ref").read().split("; Override launch")[0]
    txt = head
    for (name, text), grid, block, lds in cfg:
        txt += f"; @launch kernel={name} grid=({grid},1,1) block=({block},1,1) lds={lds}\n"
    txt += DESIGN
    txt += '.amdgcn_target "amdgcn-amd-amdhsa--gfx950"\n'
    seen = set()
    n = len({c[0][0] for c in cfg})
    for (name, text), grid, block, lds in cfg:
        if name in seen: continue
        seen.add(name)
        if len(seen) == 2 and "L_code_begin" in "".join(c[0][1] for c in cfg):
            text = text.replace(".p2align 8\n", ".p2align 8\nL_code_begin:\n", 1)
        if len(seen) == n and "L_code_begin" in "".join(c[0][1] for c in cfg):
            text = text.replace('.section .rodata,"a"', 'L_code_end:\n.section .rodata,"a"', 1)
        txt += text
    return txt
```

```python
from common import *
K0_LDS = 4096
M16 = False
CODEPF = False
def ln_part(b):
    b("v_lshrrev_b32 v1, 5, v0")
    b("s_lshl_b32 s3, s2, 3")
    b("v_add_u32 v1, s3, v1")
    b("v_and_b32 v2, 31, v0")
    b("v_mul_u32_u24 v3, 1152, v1")
    b("v_lshl_add_u32 v3, v2, 2, v3")
    b("v_lshrrev_b32 v4, 5, v1")
    b("v_mul_u32_u24 v4, 36864, v4")
    if M16:
        b("v_lshrrev_b32 v5, 4, v2")
        b("v_lshl_add_u32 v4, v5, 11, v4")
        b("v_bfe_u32 v5, v1, 4, 1")
        b("v_lshl_add_u32 v4, v5, 10, v4")
        b("v_bfe_u32 v5, v2, 2, 2")
        b("v_lshl_add_u32 v4, v5, 8, v4")
        b("v_and_b32 v5, 15, v1")
        b("v_lshl_add_u32 v4, v5, 4, v4")
        b("v_and_b32 v5, 3, v2")
        b("v_lshl_add_u32 v4, v5, 2, v4")
    else:
        b("v_lshrrev_b32 v5, 3, v2")
        b("v_lshl_add_u32 v4, v5, 10, v4")
        b("v_bfe_u32 v5, v2, 2, 1")
        b("v_lshl_add_u32 v4, v5, 9, v4")
        b("v_and_b32 v5, 31, v1")
        b("v_lshl_add_u32 v4, v5, 4, v4")
        b("v_and_b32 v5, 3, v2")
        b("v_lshl_add_u32 v4, v5, 2, v4")
    b("s_waitcnt lgkmcnt(0)")
    srd(b, 8, 4, SZ_X)
    srd(b, 12, 6, SZ_T, WS_XN)
    X = 8
    for i in range(9): b(f"buffer_load_dword v{X+i}, v3, s[8:11], 0 offen offset:{i*128}")
    L = 20
    for i in range(9):
        b(f"s_waitcnt vmcnt({8-i})")
        b(f"v_lshlrev_b32 v{L+2*i}, 16, v{X+i}")
        b(f"v_and_b32 v{L+2*i+1}, 0xffff0000, v{X+i}")
    def reduce32(r, t):
        b("s_nop 1")
        b(f"v_add_f32_dpp v{r}, v{r}, v{r} quad_perm:[1,0,3,2] row_mask:0xf bank_mask:0xf")
        b("s_nop 1")
        b(f"v_add_f32_dpp v{r}, v{r}, v{r} quad_perm:[2,3,0,1] row_mask:0xf bank_mask:0xf")
        b("s_nop 1")
        b(f"v_add_f32_dpp v{r}, v{r}, v{r} row_half_mirror row_mask:0xf bank_mask:0xf")
        b("s_nop 1")
        b(f"v_add_f32_dpp v{r}, v{r}, v{r} row_mirror row_mask:0xf bank_mask:0xf")
        b("s_nop 0")
        b(f"v_mov_b32 v{t}, v{r}")
        b("s_nop 1")
        b(f"v_permlane16_swap_b32 v{r}, v{t}")
        b("s_nop 0")
        b(f"v_add_f32 v{r}, v{r}, v{t}")
    b(f"v_add_f32 v40, v{L}, v{L+1}")
    b(f"v_add_f32 v41, v{L+2}, v{L+3}")
    for i in range(2, 9):
        b(f"v_add_f32 v40, v40, v{L+2*i}")
        b(f"v_add_f32 v41, v41, v{L+2*i+1}")
    b("v_add_f32 v40, v40, v41")
    reduce32(40, 42)
    b(f"v_mul_f32 v40, {f32hex(1.0/576)}, v40")
    b(f"v_sub_f32 v43, v{L}, v40")
    b(f"v_mul_f32 v44, v43, v43")
    b(f"v_sub_f32 v43, v{L+1}, v40")
    b(f"v_mul_f32 v45, v43, v43")
    for i in range(1, 9):
        b(f"v_sub_f32 v43, v{L+2*i}, v40")
        b(f"v_sub_f32 v46, v{L+2*i+1}, v40")
        b(f"v_fmac_f32 v44, v43, v43")
        b(f"v_fmac_f32 v45, v46, v46")
    b("v_add_f32 v44, v44, v45")
    reduce32(44, 42)
    b(f"v_mul_f32 v44, {f32hex(1.0/576)}, v44")
    b("v_cvt_pk_bf16_f32 v45, v40, v44")
    b("v_lshlrev_b32 v40, 16, v45")
    b("v_and_b32 v44, 0xffff0000, v45")
    b(f"v_add_f32 v44, {f32hex(1e-5)}, v44")
    b("v_cvt_pk_bf16_f32 v44, v44, v44")
    b("v_and_b32 v44, 0xffff0000, v44")
    b("v_sqrt_f32 v44, v44")
    b("s_nop 0")
    b("v_cvt_pk_bf16_f32 v44, v44, v44")
    b("v_and_b32 v44, 0xffff0000, v44")
    b("v_rcp_f32 v44, v44")
    for i in range(9):
        b(f"v_sub_f32 v{L+2*i}, v{L+2*i}, v40")
        b(f"v_sub_f32 v{L+2*i+1}, v{L+2*i+1}, v40")
        b(f"v_cvt_pk_bf16_f32 v{X+i}, v{L+2*i}, v{L+2*i+1}")
    for i in range(9):
        b(f"v_lshlrev_b32 v{L+2*i}, 16, v{X+i}")
        b(f"v_and_b32 v{L+2*i+1}, 0xffff0000, v{X+i}")
        b(f"v_mul_f32 v{L+2*i}, v{L+2*i}, v44")
        b(f"v_mul_f32 v{L+2*i+1}, v{L+2*i+1}, v44")
        b(f"v_cvt_pk_bf16_f32 v{X+i}, v{L+2*i}, v{L+2*i+1}")
        b(f"s_mov_b32 s16, {i*4096}")
        b(f"buffer_store_dword v{X+i}, v4, s[12:15], s16 offen")

def aux_part(b, r128):
    b(f"s_load_dwordx2 s[20:21], s[0:1], {KA_WG}")
    b(f"s_load_dwordx2 s[24:25], s[0:1], {KA_WU}")
    b(f"s_load_dwordx2 s[28:29], s[0:1], {KA_WQKV}")
    b(f"s_load_dwordx2 s[36:37], s[0:1], {KA_WO}")
    b("v_readfirstlane_b32 s34, v0")
    b("v_and_b32 v53, 63, v0")
    b("s_lshr_b32 s34, s34, 6")
    b("s_lshl_b32 s35, s2, 2")
    b("s_add_u32 s35, s35, s34")
    b("s_mul_i32 s40, s35, 3641")
    b("s_lshr_b32 s40, s40, 16")
    b("s_mul_i32 s41, s40, 18")
    b("s_sub_u32 s41, s35, s41")
    b("v_lshrrev_b32 v54, 2, v53")
    b("v_mul_u32_u24 v55, 1152, v54")
    b("v_bfe_u32 v64, v54, 2, 1")
    b("v_lshlrev_b32 v64, 2, v64")
    b("v_lshrrev_b32 v65, 3, v54")
    b("v_lshlrev_b32 v65, 1, v65")
    b("v_add_u32 v64, v64, v65")
    b("v_bfe_u32 v65, v54, 1, 1")
    b("v_add_u32 v64, v64, v65")
    b("v_mul_u32_u24 v64, 18, v64")
    b("v_and_b32 v65, 1, v54")
    b("v_add_u32 v64, v64, v65")
    b("v_add_u32 v64, 16, v64")
    b("v_mul_u32_u24 v64, 1152, v64")
    b("s_cmp_lt_u32 s40, 32")
    b("s_cselect_b64 vcc, -1, 0")
    b("v_cndmask_b32 v55, v64, v55, vcc")
    b("v_and_b32 v65, 3, v53")
    b("v_lshl_add_u32 v55, v65, 4, v55")
    b(f"s_mul_i32 s42, s40, {18*1152}")
    b("s_sub_u32 s43, s40, 32")
    b(f"s_mul_i32 s43, s43, {8*18*1152}")
    b("s_cmp_lt_u32 s40, 32")
    b("s_cselect_b32 s42, s42, s43")
    b("s_lshl_b32 s43, s41, 6")
    b("s_add_u32 s42, s42, s43")
    b("s_cmp_lt_u32 s35, 648")
    b("s_cselect_b32 s42, s42, 0x7f000000")
    b("s_waitcnt lgkmcnt(0)")
    b(f"s_mov_b32 s38, {SZ_WO}"); b("s_mov_b32 s39, 0x20000")
    b("s_lshl_b32 s43, s34, 10")
    b("s_mov_b32 m0, s43")
    b("s_nop 0")
    b("buffer_load_dwordx4 v55, s[36:39], s42 offen lds")
    for base, size in ((20, SZ_WG), (24, SZ_WG), (28, SZ_WQKV)):
        b(f"s_mov_b32 s{base+2}, {size}"); b(f"s_mov_b32 s{base+3}, 0x20000")
    b("s_and_b32 s17, s2, 7")
    b("s_bfe_u32 s18, s2, 0x20003")
    b("s_lshl_b32 s18, s18, 3")
    b("s_add_u32 s17, s17, s18")
    b("s_lshr_b32 s18, s2, 5")
    b("s_mul_i32 s18, s18, 72")
    b("s_mul_i32 s19, s17, 5")
    if r128:
        b("s_add_u32 s19, s19, 1"); b("s_and_b32 s19, s19, -2")
    b("s_lshl_b32 s32, s17, 2")
    b("s_add_u32 s32, s32, 16")
    b("s_cmp_lt_u32 s17, 16")
    b("s_cselect_b32 s19, s19, s32")
    b("s_lshl_b32 s19, s19, 6")
    b("s_mul_i32 s32, s18, 9216")
    b("s_add_u32 s19, s19, s32")
    b("s_lshl_b32 s33, s17, 6")
    b("s_mul_i32 s32, s18, 3456")
    b("s_add_u32 s33, s33, s32")
    for n in range(3):
        b(f"v_add_u32 v50, {256*n}, v0")
        b("v_lshrrev_b32 v51, 3, v50")
        b("v_mul_u32_u24 v51, 9216, v51")
        b("v_and_b32 v52, 7, v50")
        b("v_lshl_add_u32 v51, v52, 4, v51")
        if n == 2:
            b("v_cmp_gt_u32 vcc, 576, v50")
            b("v_mov_b32 v52, 0x7f000000")
            b("s_nop 0")
            b("v_cndmask_b32 v51, v52, v51, vcc")
        b(f"buffer_load_dwordx4 v[56:59], v51, s[20:23], s19 offen")
        b(f"buffer_load_dwordx4 v[60:63], v51, s[24:27], s19 offen")
    for n in range(2):
        b(f"v_add_u32 v50, {256*n}, v0")
        b("v_lshrrev_b32 v51, 2, v50")
        b("v_mul_u32_u24 v51, 3456, v51")
        b("v_and_b32 v52, 3, v50")
        b("v_lshl_add_u32 v51, v52, 4, v51")
        if n == 1:
            b("v_cmp_gt_u32 vcc, 288, v50")
            b("v_mov_b32 v52, 0x7f000000")
            b("s_nop 0")
            b("v_cndmask_b32 v51, v52, v51, vcc")
        b(f"buffer_load_dwordx4 v[56:59], v51, s[28:31], s33 offen")
    if CODEPF:
        b("s_getpc_b64 s[46:47]")
        b.label("L_k0_pc")
        b("s_add_u32 s46, s46, L_code_begin-L_k0_pc")
        b("s_addc_u32 s47, s47, 0")
        b("s_lshr_b32 s48, s2, 3")
        b("s_lshl_b32 s48, s48, 12")
        b("v_lshlrev_b32 v50, 4, v0")
        b("v_add_u32 v50, s48, v50")
        b(f"v_cmp_gt_u32 vcc, L_code_end-L_code_begin-16, v50")
        b("s_and_saveexec_b64 s[50:51], vcc")
        b("s_cbranch_execz L_k0_nocode")
        b("global_load_dwordx4 v[56:59], v50, s[46:47]")
        b.label("L_k0_nocode")
        b("s_mov_b64 exec, s[50:51]")
    b("v_lshrrev_b32 v54, 5, v53")
    b("v_lshlrev_b32 v54, 8, v54")
    b("v_bfe_u32 v55, v53, 2, 2")
    b("v_lshl_add_u32 v54, v55, 6, v54")
    b("v_bfe_u32 v55, v53, 4, 1")
    b("v_lshl_add_u32 v54, v55, 5, v54")
    b("v_and_b32 v55, 3, v53")
    b("v_lshl_add_u32 v54, v55, 3, v54")
    b("v_add_u32 v54, s43, v54")
    b("v_bfe_u32 v55, v53, 4, 1")
    b("v_lshlrev_b32 v55, 9, v55")
    b("v_lshrrev_b32 v64, 5, v53")
    b("v_lshl_add_u32 v55, v64, 8, v55")
    b("v_and_b32 v64, 15, v53")
    b("v_lshl_add_u32 v55, v64, 4, v55")
    b("s_mul_i32 s42, s40, 36")
    b("s_lshl_b32 s44, s41, 1")
    b("s_add_u32 s42, s42, s44")
    b("s_lshl_b32 s42, s42, 9")
    b("s_cmp_lt_u32 s35, 648")
    b("s_cselect_b32 s42, s42, 0x7f000000")
    srd(b, 36, 6, SZ_WO, WS_WOF)
    b("s_waitcnt vmcnt(0)" if False else f"s_waitcnt vmcnt({8})")
    b("ds_read_b64_tr_b16 v[66:67], v54")
    b("ds_read_b64_tr_b16 v[68:69], v54 offset:512")
    b("s_waitcnt lgkmcnt(0)")
    b("buffer_store_dwordx4 v[66:69], v55, s[36:39], s42 offen")

def gen_k0(prof=False, r128=False, opts=()):
    global M16, CODEPF
    M16 = 'm16' in opts
    CODEPF = 'cpf' in opts
    name = "ln_kernel"
    b = Blk(name)
    b("s_cmp_ge_u32 s2, 256")
    b("s_cbranch_scc1 L_k0_end")
    if prof: prof_begin(b)
    b(f"s_load_dwordx2 s[4:5], s[0:1], {KA_X}")
    b(f"s_load_dwordx2 s[6:7], s[0:1], {KA_WS}")
    b("v_readfirstlane_b32 s45, v0")
    b("s_nop 3")
    b("s_cmp_ge_u32 s45, 256")
    b("s_cbranch_scc1 L_k0_aux")
    l = Blk(); ln_part(l); check(l.ins, "ln")
    b.ext(l)
    b("s_branch L_k0_done")
    b.label("L_k0_aux")
    b("v_subrev_u32 v0, 256, v0")
    b("s_nop 0")
    aux_part(b, r128)
    if "k0wait" in opts: b("s_waitcnt vmcnt(0)")
    b.label("L_k0_done")
    if prof: prof_end(b, 0, 8)
    b.label("L_k0_end")
    b("s_endpgm")
    return name, kernel_text(name, b.text(), 72, 72, 100)
```

```python
from common import *
import math
HALF = 73728; SCR = 2*HALF; K1_LDS = SCR + 1024
C1 = -2.0*math.sqrt(2.0/math.pi)*math.log2(math.e); C2 = C1*0.044715
QSCALE = (18.0**-0.5)*math.log2(math.e)
sWS, sWQp, sWGp, sWUp = 4, 6, 8, 10
sXN, sLD, sH, sO, sWP, sWQ = 12, 16, 20, 24, 28, 48
sWD = 12
sWDp = 58
sR2, sR3, sR4, sD1, sD2 = 52, 53, 54, 55, 56
vFF = [12, 13, 14, 15]
sW, sTB, sN1, sPh, sT, sP, sHoff, sW1024, sLDo, sLDs, sTmp, sTmp2, sScale, sOff, sRB, sCG = range(32, 48)
vHs, vL16, vDQ, vDP, vLD, vC2 = 1, 2, 3, 4, 5, 6
vTR = [7, 8, 9, 10]
vPart = 11
vT = 12
ACC = [(16, 32), (48, 64)]
X = 80
SACC = 96
OPT = set()
W = None
PRE = 2

def gelu_epilogue(G, U, delta='2048'):
    e = []
    for grp in range(4):
        E = [4*grp+i for i in range(4)]
        e += [f"v_mul_f32 v{vT+i}, v{G+E[i]}, v{G+E[i]}" for i in range(4)]
        e += [f"v_fmaak_f32 v{vT+i}, v{vT+i}, v{vC2}, {f32hex(C1)}" for i in range(4)]
        e += [f"v_mul_f32 v{vT+i}, v{vT+i}, v{G+E[i]}" for i in range(4)]
        e += [f"v_exp_f32 v{vT+i}, v{vT+i}" for i in range(4)]
        e += [f"v_mul_f32 v{G+E[i]}, v{G+E[i]}, v{U+E[i]}" for i in range(4)]
        e += [f"v_add_f32 v{vT+i}, 1.0, v{vT+i}" for i in range(4)]
        e += [f"v_rcp_f32 v{vT+i}, v{vT+i}" for i in range(4)]
        e += [f"v_mul_f32 v{G+E[i]}, v{G+E[i]}, v{vT+i}" for i in range(4)]
        e += [f"v_cvt_pk_bf16_f32 v{U+2*grp}, v{G+4*grp}, v{G+4*grp+1}",
              f"v_cvt_pk_bf16_f32 v{U+2*grp+1}, v{G+4*grp+2}, v{G+4*grp+3}"]
        nb, tt = grp//2, grp % 2
        e += [f"buffer_store_dwordx2 v[{U+2*grp}:{U+2*grp+1}], v{vHs}, s[{sH}:{sH+3}], s{sHoff} offen offset:{nb*1024 + tt*256}" + ("" if "plainst" in OPT else " sc1")]
    e.append(f"s_add_u32 s{sHoff}, s{sHoff}, {delta}")
    return e

def rd2(bases, nb, off, r):
    base, o = (bases[nb], off) if off < 65536 - 256 else (bases[2+nb], off - 65536)
    return [f"ds_read_b64_tr_b16 v[{r}:{r+1}], v{base} offset:{o}",
            f"ds_read_b64_tr_b16 v[{r+2}:{r+3}], v{base} offset:{o+256}"]
def poff(m, mat): return (m//2)*8192 + (((2*m) % 4)*2 + mat)*1024
def preg(f): return X + (f % 6)*4
def pair_reads(f): return rd2(vTR, f % 2, poff(f//4, (f//2) % 2), preg(f))
def sreg(f): return X + (f % 4)*4
def single_reads(f): return rd2(vTR, f % 2, (f//2)*2048, sreg(f))
def ffreg(f): return X + (f % 8)*4
def ff_reads(f): return rd2(vTR if (f//4) % 2 == 0 else vFF, f % 2, poff(f//8, (f//2) % 2), ffreg(f))
def set_bases(kind, half, dst=None):
    dst = dst or vTR
    sh = 11 if kind == "pair" else 10
    return [f"v_lshrrev_b32 v{dst[0]}, 5, v0", f"v_lshlrev_b32 v{dst[0]}, {sh}, v{dst[0]}",
            f"v_add_u32 v{dst[0]}, v{dst[0]}, v{vPart}", f"v_add_u32 v{dst[0]}, {half*HALF}, v{dst[0]}",
            f"v_xor_b32 v{dst[1]}, 32, v{dst[0]}",
            f"v_add_u32 v{dst[2]}, 0x10000, v{dst[0]}", f"v_add_u32 v{dst[3]}, 0x10000, v{dst[1]}"]

def loader(i, half):
    return [f"s_add_u32 m0, s{sW1024}, {half*HALF + i*8192}",
            f"s_nop 0",
            f"buffer_load_dwordx4 v{vLD}, s[{sLD}:{sLD+3}], s{sLDo} offen lds ;#ld",
            f"s_add_u32 s{sLDo}, s{sLDo}, s{sLDs}"]
def next_reads(kind):
    if kind == "pair": return [pair_reads(f) for f in range(4)]
    return [single_reads(f) for f in range(3)]
def mm(A, a_op, b_op, first):
    return f"v_mfma_f32_16x16x32_bf16 v[{A}:{A+3}], {a_op}, {b_op}, " + ("0" if first else f"v[{A}:{A+3}]")
def place(main, extra):
    out = []; a = 0
    for s in main:
        out.append(s)
        if s.startswith("v_mfma"):
            out += extra.get(a, []); a += 1
    return out

def pair_body(cur, half, nxt_kind, pf=(), delta="2048"):
    G, U = ACC[cur]; Gp, Up = ACC[1-cur]
    main = []
    NF = 72; PD = 4
    for f in range(NF):
        m, mat, nb = f//4, (f//2) % 2, f % 2
        r = preg(f); A = (G, U)[mat] + nb*8
        last = f >= NF - 2
        if f == NF - 2:
            main += [W.wv("ld"), "s_waitcnt lgkmcnt(0)", "s_barrier"] + set_bases(nxt_kind, 1-half)
        if not last: main.append(W.wl(f"v[{r}:{r+3}]"))
        if f + PD < NF: rr = pair_reads(f + PD)
        elif last:
            nr = next_reads(nxt_kind); k = f - (NF - 2)
            rr = sum(nr[2*k:2*k+2], [])
        else: rr = []
        main.append(mm(A, f"v[{r}:{r+3}]", f"a[{8*m}:{8*m+3}]", m == 0))
        main += rr[:len(rr)//2]
        main.append(mm(A+4, f"v[{r}:{r+3}]", f"a[{8*m+4}:{8*m+7}]", m == 0))
        main += rr[len(rr)//2:]
    extra = {}
    for i in range(9): extra.setdefault(4*i + 2, []).extend(loader(i, 1-half))
    for q, op in enumerate(pf): extra.setdefault(42 + 8*q, []).extend(op)
    main = place(main, extra)
    return interleave(main, gelu_epilogue(Gp, Up, delta), start=6, end=132)

def stream_ops(j):
    ops = []
    for h in range(2):
        if "r128" in OPT:
            ops.append([f"s_add_u32 m0, s{sW1024}, {h*HALF + j*8192}",
                        f"s_add_u32 s{sTmp}, s{sP}, {4*j*147456 + 8*9216*h}",
                        f"buffer_load_dwordx4 v{vDF}, s[{sWP}:{sWP+3}], s{sTmp} offen lds ;#w{j}"])
            continue
        ops.append([f"s_add_u32 m0, s{sW1024}, {h*HALF + j*8192}",
                    f"s_add_u32 s{sTmp}, s{sP}, {4*j*147456 + 64*h}",
                    f"buffer_load_dwordx4 v{vDP}, s[{sWP}:{sWP+3}], s{sTmp} offen lds ;#w{j}"])
    for q in range(4):
        ks = 4*j + q
        o = []
        if q == 0 and j: o.append(f"s_add_u32 s{sOff}, s{sOff}, 4096")
        o.append(f"buffer_load_dwordx4 a[{4*ks}:{4*ks+3}], v{vL16}, s[{sXN}:{sXN+3}], s{sOff} offen offset:{q*1024} ;#x{ks}")
        ops.append(o)
    return ops

def t0_loader(i):
    return [f"s_add_u32 m0, s{sW1024}, {i*8192}",
            f"s_add_u32 s{sTmp}, s{sLDo}, {i*8*55296}",
            f"buffer_load_dwordx4 v{vDQ}, s[{sWQ}:{sWQ+3}], s{sTmp} offen lds ;#ld"]

def l2_prefetch():
    ops = []
    for q in (2, 3, 4):
        o = [f"s_mul_i32 s{sTmp}, s{sRB}, {4*147456}",
             f"s_add_u32 s{sTmp}, s{sTmp}, s{sP}",
             f"s_add_u32 s{sTmp}, s{sTmp}, s{ {2: sR2, 3: sR3, 4: sR4}[q] }"]
        if q == 4:
            o += [f"s_cmp_lt_u32 s{sCG}, 16", f"s_cselect_b32 s{sTmp}, s{sTmp}, 0x7f000000"]
        o += [f"s_mov_b32 m0, {SCR}", "s_nop 0",
              f"buffer_load_dwordx4 v{vDP}, s[{sWP}:{sWP+3}], s{sTmp} offen lds ;#pf"]
        ops.append(o)
    for q in (1, 2):
        o = [f"s_mul_i32 s{sTmp}, s{sRB}, {8*55296}",
             f"s_add_u32 s{sTmp}, s{sTmp}, s{sLDo}",
             f"s_add_u32 s{sTmp}, s{sTmp}, {16*64*q}",
             f"s_sub_u32 s{sTmp2}, s{sCG}, 16",
             f"s_cmp_lt_u32 s{sTmp2}, {16 if q == 1 else 6}",
             f"s_cselect_b32 s{sTmp}, s{sTmp}, 0x7f000000",
             f"s_mov_b32 m0, {SCR}", "s_nop 0",
             f"buffer_load_dwordx4 v{vDQ}, s[{sWQ}:{sWQ+3}], s{sTmp} offen lds ;#pf"]
        ops.append(o)
    return ops

def wd_prefetch():
    ops = []
    for n in range(3):
        ops.append([f"s_lshr_b32 s{sTmp}, s2, 3",
                    f"s_lshl_b32 s{sTmp}, s{sTmp}, 3",
                    f"s_add_u32 s{sTmp}, s{sTmp}, s{sW}",
                    f"s_add_u32 s{sTmp}, s{sTmp}, {256*n}",
                    f"s_lshl_b32 s{sTmp}, s{sTmp}, 10",
                    f"s_cmp_lt_u32 s{sTmp}, {576*1152}",
                    f"s_cselect_b32 s{sTmp}, s{sTmp}, 0x7f000000",
                    f"s_and_b32 s{sTmp2}, s2, 7",
                    f"s_mul_i32 s{sTmp2}, s{sTmp2}, {576*1152}",
                    f"s_add_u32 s{sTmp}, s{sTmp}, s{sTmp2}",
                    f"s_mov_b32 m0, {SCR}", "s_nop 0",
                    f"buffer_load_dwordx4 v{vL16}, s[{sWD}:{sWD+3}], s{sTmp} offen lds ;#pf"])
    return ops

def ff2_body():
    main = []
    NF = 144; PD = 4
    for f in range(NF):
        m, t, mat, nb = f//8, (f//4) % 2, (f//2) % 2, f % 2
        if f % 16 == 0 and 0 < f < 128:
            j = f//16
            main.append(W.wv(f"w{j+1}")); main.append("s_barrier")
            if "fstamp" in OPT: main += [f"s_memtime s[{70+2*j}:{71+2*j}]", "s_waitcnt lgkmcnt(0)"]
        r = ffreg(f); A = ACC[t][mat] + nb*8
        last = f >= NF - 2
        if f == NF - 2:
            main += [W.wv("ld"), "s_waitcnt lgkmcnt(0)", "s_barrier"] + set_bases("single", 0)
        if f % 8 == 0: main += [W.wv(f"x{2*m}"), W.wv(f"x{2*m+1}")]
        if not last: main.append(W.wl(f"v[{r}:{r+3}]"))
        if f + PD < NF: rr = ff_reads(f + PD)
        elif last:
            nr = next_reads("single"); k = f - (NF - 2)
            rr = sum(nr[2*k:2*k+2], [])
        else: rr = []
        main.append(mm(A, f"v[{r}:{r+3}]", f"a[{8*m}:{8*m+3}]", m == 0))
        main += rr[:len(rr)//2]
        main.append(mm(A+4, f"v[{r}:{r+3}]", f"a[{8*m+4}:{8*m+7}]", m == 0))
        main += rr[len(rr)//2:]
    extra = {}
    for j in range(9 - PRE):
        for q, op in enumerate(stream_ops(j + PRE)): extra.setdefault(32*j + 4*q + 2, []).extend(op)
    for i in range(5): extra.setdefault(32*(i+1) + 28, []).extend(t0_loader(i))
    if "nopf" not in OPT:
        for q, op in enumerate(l2_prefetch()): extra.setdefault(32*7 + 6 + 8*q, []).extend(op)
    return place(main, extra)

def single_epilogue(isV):
    A = SACC
    b = Blk()
    if isV:
        b(f"s_sub_u32 s{sTmp}, s{sT}, 36")
        b(f"s_lshl_b32 s{sTmp}, s{sTmp}, 11")
        b(f"s_add_u32 s{sTmp}, s{sTmp}, {2*SZ_T}")
        b(f"v_lshrrev_b32 v{vT}, 5, v0"); b(f"v_lshlrev_b32 v{vT}, 9, v{vT}")
        b(f"v_and_b32 v{vT+1}, 15, v0"); b(f"v_lshl_add_u32 v{vT}, v{vT+1}, 4, v{vT}")
        b(f"v_bfe_u32 v{vT+1}, v0, 4, 1"); b(f"v_lshl_add_u32 v{vT}, v{vT+1}, 3, v{vT}")
    else:
        b(f"s_cmp_ge_u32 s{sT}, 18")
        b(f"s_cselect_b32 s{sTmp}, {SZ_T - 18*2048}, 0")
        b(f"s_cselect_b32 s{sScale}, 1.0, {f32hex(QSCALE)}")
        b(f"s_lshl_b32 s{sTmp2}, s{sT}, 11")
        b(f"s_add_u32 s{sTmp}, s{sTmp}, s{sTmp2}")
        b(f"v_lshrrev_b32 v{vT}, 5, v0"); b(f"v_lshlrev_b32 v{vT}, 9, v{vT}")
        b(f"v_bfe_u32 v{vT+1}, v0, 4, 1"); b(f"v_lshl_add_u32 v{vT}, v{vT+1}, 8, v{vT}")
        b(f"v_and_b32 v{vT+1}, 15, v0"); b(f"v_lshl_add_u32 v{vT}, v{vT+1}, 3, v{vT}")
    b(f"s_mul_i32 s{sTmp2}, s{sTB}, 36864")
    b(f"s_add_u32 s{sTmp}, s{sTmp}, s{sTmp2}")
    if not isV:
        for i in range(16): b(f"v_mul_f32 v{A+i}, s{sScale}, v{A+i}")
    for i in range(8): b(f"v_cvt_pk_bf16_f32 v{A+i}, v{A+2*i}, v{A+2*i+1}")
    for g in range(4):
        nb, tt = g//2, g % 2
        off = (tt*1024 + nb*256) if isV else (nb*1024 + tt*128)
        b(f"buffer_store_dwordx2 v[{A+2*g}:{A+2*g+1}], v{vT}, s[{sO}:{sO+3}], s{sTmp} offen offset:{off}" + ("" if "plainqkv" in OPT else " sc1"))
    b(f"s_add_u32 s{sT}, s{sT}, 16")
    b("s_nop 0")
    return b.ins

def single_body(isV, half, gelu_set, nxt_kind, nld):
    main = []
    NF = 36; PD = 3
    for f in range(NF):
        m, nb = f//2, f % 2
        r = sreg(f); A = SACC + nb*8
        last = f >= NF - 1
        if last: main += [W.wv("ld"), "s_waitcnt lgkmcnt(0)", "s_barrier"] + set_bases(nxt_kind, 1-half)
        else: main.append(W.wl(f"v[{r}:{r+3}]"))
        if f + PD < NF: rr = single_reads(f + PD)
        elif last: rr = sum(next_reads(nxt_kind)[:3], [])
        else: rr = []
        w_, x0, x1 = f"v[{r}:{r+3}]", f"a[{8*m}:{8*m+3}]", f"a[{8*m+4}:{8*m+7}]"
        main.append(mm(A, x0, w_, m == 0) if isV else mm(A, w_, x0, m == 0))
        main += rr[:len(rr)//2]
        main.append(mm(A+4, x1, w_, m == 0) if isV else mm(A+4, w_, x1, m == 0))
        main += rr[len(rr)//2:]
    if nxt_kind == "pair": main += next_reads("pair")[3]
    extra = {}
    for i in range(nld): extra.setdefault(4*i + 2, []).extend(loader(i, 1-half))
    main = place(main, extra)
    if gelu_set is not None: main = interleave(main, gelu_epilogue(*ACC[gelu_set]), start=6, end=68)
    return main + single_epilogue(isV)

def ld_pair(q):
    return [f"s_mov_b32 s{sLD}, s{sWP}", f"s_mov_b32 s{sLD+1}, s{sWP+1}", f"s_mov_b32 s{sLD+2}, {SZ_WG}",
            f"s_add_u32 s{sLDo}, s{sP}, s{ {2: sR2, 3: sR3, 4: sR4}[q] }", f"s_mov_b32 s{sLDs}, {4*147456}", f"v_mov_b32 v{vLD}, v{vDP}"]
def ld_single(add, cond=None):
    o = [f"s_mov_b32 s{sLD}, s{sWQ}", f"s_mov_b32 s{sLD+1}, s{sWQ+1}"]
    if cond is None: o.append(f"s_mov_b32 s{sLD+2}, {SZ_WQKV}")
    else: o += cond + [f"s_cselect_b32 s{sLD+2}, {SZ_WQKV}, 0"]
    o += [f"s_add_u32 s{sLDo}, s{sT}, {add}", f"s_lshl_b32 s{sLDo}, s{sLDo}, 6",
          f"s_mul_i32 s{sTmp}, s{sW}, 55296", f"s_add_u32 s{sLDo}, s{sLDo}, s{sTmp}",
          f"s_mov_b32 s{sLDs}, {8*55296}", f"v_mov_b32 v{vLD}, v{vDQ}"]
    return o
def ld_none(): return [f"s_mov_b32 s{sLD+2}, 0"]

def stamp(b, i, on):
    if on:
        b(f"s_memtime s[{60+2*i}:{61+2*i}]")
        b("s_waitcnt lgkmcnt(0)")

def gen_k1(xmap="R8", prof=False, opts=()):
    global W, PRE
    OPT.clear(); OPT.update(opts)
    PRE = 2
    for o in opts:
        if o.startswith("pre"): PRE = int(o[3:])
    W = Waits()
    name = "gemm1_kernel"
    b = Blk(name)
    stamp(b, 0, prof)
    b("s_cmp_ge_u32 s2, 256")
    b("s_cbranch_scc1 L_k1_end")
    if "rt" in OPT: prof_begin(b)
    b(f"s_load_dwordx2 s[{sWS}:{sWS+1}], s[0:1], {KA_WS}")
    b(f"s_load_dwordx2 s[{sWQp}:{sWQp+1}], s[0:1], {KA_WQKV}")
    b(f"s_load_dwordx2 s[{sWGp}:{sWGp+1}], s[0:1], {KA_WG}")
    b(f"s_load_dwordx2 s[{sWUp}:{sWUp+1}], s[0:1], {KA_WU}")
    b(f"s_load_dwordx2 s[{sWDp}:{sWDp+1}], s[0:1], {KA_WD}")
    b(f"v_readfirstlane_b32 s{sW}, v0")
    b("v_and_b32 v0, 63, v0")
    b(f"s_lshr_b32 s{sW}, s{sW}, 6")
    b(f"v_lshlrev_b32 v{vL16}, 4, v0")
    b("v_lshrrev_b32 v12, 2, v0")
    b("v_bfe_u32 v13, v0, 1, 1")
    b("v_bfe_u32 v14, v0, 5, 1")
    b("v_xor_b32 v13, v13, v14")
    b("v_lshlrev_b32 v13, 5, v13")
    b("v_and_b32 v14, 1, v0")
    b("v_lshl_add_u32 v13, v14, 4, v13")
    b(f"v_mul_u32_u24 v{vDQ}, 3456, v12")
    b(f"v_add_u32 v{vDQ}, v{vDQ}, v13")
    b(f"v_mul_u32_u24 v{vDP}, 9216, v12")
    b(f"v_add_u32 v{vDP}, v{vDP}, v13")
    b(f"v_mov_b32 v{vLD}, v{vDP}")
    b("v_bfe_u32 v12, v0, 4, 1")
    b("v_mul_u32_u24 v13, 544, v12")
    b("v_bfe_u32 v14, v0, 2, 2")
    b("v_lshl_add_u32 v13, v14, 6, v13")
    b("v_and_b32 v14, 3, v0")
    b(f"v_lshl_add_u32 v{vPart}, v14, 3, v13")
    b("v_bfe_u32 v12, v0, 4, 1")
    b("v_lshlrev_b32 v12, 9, v12")
    b("v_and_b32 v13, 15, v0")
    b("v_lshl_add_u32 v12, v13, 4, v12")
    b("v_lshrrev_b32 v13, 5, v0")
    b(f"v_lshl_add_u32 v{vHs}, v13, 3, v12")
    b.ext(set_bases("pair", 0, vTR)); b.ext(set_bases("pair", 1, vFF))
    b(f"v_mov_b32 v{vC2}, {f32hex(C2)}")
    b(f"s_and_b32 s{sCG}, s2, 7")
    b(f"s_lshr_b32 s{sTmp}, s2, 3")
    b(f"s_and_b32 s{sTmp}, s{sTmp}, 3")
    b(f"s_lshl_b32 s{sTmp}, s{sTmp}, 3")
    b(f"s_add_u32 s{sCG}, s{sCG}, s{sTmp}")
    b(f"s_lshr_b32 s{sRB}, s2, 5")
    b(f"s_lshl_b32 s{sTB}, s{sRB}, 3")
    b(f"s_add_u32 s{sTB}, s{sTB}, s{sW}")
    b(f"s_mul_i32 s{sP}, s{sCG}, 5")
    b(f"s_lshl_b32 s{sTmp}, s{sCG}, 2")
    b(f"s_add_u32 s{sTmp}, s{sTmp}, 16")
    b(f"s_cmp_lt_u32 s{sCG}, 16")
    b(f"s_cselect_b32 s{sP}, s{sP}, s{sTmp}")
    if "r128" in OPT:
        b(f"s_and_b32 s{sTmp}, s{sP}, 1")
        b(f"s_add_u32 s{sP}, s{sP}, s{sTmp}")
        b(f"s_cmp_eq_u32 s{sTmp}, 0")
        b(f"s_movk_i32 s{sR2}, 128")
        b(f"s_cselect_b32 s{sR2}, s{sR2}, {-64 & 0xffffffff}")
        b(f"s_cselect_b32 s{sR3}, 192, 128") if False else None
        b(f"s_movk_i32 s{sR3}, 192"); b(f"s_movk_i32 s{sR4}, 256")
        b(f"s_cselect_b32 s{sTmp2}, 0, 64")
        b(f"s_sub_u32 s{sR3}, s{sR3}, s{sTmp2}")
        b(f"s_sub_u32 s{sR4}, s{sR4}, s{sTmp2}")
        b(f"s_cmp_eq_u32 s{sTmp}, 0")
        b(f"s_movk_i32 s{sD1}, 2048"); b(f"s_movk_i32 s{sD2}, 2048")
        b(f"s_cselect_b32 s{sD1}, s{sD1}, {-4096 & 0xffffffff}")
        b(f"s_cselect_b32 s{sD2}, s{sD2}, 6144")
    else:
        b(f"s_movk_i32 s{sR2}, 128"); b(f"s_movk_i32 s{sR3}, 192"); b(f"s_movk_i32 s{sR4}, 256")
        b(f"s_movk_i32 s{sD1}, 2048"); b(f"s_movk_i32 s{sD2}, 2048")
    b(f"s_mov_b32 s{sT}, s{sCG}")
    b(f"s_mov_b32 s{sPh}, 0")
    b(f"s_mul_i32 s{sHoff}, s{sTB}, 288")
    b(f"s_lshl_b32 s{sTmp}, s{sP}, 1")
    b(f"s_add_u32 s{sHoff}, s{sHoff}, s{sTmp}")
    b(f"s_lshl_b32 s{sHoff}, s{sHoff}, 10")
    b(f"s_lshl_b32 s{sP}, s{sP}, 6")
    b(f"s_lshr_b32 s{sTmp}, s{sW}, 1")
    b(f"s_mul_i32 s{sTmp}, s{sTmp}, 147456")
    b(f"s_add_u32 s{sP}, s{sP}, s{sTmp}")
    b(f"s_lshl_b32 s{sW1024}, s{sW}, 10")
    b(f"s_lshl_b32 s{sLDo}, s{sT}, 6")
    b(f"s_mul_i32 s{sTmp}, s{sW}, 55296")
    b(f"s_add_u32 s{sLDo}, s{sLDo}, s{sTmp}")
    b("s_waitcnt lgkmcnt(0)")
    srd(b, sXN, sWS, SZ_T, WS_XN)
    b(f"s_and_b32 s{sTmp}, s{sW}, 1")
    b(f"s_cmp_eq_u32 s{sTmp}, 0")
    b(f"s_cselect_b32 s{sWP}, s{sWGp}, s{sWUp}")
    b(f"s_cselect_b32 s{sWP+1}, s{sWGp+1}, s{sWUp+1}")
    b(f"s_mov_b32 s{sWP+2}, {SZ_WG}")
    b(f"s_mov_b32 s{sWP+3}, 0x20000")
    srd(b, sWQ, sWQp, SZ_WQKV)
    srd(b, sLD, sWQp, SZ_WQKV)
    srd(b, sH, sWS, SZ_H, WS_H)
    srd(b, sO, sWS, 3*SZ_T, WS_Q)
    b(f"s_mul_i32 s{sOff}, s{sTB}, 36864")
    so = [stream_ops(j) for j in range(PRE)]
    for j in range(PRE):
        b.ext(so[j][0]); b.ext(so[j][1])
    for j in range(PRE):
        for op in so[j][2:]: b.ext(op)
    if "noself" not in OPT:
        b(f"s_add_u32 s{sTmp2}, s{sRB}, 1")
        b(f"s_mul_i32 s{sTmp2}, s{sTmp2}, {4*147456}")
        b(f"s_add_u32 s{sTmp2}, s{sTmp2}, s{sP}")
        for h in range(2):
            b(f"s_mov_b32 m0, {SCR}")
            b(f"s_add_u32 s{sTmp}, s{sTmp2}, {64*h}")
            b(f"buffer_load_dwordx4 v{vDP}, s[{sWP}:{sWP+3}], s{sTmp} offen lds ;#pf")
        b(f"s_mul_i32 s{sTmp}, s{sRB}, {8*55296}")
        b(f"s_add_u32 s{sTmp}, s{sTmp}, s{sLDo}")
        b(f"buffer_load_dwordx4 v{vDQ}, s[{sWQ}:{sWQ+3}], s{sTmp} offen lds ;#pf")
    b(W.wv("w0")); b("s_barrier")
    for f in range(4): b.ext(ff_reads(f))
    b(W.wv("w1")); b("s_barrier")
    stamp(b, 1, prof)
    pro = list(b.ins)
    FF = ff2_body()
    SG0 = ld_pair(2) + single_body(False, 0, 0, "pair", 9)
    P0a = ld_pair(3)
    P0 = pair_body(0, 1, "pair", delta=f"s{sD1}")
    wdsrd = Blk(); srd(wdsrd, sWD, sWDp, SZ_WG)
    wpf = wd_prefetch() if "nowd" not in OPT else ()
    P1p = wdsrd.ins + ld_pair(4) + pair_body(1, 0, "pair", wpf, delta=f"s{sD2}")
    P1s = wdsrd.ins + ld_single(0) + pair_body(1, 0, "single", wpf, delta=f"s{sD2}")
    ex3 = [f"s_sub_u32 s{sTmp2}, s{sCG}, 16", f"s_cmp_lt_u32 s{sTmp2}, 6"]
    SG1 = {v: ld_single(16, ex3) + single_body(v, 1, 1, "single", 5) for v in (False, True)}
    SV = ld_none() + single_body(True, 0, None, "single", 0)
    drain = ["s_waitcnt lgkmcnt(0)", "s_nop 7"] + gelu_epilogue(*ACC[0])
    trA = pro + FF + SG0 + P0a + P0 + P1p + ld_none() + P0 + drain
    trB = pro + FF + SG0 + P0a + P0 + P1s + SG1[True] + SV
    trB2 = pro + FF + SG0 + P0a + P0 + P1s + SG1[False]
    for tr in (trA, trB, trB2): W.simulate(tr)
    R = W.resolve
    b.ins = R(b.ins)
    b.ext(R(FF))
    stamp(b, 2, prof)
    b.ext(R(SG0)); b.ext(P0a)
    b.label("L_k1_p0")
    b.ext(R(P0))
    b(f"s_cmp_eq_u32 s{sPh}, 1")
    b("s_cbranch_scc1 L_k1_drain")
    b(f"s_cmp_lt_u32 s{sCG}, 16")
    b("s_cbranch_scc0 L_k1_B")
    b.ext(R(P1p)); b.ext(ld_none())
    b(f"s_mov_b32 s{sPh}, 1")
    b(f"s_movk_i32 s{sD1}, 2048")
    b("s_branch L_k1_p0")
    b.label("L_k1_B")
    b.ext(R(P1s))
    stamp(b, 3, prof)
    b(f"s_cmp_ge_u32 s{sT}, 36")
    b("s_cbranch_scc1 L_k1_sg1v")
    b.ext(R(SG1[False])); b("s_branch L_k1_sg1d")
    b.label("L_k1_sg1v")
    b.ext(R(SG1[True]))
    b.label("L_k1_sg1d")
    b(f"s_sub_u32 s{sTmp2}, s{sCG}, 16")
    b(f"s_cmp_lt_u32 s{sTmp2}, 6")
    b("s_cbranch_scc0 L_k1_fin")
    b.ext(R(SV))
    b("s_branch L_k1_fin")
    b.label("L_k1_drain")
    stamp(b, 3, prof)
    b.ext(drain)
    b.label("L_k1_fin")
    b("s_waitcnt lgkmcnt(0)")
    if prof:
        stamp(b, 4, True)
        b("s_waitcnt vmcnt(0)")
        stamp(b, 5, True)
        b(f"s_lshl_b32 s{sTmp}, s2, 3")
        b(f"s_add_u32 s{sTmp}, s{sTmp}, s{sW}")
        b(f"s_lshl_b32 s{sTmp}, s{sTmp}, 5")
        srd(b, sXN, sWS, 1<<20, 40<<20)
        for i in range(6): b(f"v_mov_b32 v{16+i}, s{60+2*i}")
        if "fstamp" in OPT:
            for i in range(8): b(f"v_mov_b32 v{24+i}, s{70+2*i}")
            b("v_mov_b32 v12, 0")
            b(f"s_add_u32 s{sTmp2}, s{sTmp}, {1<<17}")
            b(f"buffer_store_dwordx4 v[24:27], v12, s[{sXN}:{sXN+3}], s{sTmp2} offen")
            b(f"buffer_store_dwordx4 v[28:31], v12, s[{sXN}:{sXN+3}], s{sTmp2} offen offset:16")
        b("v_mov_b32 v12, 0")
        b(f"buffer_store_dwordx4 v[16:19], v12, s[{sXN}:{sXN+3}], s{sTmp} offen")
        b(f"buffer_store_dwordx4 v[20:23], v12, s[{sXN}:{sXN+3}], s{sTmp} offen offset:16")
    if "rt" in OPT: prof_end(b, 1, 8)
    b.label("L_k1_end")
    b("s_endpgm")
    bad = 0
    for nm, tr in (("A", trA), ("B", trB), ("B2", trB2)): bad += len(check(R(tr), name+"_"+nm))
    assert bad == 0 or opts
    return name, kernel_text(name, b.text(), 256, 112, 100)
if __name__ == "__main__":
    n, t = gen_k1()
    open("k1.s", "w").write('.amdgcn_target "amdgcn-amd-amdhsa--gfx950"\n' + t)
```

```python
from common import *
SLOT = 20480; NSL = 4; B_LDS = SLOT*NSL
vL16, vTRb, vTR = 1, 2, 3
vD = 4
vA = 12
vB = 36
ACC = 96
sWS, sWDp = 4, 6
sWD, sHB, sPT = 8, 12, 16
sW, sX, sTB, sNH, sSlotR, sSlotW, sWoff, sHoff, sIt, sTmp, sTmp2, sW1024 = range(24, 36)
OPT = set()

def a_reads(g):
    pass

def dma_stage():
    o = []
    for i in range(5):
        o.append(f"s_add_u32 m0, s{sSlotW}, {i*4096}")
        o.append("s_nop 0")
        o.append(f"buffer_load_dwordx4 v{vD+i}, s[{sWD}:{sWD+3}], s{sWoff} offen lds ;#w")
    o.append(f"s_add_u32 s{sWoff}, s{sWoff}, {2*18432}")
    o.append(f"s_add_u32 s{sSlotW}, s{sSlotW}, {SLOT}")
    o.append(f"s_cmp_ge_u32 s{sSlotW}, {SLOT*NSL}")
    o.append(f"s_cselect_b32 s{sTmp}, {SLOT*NSL}, 0")
    o.append(f"s_sub_u32 s{sSlotW}, s{sSlotW}, s{sTmp}")
    return o
def adv_read():
    return [f"s_add_u32 s{sSlotR}, s{sSlotR}, {SLOT}",
            f"s_cmp_eq_u32 s{sSlotR}, {SLOT*NSL}",
            f"s_cselect_b32 s{sSlotR}, 0, s{sSlotR}"]

PD = 4
def body(W):
    vT = [vTR, vTRb+7]
    def rd(g):
        st = g//18; q = g % 18
        r = vA + (g % 6)*4
        base = vT[st % 2]
        o0 = (q//9)*16*576 + (q % 9)*64
        return [f"ds_read_b64_tr_b16 v[{r}:{r+1}], v{base} offset:{o0}",
                f"ds_read_b64_tr_b16 v[{r+2}:{r+3}], v{base} offset:{o0+8*576}"]
    o = []
    for g in range(108):
        ks = g//9; nt = g % 9; st = g//18
        if g % 18 == 0:
            o += [W.wv("w%d" % 0) if False else W.wv("wn"), "s_barrier"]
        if nt == 0: o.append(W.wv(f"b{ks}"))
        r = vA + (g % 6)*4; bb = vB + ks*4; a = ACC + nt*16
        o.append(W.wl(f"v[{r}:{r+3}]"))
        o.append(f"v_mfma_f32_32x32x16_bf16 v[{a}:{a+15}], v[{r}:{r+3}], v[{bb}:{bb+3}], v[{a}:{a+15}]")
        extra = []
        if g % 18 == 18 - PD - 2:
            extra += adv_read() + [f"v_add_u32 v{vT[(st+1) % 2]}, s{sSlotR}, v{vTRb}"]
        o += extra
        o += rd(g + PD)
        if "burst" in OPT:
            if g % 18 == 0:
                d = dma_stage()
                if st == 3: d = [f"s_cmp_eq_u32 s{sIt}, 1", f"s_cselect_b32 s{sWD+2}, 0, {SZ_WG}"] + d
                o += d
        else:
            d = dma_stage()
            q = g % 18
            if q == 0 and st == 3: o += [f"s_cmp_eq_u32 s{sIt}, 1", f"s_cselect_b32 s{sWD+2}, 0, {SZ_WG}"]
            if q in (2, 5, 8, 11, 14):
                i = (q - 2)//3
                o += [d[3*i], d[3*i+2]] if False else d[3*i:3*i+3]
            if q == 15: o += d[15:]
        if nt == 1:
            kn = (ks + 11) % 12
            rb = vB + kn*4
            o.append(f"buffer_load_dwordx4 v[{rb}:{rb+3}], v{vL16}, s[{sHB}:{sHB+3}], s{sHoff} offen ;#b{kn}")
            o.append(f"s_add_u32 s{sHoff}, s{sHoff}, 1024")
            if ks == 0:
                o += [f"s_cmp_eq_u32 s{sIt}, 1", f"s_cselect_b32 s{sHB+2}, 0, {SZ_H}"]
    if "nods" in OPT: o = [x for x in o if not x.startswith("ds_read") and not x.startswith("@WL")]
    if "nodma" in OPT: o = [x for x in o if not (x.startswith("buffer_load") and " lds" in x)]
    if "noB" in OPT: o = [x for x in o if not (x.startswith("buffer_load") and " lds" not in x)]
    if "nobar" in OPT: o = [x for x in o if x != "s_barrier"]
    return o

def gen_down_role(opts=()):
    OPT.clear(); OPT.update(opts)
    W = Waits()
    b = Blk()
    b(f"s_load_dwordx2 s[{sWS}:{sWS+1}], s[0:1], {KA_WS}")
    b(f"s_load_dwordx2 s[{sWDp}:{sWDp+1}], s[0:1], {KA_WD}")
    b(f"v_readfirstlane_b32 s{sW}, v0")
    b("v_and_b32 v0, 63, v0")
    b(f"s_lshr_b32 s{sW}, s{sW}, 6")
    if "xtok" in OPT:
        b(f"s_bfe_u32 s{sX}, s2, 0x30003")
        b(f"s_bfe_u32 s{sNH}, s2, 0x10006")
        b(f"s_and_b32 s{sTB}, s2, 7")
        b(f"s_lshl_b32 s{sTB}, s{sTB}, 1")
        b(f"s_bfe_u32 s{sTmp}, s2, 0x10007")
        b(f"s_add_u32 s{sTB}, s{sTB}, s{sTmp}")
    else:
        b(f"s_and_b32 s{sX}, s2, 7")
        b(f"s_bfe_u32 s{sNH}, s2, 0x10003")
        b(f"s_bfe_u32 s{sTB}, s2, 0x40004")
    b(f"s_lshl_b32 s{sTB}, s{sTB}, 2")
    b(f"s_add_u32 s{sTB}, s{sTB}, s{sW}")
    b(f"s_lshl_b32 s{sW1024}, s{sW}, 10")
    b(f"v_lshlrev_b32 v{vL16}, 4, v0")
    b("v_lshrrev_b32 v10, 5, v0")
    b("v_lshlrev_b32 v10, 2, v10")
    b("v_bfe_u32 v11, v0, 2, 2")
    b("v_add_u32 v10, v10, v11")
    b("v_mul_u32_u24 v10, 576, v10")
    b("v_bfe_u32 v11, v0, 4, 1")
    b("v_lshl_add_u32 v10, v11, 5, v10")
    b("v_and_b32 v11, 3, v0")
    b(f"v_lshl_add_u32 v{vTRb}, v11, 3, v10")
    b(f"v_mov_b32 v{vTR}, v{vTRb}")
    for i in range(5):
        b(f"s_add_u32 s{sTmp}, s{sW}, {4*i}")
        b(f"s_lshl_b32 s{sTmp2}, s{sTmp}, 10")
        b(f"v_add_u32 v10, s{sTmp2}, v{vL16}")
        b("v_lshrrev_b32 v11, 6, v10")
        b("v_mul_u32_u24 v11, 7282, v11")
        b("v_lshrrev_b32 v11, 16, v11")
        b("v_mul_u32_u24 v11, 576, v11")
        b(f"v_add_u32 v{vD+i}, v10, v11")
        if i == 4:
            b(f"s_cmp_ge_u32 s{sTmp}, 18")
            b(f"s_cselect_b32 s{sTmp2}, 0x7f000000, 0")
            b(f"v_add_u32 v{vD+i}, s{sTmp2}, v{vD+i}")
    b("s_waitcnt lgkmcnt(0)")
    srd(b, sWD, sWDp, SZ_WG)
    srd(b, sHB, sWS, SZ_H, WS_H)
    srd(b, sPT, sWS, NSPLIT*SZ_T, WS_P)
    b(f"s_mul_i32 s{sWoff}, s{sX}, {576*1152}")
    b(f"s_mul_i32 s{sTmp}, s{sNH}, 576")
    b(f"s_add_u32 s{sWoff}, s{sWoff}, s{sTmp}")
    b(f"s_mul_i32 s{sHoff}, s{sTB}, 288")
    b(f"s_mul_i32 s{sTmp}, s{sX}, 36")
    b(f"s_add_u32 s{sHoff}, s{sHoff}, s{sTmp}")
    b(f"s_lshl_b32 s{sHoff}, s{sHoff}, 10")
    b(f"s_mov_b32 s{sSlotW}, s{sW1024}")
    b(f"s_mov_b32 s{sSlotR}, 0")
    st0 = [x.replace(";#w", ";#w0") for x in dma_stage()]
    b.ext(st0)
    for ks in range(2):
        b(f"buffer_load_dwordx4 v[{vB+4*ks}:{vB+4*ks+3}], v{vL16}, s[{sHB}:{sHB+3}], s{sHoff} offen ;#b{ks}")
        b(f"s_add_u32 s{sHoff}, s{sHoff}, 1024")
    b.ext([x.replace(";#w", ";#w1") for x in dma_stage()])
    for ks in range(2, 6):
        b(f"buffer_load_dwordx4 v[{vB+4*ks}:{vB+4*ks+3}], v{vL16}, s[{sHB}:{sHB+3}], s{sHoff} offen ;#b{ks}")
        b(f"s_add_u32 s{sHoff}, s{sHoff}, 1024")
    b.ext([x.replace(";#w", ";#w2") for x in dma_stage()])
    for ks in range(6, 11):
        b(f"buffer_load_dwordx4 v[{vB+4*ks}:{vB+4*ks+3}], v{vL16}, s[{sHB}:{sHB+3}], s{sHoff} offen ;#b{ks}")
        b(f"s_add_u32 s{sHoff}, s{sHoff}, 1024")
    for i in range(144): b(f"v_mov_b32 v{ACC+i}, 0")
    b(W.wv("w0")); b("s_barrier")
    for g in range(PD):
        r = vA + (g % 6)*4
        b(f"ds_read_b64_tr_b16 v[{r}:{r+1}], v{vTR} offset:{g*64}")
        b(f"ds_read_b64_tr_b16 v[{r+2}:{r+3}], v{vTR} offset:{g*64+8*576}")
    b(f"s_mov_b32 s{sIt}, 3")
    pro = list(b.ins)
    bd = body(W)
    tail = [f"s_sub_u32 s{sIt}, s{sIt}, 1", f"s_cmp_lg_u32 s{sIt}, 0"]
    def trace(n):
        t = list(pro)
        st = 0; issued = 3
        for it in range(n):
            for s in bd + tail:
                if s.startswith("@WV") and s.endswith(" wn"):
                    t.append(s[:-2] + f"w{st+1}"); st += 1
                elif ";#w" in s and s.endswith(";#w"):
                    t.append(s.replace(";#w", f";#w{issued}"))
                    cnt = sum(1 for x in t if x.endswith(f";#w{issued}"))
                    if cnt == 5: issued += 1
                else: t.append(s)
        return t
    tr = trace(3)
    W.simulate(tr)
    R = W.resolve
    epi = Blk()
    epi("s_waitcnt vmcnt(0) lgkmcnt(0)")
    epi("s_nop 7"); epi("s_nop 3")
    epi(f"s_lshl_b32 s{sTmp}, s{sX}, 6")
    epi(f"s_add_u32 s{sTmp}, s{sTmp}, s{sTB}")
    epi(f"s_mul_i32 s{sTmp}, s{sTmp}, 18")
    epi(f"s_mul_i32 s{sTmp2}, s{sNH}, 9")
    epi(f"s_add_u32 s{sTmp}, s{sTmp}, s{sTmp2}")
    epi(f"s_lshl_b32 s{sTmp}, s{sTmp}, 11")
    for nt in range(9):
        a = ACC + nt*16; p = vB + (nt % 4)*8
        for i in range(8): epi(f"v_cvt_pk_bf16_f32 v{p+i}, v{a+2*i}, v{a+2*i+1}")
        epi(f"buffer_store_dwordx4 v[{p}:{p+3}], v{vL16}, s[{sPT}:{sPT+3}], s{sTmp} offen" + ("" if "xtok" in OPT else " sc1"))
        epi(f"buffer_store_dwordx4 v[{p+4}:{p+7}], v{vL16}, s[{sPT}:{sPT+3}], s{sTmp} offen offset:1024" + ("" if "xtok" in OPT else " sc1"))
        epi(f"s_add_u32 s{sTmp}, s{sTmp}, 2048")
    if "wbl2" in OPT:
        epi("s_waitcnt vmcnt(0)")
        epi("s_barrier")
        epi(f"s_cmp_eq_u32 s{sW}, 0")
        epi("s_cbranch_scc0 L_dn_nowb")
        epi("buffer_wbl2 sc1")
        epi.label("L_dn_nowb")
    if "nowo" not in OPT:
        epi(f"s_lshr_b32 s{sTmp}, s2, 3")
        epi(f"s_and_b32 s{sTmp}, s{sTmp}, 31")
        epi(f"s_lshl_b32 s{sTmp}, s{sTmp}, 2")
        epi(f"s_add_u32 s{sTmp}, s{sTmp}, s{sW}")
        epi(f"s_mul_i32 s{sTmp}, s{sTmp}, {6*1024}")
        srd(epi, sWD, sWS, SZ_WO, WS_WOF)
        for i in range(6):
            epi(f"buffer_load_dwordx4 v[{ACC+4*i}:{ACC+4*i+3}], v{vL16}, s[{sWD}:{sWD+3}], s{sTmp} offen")
            epi(f"s_add_u32 s{sTmp}, s{sTmp}, 1024")
    assert len(check(R(tr) + epi.ins, "down")) == 0 or (OPT - {"hi1","hi2","hi3","xtok","wbl2"})
    o = Blk(); o.ext(R(pro))
    if "stamp" in OPT: o("s_memtime s[76:77]"); o("s_waitcnt lgkmcnt(0)")
    hi = [x for x in OPT if x.startswith("hi")]
    if hi: o("s_setprio 2")
    o.label("L_dn_loop"); o.ext(R(bd))
    if hi:
        n = int(hi[0][2:])
        o(f"s_cmp_eq_u32 s{sIt}, {4-n}")
        o("s_cbranch_scc0 L_dn_keep")
        o("s_setprio 0")
        o.label("L_dn_keep")
    o.ext(tail); o("s_cbranch_scc1 L_dn_loop")
    if "stamp" in OPT:
        o("s_memtime s[78:79]"); o("s_waitcnt lgkmcnt(0)"); o("s_sub_u32 s98, s78, s76")
    o.ext(epi)
    return o

def gen_down_kernel(prof=False, opts=()):
    name = "down_kernel"
    b = Blk()
    b("s_cmp_ge_u32 s2, 256")
    b("s_cbranch_scc1 L_dn_end")
    if prof: prof_begin(b)
    b.ext(gen_down_role(opts))
    if prof: prof_end(b, 3, 4)
    b.label("L_dn_end")
    b("s_endpgm")
    return name, kernel_text(name, b.text(), 256, 256, 100)
if __name__ == "__main__":
    n, t = gen_down_kernel()
    open("k2b.s", "w").write('.amdgcn_target "amdgcn-amd-amdhsa--gfx950"\n' + t)
```

```python
from common import *
X_LDS = 36*1024
K3_LDS = X_LDS + 9*1024
vL16, vAo, vXd, vXr, vOo, vBr = 1, 2, 3, 4, 5, 6
vB = 8
ACC = 20
T = 36
vX = 52
vP = 60
vTmp = 7
RING = 24
AHEAD = 12
sWS, sXp, sOp = 4, 8, 10
sWO, sOB, sPT, sX, sOut = 12, 16, 20, 24, 28
sW, sTB, sQ, sTmp, sTmp2, sOff, sN0, sOffL, sU, sA = range(32, 42)
import sys
xtok = 'd:xtok' in sys.argv
def gen_k3(prof=False, outsc1=False, stamp=0):
    name = "final_kernel"
    W = Waits()
    b = Blk()
    b("s_cmp_ge_u32 s2, 256")
    b("s_cbranch_scc1 L_k3_end")
    if prof: prof_begin(b)
    b(f"s_load_dwordx2 s[{sWS}:{sWS+1}], s[0:1], {KA_WS}")
    b(f"s_load_dwordx2 s[{sXp}:{sXp+1}], s[0:1], {KA_X}")
    b(f"s_load_dwordx2 s[{sOp}:{sOp+1}], s[0:1], {KA_OUT}")
    b(f"v_readfirstlane_b32 s{sW}, v0")
    b("v_and_b32 v0, 63, v0")
    b(f"s_lshr_b32 s{sW}, s{sW}, 6")
    b(f"s_and_b32 s{sTB}, s2, 7")
    b(f"s_lshr_b32 s{sTmp}, s2, 5")
    if xtok: b(f"s_lshl_b32 s{sTB}, s{sTB}, 3")
    else: b(f"s_lshl_b32 s{sTmp}, s{sTmp}, 3")
    b(f"s_add_u32 s{sTB}, s{sTB}, s{sTmp}")
    b(f"s_bfe_u32 s{sQ}, s2, 0x20003")
    b(f"s_mul_i32 s{sN0}, s{sQ}, 288")
    b(f"s_lshl_b32 s{sTmp}, s{sW}, 6")
    b(f"s_add_u32 s{sN0}, s{sN0}, s{sTmp}")
    b(f"s_mul_i32 s{sU}, s{sQ}, 9")
    b(f"s_lshl_b32 s{sTmp}, s{sW}, 1")
    b(f"s_add_u32 s{sU}, s{sU}, s{sTmp}")
    b(f"v_lshlrev_b32 v{vL16}, 4, v0")
    b("v_bfe_u32 v8, v0, 4, 1")
    b("v_lshlrev_b32 v8, 9, v8")
    b("v_lshrrev_b32 v9, 5, v0")
    b("v_lshl_add_u32 v8, v9, 8, v8")
    b("v_and_b32 v10, 15, v0")
    b(f"v_lshl_add_u32 v{vAo}, v10, 4, v8")
    b("v_and_b32 v8, 31, v0")
    b("v_mul_u32_u24 v10, 288, v8")
    b("v_lshl_add_u32 v10, v9, 3, v10")
    b(f"s_add_u32 s{sTmp}, s{sTmp}, 0") if False else None
    b(f"s_lshl_b32 s{sTmp}, s{sW}, 6")
    b(f"s_add_u32 s{sTmp}, s{sTmp}, {X_LDS}")
    b(f"v_add_u32 v{vXr}, s{sTmp}, v10")
    b(f"s_lshl_b32 s{sTmp}, s{sTB}, 5")
    b(f"v_add_u32 v8, s{sTmp}, v8")
    b("v_mul_u32_u24 v8, 1152, v8")
    b(f"v_lshl_add_u32 v{vOo}, v9, 4, v8")
    b("s_waitcnt lgkmcnt(0)")
    srd(b, sWO, sWS, SZ_WO, WS_WOF)
    srd(b, sOB, sWS, SZ_T, WS_O)
    srd(b, sPT, sWS, NSPLIT*SZ_T, WS_P)
    srd(b, sX, sXp, SZ_X)
    srd(b, sOut, sOp, SZ_X)
    if prof and stamp == 4: b("s_memtime s[76:77]"); b("s_waitcnt lgkmcnt(0)"); b("s_sub_u32 s98, s76, s90")
    b(f"s_cmp_ge_u32 s{sW}, 4")
    b("s_cbranch_scc1 L_k3_xdma")
    head = list(b.ins)
    osec = Blk()
    osec(f"s_mul_i32 s{sOff}, s{sTB}, 36864")
    osec(f"s_lshl_b32 s{sTmp}, s{sW}, 10")
    osec(f"s_add_u32 s{sOff}, s{sOff}, s{sTmp}")
    for i in range(9):
        osec(f"s_add_u32 m0, s{sTmp}, {i*4096}")
        osec("s_nop 0")
        osec(f"buffer_load_dwordx4 v{vL16}, s[{sOB}:{sOB+3}], s{sOff} offen lds ;#o")
        osec(f"s_add_u32 s{sOff}, s{sOff}, 4096")
    xsec = Blk()
    xsec(f"s_mul_i32 s{sOff}, s{sTB}, {32*1152}")
    xsec(f"s_mul_i32 s{sTmp}, s{sQ}, 288")
    xsec(f"s_add_u32 s{sOff}, s{sOff}, s{sTmp}")
    for i in range(9):
        xsec(f"v_add_u32 v8, {64*i}, v0")
        xsec("v_mul_u32_u24 v9, 3641, v8")
        xsec("v_lshrrev_b32 v9, 16, v9")
        xsec("v_mul_u32_u24 v9, 864, v9")
        xsec("v_lshl_add_u32 v8, v8, 4, v9")
        xsec(f"s_mov_b32 m0, {X_LDS + i*1024}")
        xsec("s_nop 0")
        xsec(f"buffer_load_dwordx4 v8, s[{sX}:{sX+3}], s{sOff} offen lds ;#o")
    b.ext(osec); b("s_branch L_k3_join")
    b.label("L_k3_xdma"); b.ext(xsec)
    b.label("L_k3_join")
    rest = Blk()
    rest(f"s_lshl_b32 s{sA}, s{sU}, 9")
    def a_load(sg):
        r = (sg % RING)*4
        return [f"buffer_load_dwordx4 a[{r}:{r+3}], v{vAo}, s[{sWO}:{sWO+3}], s{sA} offen ;#a{sg}",
                f"s_add_u32 s{sA}, s{sA}, {36*512}"]
    rest(f"s_mul_i32 s{sOff}, s{sTB}, 36")
    rest(f"s_add_u32 s{sOff}, s{sOff}, s{sU}")
    rest(f"s_lshl_b32 s{sOff}, s{sOff}, 10")
    rest(f"s_movk_i32 s{sOffL}, 1024")
    rest(f"s_cmp_ge_u32 s{sW}, 4")
    rest(f"s_cselect_b32 s{sOffL}, 0x7f000000, s{sOffL}")
    def p_load(s_):
        r = vP + s_*8
        return [f"buffer_load_dwordx4 v[{r}:{r+3}], v{vL16}, s[{sPT}:{sPT+3}], s{sOff} offen ;#p{s_}",
                f"s_add_u32 s{sTmp}, s{sOff}, s{sOffL}",
                f"buffer_load_dwordx4 v[{r+4}:{r+7}], v{vL16}, s[{sPT}:{sPT+3}], s{sTmp} offen ;#p{s_}",
                f"s_add_u32 s{sOff}, s{sOff}, {SZ_T}"]
    def p_add(s_):
        o = [W.wv(f"p{s_}")]
        for i in range(8):
            r = vP + s_*8 + i
            o += [f"v_lshlrev_b32 v{vTmp}, 16, v{r}", f"v_and_b32 v{r}, 0xffff0000, v{r}",
                  f"v_add_f32 v{T+2*i}, v{T+2*i}, v{vTmp}", f"v_add_f32 v{T+2*i+1}, v{T+2*i+1}, v{r}"]
        return o
    def rdB(ks):
        r = vB + (ks % 3)*4
        return [f"ds_read_b128 v[{r}:{r+3}], v{vL16} offset:{ks*1024}"]
    for s_ in range(4): rest.ext(p_load(s_))
    rest(W.wv("o")); rest("s_barrier")
    if prof and stamp == 1: rest("s_memtime s[76:77]"); rest("s_waitcnt lgkmcnt(0)"); rest("s_sub_u32 s98, s76, s90")
    for g in range(4): rest(f"ds_read_b64 v[{vX+2*g}:{vX+2*g+1}], v{vXr} offset:{g*16}")
    for ks in range(2): rest.ext(rdB(ks))
    rest.ext(p_load(4))
    rest(W.wl(f"v[{vX}:{vX+7}]"))
    for i in range(8):
        rest(f"v_lshlrev_b32 v{T+2*i}, 16, v{vX+i}")
        rest(f"v_and_b32 v{T+2*i+1}, 0xffff0000, v{vX+i}")
    rest.ext(p_add(0)); rest.ext(p_load(5)); rest.ext(p_add(1)); rest.ext(p_load(6)); rest.ext(p_add(2)); rest.ext(p_load(7)); rest.ext(p_add(3))
    na = AHEAD//4
    for k in range(4):
        for sg in range(k*na, (k+1)*na): rest.ext(a_load(sg))
        rest.ext(p_add(4+k))
    if prof and stamp == 2: rest("s_memtime s[76:77]"); rest("s_waitcnt lgkmcnt(0)"); rest("s_sub_u32 s98, s76, s90")
    for ks in range(36):
        ra = (ks % RING)*4; rb = vB + (ks % 3)*4
        rest(W.wv(f"a{ks}"))
        rest(W.wl(f"v[{rb}:{rb+3}]"))
        c = f"v[{T}:{T+15}]" if ks == 0 else f"v[{ACC}:{ACC+15}]"
        rest(f"v_mfma_f32_32x32x16_bf16 v[{ACC}:{ACC+15}], a[{ra}:{ra+3}], v[{rb}:{rb+3}], {c}")
        if ks + AHEAD < 36: rest.ext(a_load(ks + AHEAD))
        if ks + 2 < 36: rest.ext(rdB(ks+2))
    rest("s_nop 7"); rest("s_nop 3")
    if prof and stamp == 3: rest("s_memtime s[76:77]"); rest("s_waitcnt lgkmcnt(0)"); rest("s_sub_u32 s98, s76, s90")
    for i in range(8): rest(f"v_cvt_pk_bf16_f32 v{vX+i}, v{ACC+2*i}, v{ACC+2*i+1}")
    rest("s_nop 1")
    for s_ in range(2):
        rest(f"v_permlane32_swap_b32 v{vX+4*s_}, v{vX+4*s_+2}")
        rest(f"v_permlane32_swap_b32 v{vX+4*s_+1}, v{vX+4*s_+3}")
    sfx = " sc1" if outsc1 else ""
    rest(f"s_add_u32 s{sTmp}, s{sN0}, 32")
    rest(f"s_cmp_ge_u32 s{sW}, 4")
    rest(f"s_cselect_b32 s{sTmp}, 0x7f000000, s{sTmp}")
    rest(f"buffer_store_dwordx4 v[{vX}:{vX+3}], v{vOo}, s[{sOut}:{sOut+3}], s{sN0} offen" + sfx)
    rest(f"buffer_store_dwordx4 v[{vX+4}:{vX+7}], v{vOo}, s[{sOut}:{sOut+3}], s{sTmp} offen" + sfx)
    W.simulate(head + osec.ins + rest.ins)
    W.simulate(head + xsec.ins + rest.ins)
    r_ = W.resolve(rest.ins)
    assert len(check(head + osec.ins + r_, name)) == 0
    assert len(check(head + xsec.ins + r_, name + "_w4")) == 0
    b.ext(r_)
    if prof: prof_end(b, 4, 5)
    b.label("L_k3_end")
    b("s_endpgm")
    return name, kernel_text(name, b.text(), 124 + 96, 124, 100)
if __name__ == "__main__":
    n, t = gen_k3()
    open("k3.s", "w").write('.amdgcn_target "amdgcn-amd-amdhsa--gfx950"\n' + t)
```

```python
from common import *
import math
HALF = 73728; SCR = 2*HALF; K1_LDS = SCR + 1024
C1 = -2.0*math.sqrt(2.0/math.pi)*math.log2(math.e); C2 = C1*0.044715
QSCALE = (18.0**-0.5)*math.log2(math.e)
sWS, sWQp, sWGp, sWUp = 4, 6, 8, 10
sXN, sLD, sH, sO, sWP, sWQ = 12, 16, 20, 24, 28, 48
sWD = 12
sWDp = 58
sR2, sR3, sR4, sD1, sD2 = 52, 53, 54, 55, 56
vFF = [12, 13, 14, 15]
sW, sTB, sN1, sPh, sT, sP, sHoff, sW1024, sLDo, sLDs, sTmp, sTmp2, sScale, sOff, sRB, sCG = range(32, 48)
vHs, vL16, vDQ, vDP, vLD, vC2 = 1, 2, 3, 4, 5, 6
vTR = [7, 8, 9, 10]
vPart = 11
vT = 12
ACC = [(16, 32), (48, 64)]
X = 80
SACC = 96
OPT = set()
W = None
PRE = 2

def gelu_epilogue(G, U, delta='2048'):
    e = []
    for grp in range(4):
        E = [4*grp+i for i in range(4)]
        e += [f"v_mul_f32 v{vT+i}, v{G+E[i]}, v{G+E[i]}" for i in range(4)]
        e += [f"v_fmaak_f32 v{vT+i}, v{vT+i}, v{vC2}, {f32hex(C1)}" for i in range(4)]
        e += [f"v_mul_f32 v{vT+i}, v{vT+i}, v{G+E[i]}" for i in range(4)]
        e += [f"v_exp_f32 v{vT+i}, v{vT+i}" for i in range(4)]
        e += [f"v_mul_f32 v{G+E[i]}, v{G+E[i]}, v{U+E[i]}" for i in range(4)]
        e += [f"v_add_f32 v{vT+i}, 1.0, v{vT+i}" for i in range(4)]
        e += [f"v_rcp_f32 v{vT+i}, v{vT+i}" for i in range(4)]
        e += [f"v_mul_f32 v{G+E[i]}, v{G+E[i]}, v{vT+i}" for i in range(4)]
        e += [f"v_cvt_pk_bf16_f32 v{U+2*grp}, v{G+4*grp}, v{G+4*grp+1}",
              f"v_cvt_pk_bf16_f32 v{U+2*grp+1}, v{G+4*grp+2}, v{G+4*grp+3}"]
        nb, tt = grp//2, grp % 2
        e += [f"buffer_store_dwordx2 v[{U+2*grp}:{U+2*grp+1}], v{vHs}, s[{sH}:{sH+3}], s{sHoff} offen offset:{nb*1024 + tt*256}" + ("" if "plainst" in OPT else " sc1")]
    e.append(f"s_add_u32 s{sHoff}, s{sHoff}, {delta}")
    if "noepi" in OPT: e = [x for x in e if not x.startswith("v_")]
    if "nost" in OPT: e = [x for x in e if not x.startswith("buffer")]
    return e

def rd2(bases, nb, off, r):
    base, o = (bases[nb], off) if off < 65536 - 256 else (bases[2+nb], off - 65536)
    return [f"ds_read_b64_tr_b16 v[{r}:{r+1}], v{base} offset:{o}",
            f"ds_read_b64_tr_b16 v[{r+2}:{r+3}], v{base} offset:{o+256}"]
def poff(m, mat): return (m//2)*8192 + (((2*m) % 4)*2 + mat)*1024
def preg(f): return X + (f % 6)*4
def pair_reads(f): return rd2(vTR, f % 2, poff(f//4, (f//2) % 2), preg(f))
def sreg(f): return X + (f % 4)*4
def single_reads(f): return rd2(vTR, f % 2, (f//2)*2048, sreg(f))
def ffreg(f): return X + (f % 8)*4
def ff_reads(f): return rd2(vTR if (f//4) % 2 == 0 else vFF, f % 2, poff(f//8, (f//2) % 2), ffreg(f))
def set_bases(kind, half, dst=None):
    dst = dst or vTR
    sh = 11 if kind == "pair" else 10
    return [f"v_lshrrev_b32 v{dst[0]}, 5, v0", f"v_lshlrev_b32 v{dst[0]}, {sh}, v{dst[0]}",
            f"v_add_u32 v{dst[0]}, v{dst[0]}, v{vPart}", f"v_add_u32 v{dst[0]}, {half*HALF}, v{dst[0]}",
            f"v_xor_b32 v{dst[1]}, 32, v{dst[0]}",
            f"v_add_u32 v{dst[2]}, 0x10000, v{dst[0]}", f"v_add_u32 v{dst[3]}, 0x10000, v{dst[1]}"]

def loader(i, half):
    return [f"s_add_u32 m0, s{sW1024}, {half*HALF + i*8192}",
            f"s_nop 0",
            f"buffer_load_dwordx4 v{vLD}, s[{sLD}:{sLD+3}], s{sLDo} offen lds ;#ld",
            f"s_add_u32 s{sLDo}, s{sLDo}, s{sLDs}"]
def next_reads(kind):
    if kind == "pair": return [pair_reads(f) for f in range(4)]
    return [single_reads(f) for f in range(3)]
def mm(A, a_op, b_op, first):
    return f"v_mfma_f32_16x16x32_bf16 v[{A}:{A+3}], {a_op}, {b_op}, " + ("0" if first else f"v[{A}:{A+3}]")
def place(main, extra):
    out = []; a = 0
    for s in main:
        out.append(s)
        if s.startswith("v_mfma"):
            out += extra.get(a, []); a += 1
    return out

def pair_body(cur, half, nxt_kind, pf=(), delta="2048"):
    G, U = ACC[cur]; Gp, Up = ACC[1-cur]
    main = []
    NF = 72; PD = 4
    for f in range(NF):
        m, mat, nb = f//4, (f//2) % 2, f % 2
        r = preg(f); A = (G, U)[mat] + nb*8
        last = f >= NF - 2
        if f == NF - 2:
            main += [W.wv("ld"), "s_waitcnt lgkmcnt(0)", "s_barrier"] + set_bases(nxt_kind, 1-half)
        if not last:
            if "w2" in OPT:
                if f % 2 == 0: main.append(W.wl(f"v[{r}:{r+3}]", f"v[{preg(f+1)}:{preg(f+1)+3}]"))
            else: main.append(W.wl(f"v[{r}:{r+3}]"))
        if f + PD < NF: rr = pair_reads(f + PD)
        elif last:
            nr = next_reads(nxt_kind); k = f - (NF - 2)
            rr = sum(nr[2*k:2*k+2], [])
        else: rr = []
        main.append(mm(A, f"v[{r}:{r+3}]", f"a[{8*m}:{8*m+3}]", m == 0))
        main += rr[:len(rr)//2]
        main.append(mm(A+4, f"v[{r}:{r+3}]", f"a[{8*m+4}:{8*m+7}]", m == 0))
        main += rr[len(rr)//2:]
    extra = {}
    LS = 4
    for o_ in OPT:
        if o_.startswith("ls"): LS = int(o_[2:])
    for i in range(9): extra.setdefault(LS*i + 2, []).extend(loader(i, 1-half))
    for q, op in enumerate(pf): extra.setdefault(LS*9 + 6 + 8*q, []).extend(op)
    if "nodma" in OPT: extra = {k: [x for x in v if not x.startswith("buffer")] for k, v in extra.items()}
    main = place(main, extra)
    return interleave(main, gelu_epilogue(Gp, Up, delta), start=6, end=132)

def stream_ops(j):
    ops = []
    for h in range(2):
        if "r128" in OPT:
            ops.append([f"s_add_u32 m0, s{sW1024}, {h*HALF + j*8192}",
                        f"s_add_u32 s{sTmp}, s{sP}, {4*j*147456 + 8*9216*h}",
                        f"buffer_load_dwordx4 v{vDF}, s[{sWP}:{sWP+3}], s{sTmp} offen lds ;#w{j}"])
            continue
        ops.append([f"s_add_u32 m0, s{sW1024}, {h*HALF + j*8192}",
                    f"s_add_u32 s{sTmp}, s{sP}, {4*j*147456 + 64*h}",
                    f"buffer_load_dwordx4 v{vDP}, s[{sWP}:{sWP+3}], s{sTmp} offen lds ;#w{j}"])
    for q in range(4):
        ks = 4*j + q
        o = []
        if q == 0 and j: o.append(f"s_add_u32 s{sOff}, s{sOff}, 4096")
        o.append(f"buffer_load_dwordx4 a[{4*ks}:{4*ks+3}], v{vL16}, s[{sXN}:{sXN+3}], s{sOff} offen offset:{q*1024} ;#x{ks}")
        ops.append(o)
    return ops

def t0_loader(i):
    return [f"s_add_u32 m0, s{sW1024}, {i*8192}",
            f"s_add_u32 s{sTmp}, s{sLDo}, {i*8*55296}",
            f"buffer_load_dwordx4 v{vDQ}, s[{sWQ}:{sWQ+3}], s{sTmp} offen lds ;#ld"]

def l2_prefetch():
    ops = []
    for q in (2, 3, 4):
        o = [f"s_mul_i32 s{sTmp}, s{sRB}, {4*147456}",
             f"s_add_u32 s{sTmp}, s{sTmp}, s{sP}",
             f"s_add_u32 s{sTmp}, s{sTmp}, s{ {2: sR2, 3: sR3, 4: sR4}[q] }"]
        if q == 4:
            o += [f"s_cmp_lt_u32 s{sCG}, 16", f"s_cselect_b32 s{sTmp}, s{sTmp}, 0x7f000000"]
        o += [f"s_mov_b32 m0, {SCR}", "s_nop 0",
              f"buffer_load_dwordx4 v{vDP}, s[{sWP}:{sWP+3}], s{sTmp} offen lds ;#pf"]
        ops.append(o)
    for q in (1, 2):
        o = [f"s_mul_i32 s{sTmp}, s{sRB}, {8*55296}",
             f"s_add_u32 s{sTmp}, s{sTmp}, s{sLDo}",
             f"s_add_u32 s{sTmp}, s{sTmp}, {16*64*q}",
             f"s_sub_u32 s{sTmp2}, s{sCG}, 16",
             f"s_cmp_lt_u32 s{sTmp2}, {16 if q == 1 else 6}",
             f"s_cselect_b32 s{sTmp}, s{sTmp}, 0x7f000000",
             f"s_mov_b32 m0, {SCR}", "s_nop 0",
             f"buffer_load_dwordx4 v{vDQ}, s[{sWQ}:{sWQ+3}], s{sTmp} offen lds ;#pf"]
        ops.append(o)
    return ops

def wd_prefetch():
    ops = []
    for n in range(3):
        ops.append([f"s_lshr_b32 s{sTmp}, s2, 3",
                    f"s_lshl_b32 s{sTmp}, s{sTmp}, 3",
                    f"s_add_u32 s{sTmp}, s{sTmp}, s{sW}",
                    f"s_add_u32 s{sTmp}, s{sTmp}, {256*n}",
                    f"s_lshl_b32 s{sTmp}, s{sTmp}, 10",
                    f"s_cmp_lt_u32 s{sTmp}, {576*1152}",
                    f"s_cselect_b32 s{sTmp}, s{sTmp}, 0x7f000000",
                    f"s_and_b32 s{sTmp2}, s2, 7",
                    f"s_mul_i32 s{sTmp2}, s{sTmp2}, {576*1152}",
                    f"s_add_u32 s{sTmp}, s{sTmp}, s{sTmp2}",
                    f"s_mov_b32 m0, {SCR}", "s_nop 0",
                    f"buffer_load_dwordx4 v{vL16}, s[{sWD}:{sWD+3}], s{sTmp} offen lds ;#pf"])
    return ops

def ff2_body():
    main = []
    NF = 144; PD = 4
    for f in range(NF):
        m, t, mat, nb = f//8, (f//4) % 2, (f//2) % 2, f % 2
        if f % 16 == 0 and 0 < f < 128:
            j = f//16
            main.append(W.wv(f"w{j+1}")); main.append("s_barrier")
            if "fstamp" in OPT: main += [f"s_memtime s[{70+2*j}:{71+2*j}]", "s_waitcnt lgkmcnt(0)"]
        r = ffreg(f); A = ACC[t][mat] + nb*8
        last = f >= NF - 2
        if f == NF - 2:
            main += [W.wv("ld"), "s_waitcnt lgkmcnt(0)", "s_barrier"] + set_bases("single", 0)
        if f % 8 == 0: main += [W.wv(f"x{2*m}"), W.wv(f"x{2*m+1}")]
        if not last: main.append(W.wl(f"v[{r}:{r+3}]"))
        if f + PD < NF: rr = ff_reads(f + PD)
        elif last:
            nr = next_reads("single"); k = f - (NF - 2)
            rr = sum(nr[2*k:2*k+2], [])
        else: rr = []
        main.append(mm(A, f"v[{r}:{r+3}]", f"a[{8*m}:{8*m+3}]", m == 0))
        main += rr[:len(rr)//2]
        main.append(mm(A+4, f"v[{r}:{r+3}]", f"a[{8*m+4}:{8*m+7}]", m == 0))
        main += rr[len(rr)//2:]
    extra = {}
    for j in range(9 - PRE):
        for q, op in enumerate(stream_ops(j + PRE)): extra.setdefault(32*j + 4*q + 2, []).extend(op)
    for i in range(5): extra.setdefault(32*(i+1) + 28, []).extend(t0_loader(i))
    if "early" in OPT:
        if "nopf" not in OPT:
            for q, op in enumerate(l2_prefetch()): extra.setdefault(32*6 + 1 + 6*q, []).extend(op)
        extra.setdefault(32*7 + 1, []).extend(ld_pair(2))
        for i in range(7): extra.setdefault(32*7 + 3 + 8*i, []).extend([x.replace(";#ld", ";#lq") for x in loader(i, 1)])
    elif "nopf" not in OPT:
        for q, op in enumerate(l2_prefetch()): extra.setdefault(32*7 + 6 + 8*q, []).extend(op)
    return place(main, extra)

def single_epilogue(isV):
    A = SACC
    b = Blk()
    if isV:
        b(f"s_sub_u32 s{sTmp}, s{sT}, 36")
        b(f"s_lshl_b32 s{sTmp}, s{sTmp}, 11")
        b(f"s_add_u32 s{sTmp}, s{sTmp}, {2*SZ_T}")
        b(f"v_lshrrev_b32 v{vT}, 5, v0"); b(f"v_lshlrev_b32 v{vT}, 9, v{vT}")
        b(f"v_and_b32 v{vT+1}, 15, v0"); b(f"v_lshl_add_u32 v{vT}, v{vT+1}, 4, v{vT}")
        b(f"v_bfe_u32 v{vT+1}, v0, 4, 1"); b(f"v_lshl_add_u32 v{vT}, v{vT+1}, 3, v{vT}")
    else:
        b(f"s_cmp_ge_u32 s{sT}, 18")
        b(f"s_cselect_b32 s{sTmp}, {SZ_T - 18*2048}, 0")
        b(f"s_cselect_b32 s{sScale}, 1.0, {f32hex(QSCALE)}")
        b(f"s_lshl_b32 s{sTmp2}, s{sT}, 11")
        b(f"s_add_u32 s{sTmp}, s{sTmp}, s{sTmp2}")
        b(f"v_lshrrev_b32 v{vT}, 5, v0"); b(f"v_lshlrev_b32 v{vT}, 9, v{vT}")
        b(f"v_bfe_u32 v{vT+1}, v0, 4, 1"); b(f"v_lshl_add_u32 v{vT}, v{vT+1}, 8, v{vT}")
        b(f"v_and_b32 v{vT+1}, 15, v0"); b(f"v_lshl_add_u32 v{vT}, v{vT+1}, 3, v{vT}")
    b(f"s_mul_i32 s{sTmp2}, s{sTB}, 36864")
    b(f"s_add_u32 s{sTmp}, s{sTmp}, s{sTmp2}")
    if not isV:
        for i in range(16): b(f"v_mul_f32 v{A+i}, s{sScale}, v{A+i}")
    for i in range(8): b(f"v_cvt_pk_bf16_f32 v{A+i}, v{A+2*i}, v{A+2*i+1}")
    for g in range(4):
        nb, tt = g//2, g % 2
        off = (tt*1024 + nb*256) if isV else (nb*1024 + tt*128)
        b(f"buffer_store_dwordx2 v[{A+2*g}:{A+2*g+1}], v{vT}, s[{sO}:{sO+3}], s{sTmp} offen offset:{off}" + ("" if "plainqkv" in OPT else " sc1"))
    b(f"s_add_u32 s{sT}, s{sT}, 16")
    b("s_nop 0")
    return b.ins

def single_body(isV, half, gelu_set, nxt_kind, nld, ld0=0):
    main = []
    NF = 36; PD = 3
    for f in range(NF):
        m, nb = f//2, f % 2
        r = sreg(f); A = SACC + nb*8
        last = f >= NF - 1
        if last: main += [W.wv("ld"), "s_waitcnt lgkmcnt(0)", "s_barrier"] + set_bases(nxt_kind, 1-half)
        else: main.append(W.wl(f"v[{r}:{r+3}]"))
        if f + PD < NF: rr = single_reads(f + PD)
        elif last: rr = sum(next_reads(nxt_kind)[:3], [])
        else: rr = []
        w_, x0, x1 = f"v[{r}:{r+3}]", f"a[{8*m}:{8*m+3}]", f"a[{8*m+4}:{8*m+7}]"
        main.append(mm(A, x0, w_, m == 0) if isV else mm(A, w_, x0, m == 0))
        main += rr[:len(rr)//2]
        main.append(mm(A+4, x1, w_, m == 0) if isV else mm(A+4, w_, x1, m == 0))
        main += rr[len(rr)//2:]
    if nxt_kind == "pair": main += next_reads("pair")[3]
    extra = {}
    for i in range(ld0, nld): extra.setdefault(4*(i-ld0) + 2, []).extend(loader(i, 1-half))
    main = place(main, extra)
    if gelu_set is not None: main = interleave(main, gelu_epilogue(*ACC[gelu_set]), start=6, end=68)
    return main + single_epilogue(isV)

def ld_pair(q):
    return [f"s_mov_b32 s{sLD}, s{sWP}", f"s_mov_b32 s{sLD+1}, s{sWP+1}", f"s_mov_b32 s{sLD+2}, {SZ_WG}",
            f"s_add_u32 s{sLDo}, s{sP}, s{ {2: sR2, 3: sR3, 4: sR4}[q] }", f"s_mov_b32 s{sLDs}, {4*147456}", f"v_mov_b32 v{vLD}, v{vDP}"]
def ld_single(add, cond=None):
    o = [f"s_mov_b32 s{sLD}, s{sWQ}", f"s_mov_b32 s{sLD+1}, s{sWQ+1}"]
    if cond is None: o.append(f"s_mov_b32 s{sLD+2}, {SZ_WQKV}")
    else: o += cond + [f"s_cselect_b32 s{sLD+2}, {SZ_WQKV}, 0"]
    o += [f"s_add_u32 s{sLDo}, s{sT}, {add}", f"s_lshl_b32 s{sLDo}, s{sLDo}, 6",
          f"s_mul_i32 s{sTmp}, s{sW}, 55296", f"s_add_u32 s{sLDo}, s{sLDo}, s{sTmp}",
          f"s_mov_b32 s{sLDs}, {8*55296}", f"v_mov_b32 v{vLD}, v{vDQ}"]
    return o
def ld_none(): return [f"s_mov_b32 s{sLD+2}, 0"]

def stamp(b, i, on):
    if on:
        b(f"s_memtime s[{60+2*i}:{61+2*i}]")
        b("s_waitcnt lgkmcnt(0)")

def gen_k1(xmap="R8", prof=False, opts=()):
    global W, PRE
    OPT.clear(); OPT.update(opts)
    PRE = 2
    for o in opts:
        if o.startswith("pre"): PRE = int(o[3:])
    W = Waits()
    name = "gemm1_kernel"
    b = Blk(name)
    stamp(b, 0, prof)
    b("s_cmp_ge_u32 s2, 256")
    b("s_cbranch_scc1 L_k1_end")
    if "rt" in OPT: prof_begin(b)
    b(f"s_load_dwordx2 s[{sWS}:{sWS+1}], s[0:1], {KA_WS}")
    b(f"s_load_dwordx2 s[{sWQp}:{sWQp+1}], s[0:1], {KA_WQKV}")
    b(f"s_load_dwordx2 s[{sWGp}:{sWGp+1}], s[0:1], {KA_WG}")
    b(f"s_load_dwordx2 s[{sWUp}:{sWUp+1}], s[0:1], {KA_WU}")
    b(f"s_load_dwordx2 s[{sWDp}:{sWDp+1}], s[0:1], {KA_WD}")
    b(f"v_readfirstlane_b32 s{sW}, v0")
    b("v_and_b32 v0, 63, v0")
    b(f"s_lshr_b32 s{sW}, s{sW}, 6")
    b(f"v_lshlrev_b32 v{vL16}, 4, v0")
    b("v_lshrrev_b32 v12, 2, v0")
    b("v_bfe_u32 v13, v0, 1, 1")
    b("v_bfe_u32 v14, v0, 5, 1")
    b("v_xor_b32 v13, v13, v14")
    b("v_lshlrev_b32 v13, 5, v13")
    b("v_and_b32 v14, 1, v0")
    b("v_lshl_add_u32 v13, v14, 4, v13")
    b(f"v_mul_u32_u24 v{vDQ}, 3456, v12")
    b(f"v_add_u32 v{vDQ}, v{vDQ}, v13")
    b(f"v_mul_u32_u24 v{vDP}, 9216, v12")
    b(f"v_add_u32 v{vDP}, v{vDP}, v13")
    b(f"v_mov_b32 v{vLD}, v{vDP}")
    b("v_bfe_u32 v12, v0, 4, 1")
    b("v_mul_u32_u24 v13, 544, v12")
    b("v_bfe_u32 v14, v0, 2, 2")
    b("v_lshl_add_u32 v13, v14, 6, v13")
    b("v_and_b32 v14, 3, v0")
    b(f"v_lshl_add_u32 v{vPart}, v14, 3, v13")
    b("v_bfe_u32 v12, v0, 4, 1")
    b("v_lshlrev_b32 v12, 9, v12")
    b("v_and_b32 v13, 15, v0")
    b("v_lshl_add_u32 v12, v13, 4, v12")
    b("v_lshrrev_b32 v13, 5, v0")
    b(f"v_lshl_add_u32 v{vHs}, v13, 3, v12")
    b.ext(set_bases("pair", 0, vTR)); b.ext(set_bases("pair", 1, vFF))
    b(f"v_mov_b32 v{vC2}, {f32hex(C2)}")
    b(f"s_and_b32 s{sCG}, s2, 7")
    b(f"s_lshr_b32 s{sTmp}, s2, 3")
    b(f"s_and_b32 s{sTmp}, s{sTmp}, 3")
    b(f"s_lshl_b32 s{sTmp}, s{sTmp}, 3")
    b(f"s_add_u32 s{sCG}, s{sCG}, s{sTmp}")
    b(f"s_lshr_b32 s{sRB}, s2, 5")
    b(f"s_lshl_b32 s{sTB}, s{sRB}, 3")
    b(f"s_add_u32 s{sTB}, s{sTB}, s{sW}")
    b(f"s_mul_i32 s{sP}, s{sCG}, 5")
    b(f"s_lshl_b32 s{sTmp}, s{sCG}, 2")
    b(f"s_add_u32 s{sTmp}, s{sTmp}, 16")
    b(f"s_cmp_lt_u32 s{sCG}, 16")
    b(f"s_cselect_b32 s{sP}, s{sP}, s{sTmp}")
    if "r128" in OPT:
        b(f"s_and_b32 s{sTmp}, s{sP}, 1")
        b(f"s_add_u32 s{sP}, s{sP}, s{sTmp}")
        b(f"s_cmp_eq_u32 s{sTmp}, 0")
        b(f"s_movk_i32 s{sR2}, 128")
        b(f"s_cselect_b32 s{sR2}, s{sR2}, {-64 & 0xffffffff}")
        b(f"s_cselect_b32 s{sR3}, 192, 128") if False else None
        b(f"s_movk_i32 s{sR3}, 192"); b(f"s_movk_i32 s{sR4}, 256")
        b(f"s_cselect_b32 s{sTmp2}, 0, 64")
        b(f"s_sub_u32 s{sR3}, s{sR3}, s{sTmp2}")
        b(f"s_sub_u32 s{sR4}, s{sR4}, s{sTmp2}")
        b(f"s_cmp_eq_u32 s{sTmp}, 0")
        b(f"s_movk_i32 s{sD1}, 2048"); b(f"s_movk_i32 s{sD2}, 2048")
        b(f"s_cselect_b32 s{sD1}, s{sD1}, {-4096 & 0xffffffff}")
        b(f"s_cselect_b32 s{sD2}, s{sD2}, 6144")
    else:
        b(f"s_movk_i32 s{sR2}, 128"); b(f"s_movk_i32 s{sR3}, 192"); b(f"s_movk_i32 s{sR4}, 256")
        b(f"s_movk_i32 s{sD1}, 2048"); b(f"s_movk_i32 s{sD2}, 2048")
    b(f"s_mov_b32 s{sT}, s{sCG}")
    b(f"s_mov_b32 s{sPh}, 0")
    b(f"s_mul_i32 s{sHoff}, s{sTB}, 288")
    b(f"s_lshl_b32 s{sTmp}, s{sP}, 1")
    b(f"s_add_u32 s{sHoff}, s{sHoff}, s{sTmp}")
    b(f"s_lshl_b32 s{sHoff}, s{sHoff}, 10")
    b(f"s_lshl_b32 s{sP}, s{sP}, 6")
    b(f"s_lshr_b32 s{sTmp}, s{sW}, 1")
    b(f"s_mul_i32 s{sTmp}, s{sTmp}, 147456")
    b(f"s_add_u32 s{sP}, s{sP}, s{sTmp}")
    b(f"s_lshl_b32 s{sW1024}, s{sW}, 10")
    b(f"s_lshl_b32 s{sLDo}, s{sT}, 6")
    b(f"s_mul_i32 s{sTmp}, s{sW}, 55296")
    b(f"s_add_u32 s{sLDo}, s{sLDo}, s{sTmp}")
    b("s_waitcnt lgkmcnt(0)")
    srd(b, sXN, sWS, SZ_T, WS_XN)
    b(f"s_and_b32 s{sTmp}, s{sW}, 1")
    b(f"s_cmp_eq_u32 s{sTmp}, 0")
    b(f"s_cselect_b32 s{sWP}, s{sWGp}, s{sWUp}")
    b(f"s_cselect_b32 s{sWP+1}, s{sWGp+1}, s{sWUp+1}")
    b(f"s_mov_b32 s{sWP+2}, {SZ_WG}")
    b(f"s_mov_b32 s{sWP+3}, 0x20000")
    srd(b, sWQ, sWQp, SZ_WQKV)
    srd(b, sLD, sWQp, SZ_WQKV)
    srd(b, sH, sWS, SZ_H, WS_H)
    srd(b, sO, sWS, 3*SZ_T, WS_Q)
    b(f"s_mul_i32 s{sOff}, s{sTB}, 36864")
    so = [stream_ops(j) for j in range(PRE)]
    for j in range(PRE):
        b.ext(so[j][0]); b.ext(so[j][1])
    for j in range(PRE):
        for op in so[j][2:]: b.ext(op)
    if "noself" not in OPT:
        b(f"s_add_u32 s{sTmp2}, s{sRB}, 1")
        b(f"s_mul_i32 s{sTmp2}, s{sTmp2}, {4*147456}")
        b(f"s_add_u32 s{sTmp2}, s{sTmp2}, s{sP}")
        for h in range(2):
            b(f"s_mov_b32 m0, {SCR}")
            b(f"s_add_u32 s{sTmp}, s{sTmp2}, {64*h}")
            b(f"buffer_load_dwordx4 v{vDP}, s[{sWP}:{sWP+3}], s{sTmp} offen lds ;#pf")
        b(f"s_mul_i32 s{sTmp}, s{sRB}, {8*55296}")
        b(f"s_add_u32 s{sTmp}, s{sTmp}, s{sLDo}")
        b(f"buffer_load_dwordx4 v{vDQ}, s[{sWQ}:{sWQ+3}], s{sTmp} offen lds ;#pf")
    b(W.wv("w0")); b("s_barrier")
    for f in range(4): b.ext(ff_reads(f))
    b(W.wv("w1")); b("s_barrier")
    stamp(b, 1, prof)
    pro = list(b.ins)
    FF = ff2_body()
    SG0 = (ld_pair(2) + single_body(False, 0, 0, "pair", 9)) if "early" not in OPT else single_body(False, 0, 0, "pair", 9, 7)
    P0a = ld_pair(3)
    P0 = pair_body(0, 1, "pair", delta=f"s{sD1}")
    wdsrd = Blk(); srd(wdsrd, sWD, sWDp, SZ_WG)
    wpf = wd_prefetch() if "nowd" not in OPT else ()
    P1p = wdsrd.ins + ld_pair(4) + pair_body(1, 0, "pair", wpf, delta=f"s{sD2}")
    P1s = wdsrd.ins + ld_single(0) + pair_body(1, 0, "single", wpf, delta=f"s{sD2}")
    ex3 = [f"s_sub_u32 s{sTmp2}, s{sCG}, 16", f"s_cmp_lt_u32 s{sTmp2}, 6"]
    SG1 = {v: ld_single(16, ex3) + single_body(v, 1, 1, "single", 5) for v in (False, True)}
    SV = ld_none() + single_body(True, 0, None, "single", 0)
    drain = ["s_waitcnt lgkmcnt(0)", "s_nop 7"] + gelu_epilogue(*ACC[0])
    trA = pro + FF + SG0 + P0a + P0 + P1p + ld_none() + P0 + drain
    trB = pro + FF + SG0 + P0a + P0 + P1s + SG1[True] + SV
    trB2 = pro + FF + SG0 + P0a + P0 + P1s + SG1[False]
    for tr in (trA, trB, trB2): W.simulate(tr)
    R = W.resolve
    b.ins = R(b.ins)
    b.ext(R(FF))
    stamp(b, 2, prof)
    b.ext(R(SG0)); b.ext(P0a)
    if "istamp" in OPT: b("s_memtime s[72:73]"); b("s_waitcnt lgkmcnt(0)")
    b.label("L_k1_p0")
    b.ext(R(P0))
    b(f"s_cmp_eq_u32 s{sPh}, 1")
    b("s_cbranch_scc1 L_k1_drain")
    if "istamp" in OPT: b("s_memtime s[74:75]"); b("s_waitcnt lgkmcnt(0)")
    b(f"s_cmp_lt_u32 s{sCG}, 16")
    b("s_cbranch_scc0 L_k1_B")
    b.ext(R(P1p)); b.ext(ld_none())
    if "istamp" in OPT: b("s_memtime s[76:77]"); b("s_waitcnt lgkmcnt(0)")
    b(f"s_mov_b32 s{sPh}, 1")
    b(f"s_movk_i32 s{sD1}, 2048")
    b("s_branch L_k1_p0")
    b.label("L_k1_B")
    b.ext(R(P1s))
    stamp(b, 3, prof)
    b(f"s_cmp_ge_u32 s{sT}, 36")
    b("s_cbranch_scc1 L_k1_sg1v")
    b.ext(R(SG1[False])); b("s_branch L_k1_sg1d")
    b.label("L_k1_sg1v")
    b.ext(R(SG1[True]))
    b.label("L_k1_sg1d")
    b(f"s_sub_u32 s{sTmp2}, s{sCG}, 16")
    b(f"s_cmp_lt_u32 s{sTmp2}, 6")
    b("s_cbranch_scc0 L_k1_fin")
    b.ext(R(SV))
    b("s_branch L_k1_fin")
    b.label("L_k1_drain")
    stamp(b, 3, prof)
    b.ext(drain)
    b.label("L_k1_fin")
    b("s_waitcnt lgkmcnt(0)")
    if prof:
        stamp(b, 4, True)
        b("s_waitcnt vmcnt(0)")
        stamp(b, 5, True)
        b(f"s_lshl_b32 s{sTmp}, s2, 3")
        b(f"s_add_u32 s{sTmp}, s{sTmp}, s{sW}")
        b(f"s_lshl_b32 s{sTmp}, s{sTmp}, 5")
        srd(b, sXN, sWS, 1<<20, 40<<20)
        for i in range(6): b(f"v_mov_b32 v{16+i}, s{60+2*i}")
        if "fstamp" in OPT or "istamp" in OPT:
            for i in range(8): b(f"v_mov_b32 v{24+i}, s{70+2*i}")
            b("v_mov_b32 v12, 0")
            b(f"s_add_u32 s{sTmp2}, s{sTmp}, {1<<17}")
            b(f"buffer_store_dwordx4 v[24:27], v12, s[{sXN}:{sXN+3}], s{sTmp2} offen")
            b(f"buffer_store_dwordx4 v[28:31], v12, s[{sXN}:{sXN+3}], s{sTmp2} offen offset:16")
        b("v_mov_b32 v12, 0")
        b(f"buffer_store_dwordx4 v[16:19], v12, s[{sXN}:{sXN+3}], s{sTmp} offen")
        b(f"buffer_store_dwordx4 v[20:23], v12, s[{sXN}:{sXN+3}], s{sTmp} offen offset:16")
    if "rt" in OPT: prof_end(b, 1, 8)
    b.label("L_k1_end")
    b("s_endpgm")
    bad = 0
    for nm, tr in (("A", trA), ("B", trB), ("B2", trB2)): bad += len(check(R(tr), name+"_"+nm))
    assert bad == 0 or (set(opts) - {'noself','early','rt','ls8','ls6','ls12','w2'})
    return name, kernel_text(name, b.text(), 256, 112, 100)
if __name__ == "__main__":
    n, t = gen_k1()
    open("k1.s", "w").write('.amdgcn_target "amdgcn-amd-amdhsa--gfx950"\n' + t)
```

```python
from common import *
SLOT = 20480; NSL = 4; B_LDS = SLOT*NSL
vL16, vTRb, vBo = 1, 2, 3
vD = 4
vT = [[84, 85], [86, 87]]
vTRo, vPs = 88, 89
vA = 12
vB = 36
ACC = 96
sWS, sWDp = 4, 6
sWD, sHB, sPT = 8, 12, 16
sW, sX, sTB, sNH, sSlotR, sSlotW, sWoff, sHoff, sIt, sTmp, sTmp2, sW1024 = range(24, 36)
OPT = set()

def a_reads(g):
    pass

def dma_stage():
    o = []
    for i in range(5):
        o.append(f"s_add_u32 m0, s{sSlotW}, {i*4096}")
        o.append("s_nop 0")
        o.append(f"buffer_load_dwordx4 v{vD+i}, s[{sWD}:{sWD+3}], s{sWoff} offen lds ;#w")
    o.append(f"s_add_u32 s{sWoff}, s{sWoff}, {2*18432}")
    o.append(f"s_add_u32 s{sSlotW}, s{sSlotW}, {SLOT}")
    o.append(f"s_cmp_ge_u32 s{sSlotW}, {SLOT*NSL}")
    o.append(f"s_cselect_b32 s{sTmp}, {SLOT*NSL}, 0")
    o.append(f"s_sub_u32 s{sSlotW}, s{sSlotW}, s{sTmp}")
    return o
def adv_read():
    return [f"s_add_u32 s{sSlotR}, s{sSlotR}, {SLOT}",
            f"s_cmp_eq_u32 s{sSlotR}, {SLOT*NSL}",
            f"s_cselect_b32 s{sSlotR}, 0, s{sSlotR}"]

PD = 4
def rd(g):
    st = g//18; u = g % 18
    r = vA + (g % 6)*4
    base = vT[st % 2][u % 2]
    return [f"ds_read_b64_tr_b16 v[{r}:{r+1}], v{base} offset:{u*32}",
            f"ds_read_b64_tr_b16 v[{r+2}:{r+3}], v{base} offset:{u*32+8*576}"]
def body(W):
    o = []
    for g in range(108):
        st = g//18; u = g % 18
        if u == 0:
            o += [W.wv("wn"), "s_barrier", W.wv(f"b{2*st}"), W.wv(f"b{2*st+1}")]
        r = vA + (g % 6)*4; b0 = vB + (2*st)*4; a = ACC + u*8
        o.append(W.wl(f"v[{r}:{r+3}]"))
        rr = rd(g + PD)
        pre = []
        if u == 18 - PD - 2:
            pre = adv_read() + [f"v_add_u32 v{vT[(st+1) % 2][0]}, s{sSlotR}, v{vTRb}", f"v_add_u32 v{vT[(st+1) % 2][1]}, s{sSlotR}, v{vTRo}"]
        o.append(f"v_mfma_f32_16x16x32_bf16 v[{a}:{a+3}], v[{r}:{r+3}], v[{b0}:{b0+3}], v[{a}:{a+3}]")
        o += pre + rr[:1]
        o.append(f"v_mfma_f32_16x16x32_bf16 v[{a+4}:{a+7}], v[{r}:{r+3}], v[{b0+4}:{b0+7}], v[{a+4}:{a+7}]")
        o += rr[1:]
        d = dma_stage()
        if u == 0 and st == 3: o += [f"s_cmp_eq_u32 s{sIt}, 1", f"s_cselect_b32 s{sWD+2}, 0, {SZ_WG}"]
        if u in (2, 5, 8, 11, 14):
            i = (u - 2)//3
            o += d[3*i:3*i+3]
        if u == 15: o += d[15:]
        if u in (1, 10):
            k = 2*st + (0 if u == 1 else 1)
            kn = (k + 10) % 12
            rb = vB + kn*4
            tt = k % 2
            o.append(f"buffer_load_dwordx4 v[{rb}:{rb+3}], v{vBo}, s[{sHB}:{sHB+3}], s{sHoff} offen offset:{tt*256} ;#b{kn}")
            if tt == 1: o.append(f"s_add_u32 s{sHoff}, s{sHoff}, 2048")
            if k == 1:
                o += [f"s_cmp_eq_u32 s{sIt}, 1", f"s_cselect_b32 s{sHB+2}, 0, {SZ_H}"]
    if "nods" in OPT: o = [x for x in o if not x.startswith("ds_read") and not x.startswith("@WL")]
    return o

def gen_down_role(opts=()):
    OPT.clear(); OPT.update(opts)
    W = Waits()
    b = Blk()
    b(f"s_load_dwordx2 s[{sWS}:{sWS+1}], s[0:1], {KA_WS}")
    b(f"s_load_dwordx2 s[{sWDp}:{sWDp+1}], s[0:1], {KA_WD}")
    b(f"v_readfirstlane_b32 s{sW}, v0")
    b("v_and_b32 v0, 63, v0")
    b(f"s_lshr_b32 s{sW}, s{sW}, 6")
    if "xtok" in OPT:
        b(f"s_bfe_u32 s{sX}, s2, 0x30003")
        b(f"s_bfe_u32 s{sNH}, s2, 0x10006")
        b(f"s_and_b32 s{sTB}, s2, 7")
        b(f"s_lshl_b32 s{sTB}, s{sTB}, 1")
        b(f"s_bfe_u32 s{sTmp}, s2, 0x10007")
        b(f"s_add_u32 s{sTB}, s{sTB}, s{sTmp}")
    else:
        b(f"s_and_b32 s{sX}, s2, 7")
        b(f"s_bfe_u32 s{sNH}, s2, 0x10003")
        b(f"s_bfe_u32 s{sTB}, s2, 0x40004")
    b(f"s_lshl_b32 s{sTB}, s{sTB}, 2")
    b(f"s_add_u32 s{sTB}, s{sTB}, s{sW}")
    b(f"s_lshl_b32 s{sW1024}, s{sW}, 10")
    b(f"v_lshlrev_b32 v{vL16}, 4, v0")
    b("v_lshrrev_b32 v10, 5, v0")
    b("v_lshlrev_b32 v10, 4, v10")
    b("v_bfe_u32 v11, v0, 4, 1")
    b("v_lshl_add_u32 v10, v11, 2, v10")
    b("v_bfe_u32 v9, v0, 2, 2")
    b("v_add_u32 v10, v10, v9")
    b("v_mul_u32_u24 v10, 576, v10")
    b("v_and_b32 v9, 3, v0")
    b("v_lshl_add_u32 v10, v9, 3, v10")
    b("v_lshlrev_b32 v11, 5, v11")
    b(f"v_add_u32 v{vTRb}, v10, v11")
    b(f"v_sub_u32 v{vTRo}, v10, v11")
    b(f"v_mov_b32 v{vT[0][0]}, v{vTRb}")
    b(f"v_mov_b32 v{vT[0][1]}, v{vTRo}")
    b("v_lshrrev_b32 v10, 5, v0")
    b("v_lshlrev_b32 v10, 10, v10")
    b("v_bfe_u32 v11, v0, 4, 1")
    b("v_lshl_add_u32 v10, v11, 9, v10")
    b("v_and_b32 v11, 15, v0")
    b(f"v_lshl_add_u32 v{vBo}, v11, 4, v10")
    b("v_bfe_u32 v10, v0, 4, 1")
    b("v_lshlrev_b32 v10, 9, v10")
    b("v_lshl_add_u32 v10, v11, 4, v10")
    b("v_lshrrev_b32 v11, 5, v0")
    b(f"v_lshl_add_u32 v{vPs}, v11, 3, v10")
    for i in range(5):
        b(f"s_add_u32 s{sTmp}, s{sW}, {4*i}")
        b(f"s_lshl_b32 s{sTmp2}, s{sTmp}, 10")
        b(f"v_add_u32 v10, s{sTmp2}, v{vL16}")
        b("v_lshrrev_b32 v11, 6, v10")
        b("v_mul_u32_u24 v11, 7282, v11")
        b("v_lshrrev_b32 v11, 16, v11")
        b("v_mul_u32_u24 v11, 576, v11")
        b(f"v_add_u32 v{vD+i}, v10, v11")
        b("v_mul_u32_u24 v11, 7282, v9") if False else None
        b("v_lshrrev_b32 v11, 6, v10"); b("v_mul_u32_u24 v11, 7282, v11"); b("v_lshrrev_b32 v11, 16, v11")
        b("v_mul_u32_u24 v9, 576, v11"); b("v_sub_u32 v9, v10, v9")
        b("v_bfe_u32 v11, v11, 2, 1"); b("v_lshlrev_b32 v11, 5, v11")
        b("v_xor_b32 v11, v9, v11"); b("v_sub_u32 v11, v11, v9")
        b(f"v_add_u32 v{vD+i}, v{vD+i}, v11")
        if i == 4:
            b(f"s_cmp_ge_u32 s{sTmp}, 18")
            b(f"s_cselect_b32 s{sTmp2}, 0x7f000000, 0")
            b(f"v_add_u32 v{vD+i}, s{sTmp2}, v{vD+i}")
    b("s_waitcnt lgkmcnt(0)")
    srd(b, sWD, sWDp, SZ_WG)
    srd(b, sHB, sWS, SZ_H, WS_H)
    srd(b, sPT, sWS, NSPLIT*SZ_T, WS_P)
    b(f"s_mul_i32 s{sWoff}, s{sX}, {576*1152}")
    b(f"s_mul_i32 s{sTmp}, s{sNH}, 576")
    b(f"s_add_u32 s{sWoff}, s{sWoff}, s{sTmp}")
    b(f"s_mul_i32 s{sHoff}, s{sTB}, 288")
    b(f"s_mul_i32 s{sTmp}, s{sX}, 36")
    b(f"s_add_u32 s{sHoff}, s{sHoff}, s{sTmp}")
    b(f"s_lshl_b32 s{sHoff}, s{sHoff}, 10")
    b(f"s_mov_b32 s{sSlotW}, s{sW1024}")
    b(f"s_mov_b32 s{sSlotR}, 0")
    def bl(k):
        o = [f"buffer_load_dwordx4 v[{vB+4*k}:{vB+4*k+3}], v{vBo}, s[{sHB}:{sHB+3}], s{sHoff} offen offset:{(k % 2)*256} ;#b{k}"]
        if k % 2 == 1: o.append(f"s_add_u32 s{sHoff}, s{sHoff}, 2048")
        return o
    b.ext([x.replace(";#w", ";#w0") for x in dma_stage()])
    for k in range(2): b.ext(bl(k))
    b.ext([x.replace(";#w", ";#w1") for x in dma_stage()])
    for k in range(2, 6): b.ext(bl(k))
    b.ext([x.replace(";#w", ";#w2") for x in dma_stage()])
    for k in range(6, 10): b.ext(bl(k))
    for i in range(144): b(f"v_mov_b32 v{ACC+i}, 0")
    b(W.wv("w0")); b("s_barrier")
    for g in range(PD): b.ext(rd(g))
    b(f"s_mov_b32 s{sIt}, 3")
    pro = list(b.ins)
    bd = body(W)
    tail = [f"s_sub_u32 s{sIt}, s{sIt}, 1", f"s_cmp_lg_u32 s{sIt}, 0"]
    def trace(n):
        t = list(pro)
        st = 0; issued = 3
        for it in range(n):
            for s in bd + tail:
                if s.startswith("@WV") and s.endswith(" wn"):
                    t.append(s[:-2] + f"w{st+1}"); st += 1
                elif ";#w" in s and s.endswith(";#w"):
                    t.append(s.replace(";#w", f";#w{issued}"))
                    cnt = sum(1 for x in t if x.endswith(f";#w{issued}"))
                    if cnt == 5: issued += 1
                else: t.append(s)
        return t
    tr = trace(3)
    W.simulate(tr)
    R = W.resolve
    epi = Blk()
    epi("s_waitcnt vmcnt(0) lgkmcnt(0)")
    epi("s_nop 7"); epi("s_nop 3")
    epi(f"s_lshl_b32 s{sTmp}, s{sX}, 6")
    epi(f"s_add_u32 s{sTmp}, s{sTmp}, s{sTB}")
    epi(f"s_mul_i32 s{sTmp}, s{sTmp}, 18")
    epi(f"s_mul_i32 s{sTmp2}, s{sNH}, 9")
    epi(f"s_add_u32 s{sTmp}, s{sTmp}, s{sTmp2}")
    epi(f"s_lshl_b32 s{sTmp}, s{sTmp}, 11")
    for u in range(18):
        a = ACC + u*8; p = vB + (u % 8)*4
        for i in range(4): epi(f"v_cvt_pk_bf16_f32 v{p+i}, v{a+2*i}, v{a+2*i+1}")
        for tt in range(2):
            epi(f"buffer_store_dwordx2 v[{p+2*tt}:{p+2*tt+1}], v{vPs}, s[{sPT}:{sPT+3}], s{sTmp} offen offset:{(u % 2)*1024 + tt*256} sc1")
        if u % 2 == 1: epi(f"s_add_u32 s{sTmp}, s{sTmp}, 2048")
    if "wbl2" in OPT:
        epi("s_waitcnt vmcnt(0)")
        epi("s_barrier")
        epi(f"s_cmp_eq_u32 s{sW}, 0")
        epi("s_cbranch_scc0 L_dn_nowb")
        epi("buffer_wbl2 sc1")
        epi.label("L_dn_nowb")
    if "nowo" not in OPT:
        epi(f"s_lshr_b32 s{sTmp}, s2, 3")
        epi(f"s_and_b32 s{sTmp}, s{sTmp}, 31")
        epi(f"s_lshl_b32 s{sTmp}, s{sTmp}, 2")
        epi(f"s_add_u32 s{sTmp}, s{sTmp}, s{sW}")
        epi(f"s_mul_i32 s{sTmp}, s{sTmp}, {6*1024}")
        srd(epi, sWD, sWS, SZ_WO, WS_WOF)
        for i in range(6):
            epi(f"buffer_load_dwordx4 v[{ACC+4*i}:{ACC+4*i+3}], v{vL16}, s[{sWD}:{sWD+3}], s{sTmp} offen")
            epi(f"s_add_u32 s{sTmp}, s{sTmp}, 1024")
    assert len(check(R(tr) + epi.ins, "down")) == 0 or (OPT - {"hi1","hi2","hi3","xtok","wbl2"})
    o = Blk(); o.ext(R(pro))
    if "stamp" in OPT: o("s_memtime s[76:77]"); o("s_waitcnt lgkmcnt(0)")
    hi = [x for x in OPT if x.startswith("hi")]
    if hi: o("s_setprio 2")
    o.label("L_dn_loop"); o.ext(R(bd))
    if hi:
        n = int(hi[0][2:])
        o(f"s_cmp_eq_u32 s{sIt}, {4-n}")
        o("s_cbranch_scc0 L_dn_keep")
        o("s_setprio 0")
        o.label("L_dn_keep")
    o.ext(tail); o("s_cbranch_scc1 L_dn_loop")
    if "stamp" in OPT:
        o("s_memtime s[78:79]"); o("s_waitcnt lgkmcnt(0)"); o("s_sub_u32 s98, s78, s76")
    o.ext(epi)
    return o

def gen_down_kernel(prof=False, opts=()):
    name = "down_kernel"
    b = Blk()
    b("s_cmp_ge_u32 s2, 256")
    b("s_cbranch_scc1 L_dn_end")
    if prof: prof_begin(b)
    b.ext(gen_down_role(opts))
    if prof: prof_end(b, 3, 4)
    b.label("L_dn_end")
    b("s_endpgm")
    return name, kernel_text(name, b.text(), 256, 256, 100)
if __name__ == "__main__":
    n, t = gen_down_kernel()
    open("k2b.s", "w").write('.amdgcn_target "amdgcn-amd-amdhsa--gfx950"\n' + t)
```

```python
from asmlib import *
KA_X, KA_WQKV, KA_WO, KA_BX, KA_WG, KA_WU, KA_WD, KA_OUT, KA_DBG, KA_WS = [8*i for i in range(10)]
S, D, DF, H, DH = 2048, 576, 4608, 32, 18
SZ_X = S*D*2
SZ_WQKV = D*3*D*2
SZ_WO = D*D*2
SZ_WG = D*DF*2
SZ_T = S*D*2
WS_XN = 0
WS_Q  = 1*SZ_T
WS_K  = 2*SZ_T
WS_V  = 3*SZ_T
WS_O  = 4*SZ_T
WS_H  = 5*SZ_T
SZ_H  = S*DF*2
WS_P  = WS_H + SZ_H
NSPLIT = 8
WS_WOF = WS_P + 8*SZ_T
WS_FLG = WS_WOF + 0xA4000
PREFIX = "parallel_sum__softmax_full_mha__glu_gated_geglu__prompt"

def srd(b, s, ptr, size, off=0):
    if off:
        b(f"s_add_u32 s{s}, s{ptr}, {off}")
        b(f"s_addc_u32 s{s+1}, s{ptr+1}, 0")
    else:
        b(f"s_mov_b32 s{s}, s{ptr}")
        b(f"s_mov_b32 s{s+1}, s{ptr+1}")
    b(f"s_mov_b32 s{s+2}, {size}")
    b(f"s_mov_b32 s{s+3}, 0x20000")

def f32bits(x):
    import struct
    return struct.unpack("<I", struct.pack("<f", x))[0]
def f32hex(x): return f"0x{f32bits(x):08x}"

PROF_BASE = 48 << 20
def prof_begin(b):
    b("s_memtime s[90:91]")
    b("s_memrealtime s[92:93]")
    b("v_readfirstlane_b32 s89, v0"); b("s_nop 3"); b("s_lshr_b32 s89, s89, 6"); b("s_mov_b32 s98, 0"); b("s_mov_b32 s99, 0"); b("s_waitcnt lgkmcnt(0)")
def prof_end(b, kidx, nwaves):
    b("s_waitcnt vmcnt(0) lgkmcnt(0)")
    b("s_memtime s[94:95]")
    b("s_memrealtime s[96:97]")
    b(f"s_load_dwordx2 s[84:85], s[0:1], {KA_WS}")
    b("s_waitcnt lgkmcnt(0)")
    b(f"s_add_u32 s84, s84, {PROF_BASE + kidx*(1<<16)}")
    b("s_addc_u32 s85, s85, 0")
    b("s_mov_b32 s86, 0x10000")
    b("s_mov_b32 s87, 0x20000")
    b("s_sub_u32 s94, s94, s90")
    b("v_mov_b32 v8, s94")
    b("v_mov_b32 v9, s92")
    b("v_mov_b32 v10, s96")
    b("v_mov_b32 v11, s98")
    b(f"s_mul_i32 s88, s2, {nwaves}")
    b("s_add_u32 s88, s88, s89")
    b("s_lshl_b32 s88, s88, 4")
    b("v_mov_b32 v12, 0")
    b("buffer_store_dwordx4 v[8:11], v12, s[84:87], s88 offen")


def signal(b, sws, idx_instrs, sidx, sW, vtmp, tag, nrep):
    b("s_waitcnt vmcnt(0)")
    b("s_barrier")
    b(f"s_cmp_lg_u32 s{sW}, 0")
    b(f"s_cbranch_scc1 L_sig{tag}")
    b.ext(idx_instrs)
    b(f"s_lshl_b32 s{sidx}, s{sidx}, 7")
    b(f"s_add_u32 s{sidx}, s{sidx}, {WS_FLG}")
    b(f"v_lshlrev_b32 v{vtmp}, 7, v0")
    b(f"v_add_u32 v{vtmp}, s{sidx}, v{vtmp}")
    b(f"v_mov_b32 v{vtmp+1}, 1")
    b(f"s_mov_b64 exec, {(1 << nrep) - 1}")
    b(f"global_atomic_add v{vtmp}, v{vtmp+1}, s[{sws}:{sws+1}] sc1")
    b("s_mov_b64 exec, -1")
    b.label(f"L_sig{tag}")
```

```python
from common import *
K0_LDS = 8192
M16 = False
CODEPF = False
F16 = False
FLG = False
def wof32_begin(b):
    b("s_lshl_b32 s35, s2, 2")
    b("s_add_u32 s35, s35, s34")
    b("s_mul_i32 s40, s35, 3641")
    b("s_lshr_b32 s40, s40, 16")
    b("s_mul_i32 s41, s40, 18")
    b("s_sub_u32 s41, s35, s41")
    b("v_lshrrev_b32 v54, 2, v53")
    b("v_mul_u32_u24 v55, 1152, v54")
    b("v_bfe_u32 v64, v54, 2, 1")
    b("v_lshlrev_b32 v64, 2, v64")
    b("v_lshrrev_b32 v65, 3, v54")
    b("v_lshlrev_b32 v65, 1, v65")
    b("v_add_u32 v64, v64, v65")
    b("v_bfe_u32 v65, v54, 1, 1")
    b("v_add_u32 v64, v64, v65")
    b("v_mul_u32_u24 v64, 18, v64")
    b("v_and_b32 v65, 1, v54")
    b("v_add_u32 v64, v64, v65")
    b("v_add_u32 v64, 16, v64")
    b("v_mul_u32_u24 v64, 1152, v64")
    b("s_cmp_lt_u32 s40, 32")
    b("s_cselect_b64 vcc, -1, 0")
    b("v_cndmask_b32 v55, v64, v55, vcc")
    b("v_and_b32 v65, 3, v53")
    b("v_lshl_add_u32 v55, v65, 4, v55")
    b(f"s_mul_i32 s42, s40, {18*1152}")
    b("s_sub_u32 s43, s40, 32")
    b(f"s_mul_i32 s43, s43, {8*18*1152}")
    b("s_cmp_lt_u32 s40, 32")
    b("s_cselect_b32 s42, s42, s43")
    b("s_lshl_b32 s43, s41, 6")
    b("s_add_u32 s42, s42, s43")
    b("s_cmp_lt_u32 s35, 648")
    b("s_cselect_b32 s42, s42, 0x7f000000")
    b("s_waitcnt lgkmcnt(0)")
    b(f"s_mov_b32 s38, {SZ_WO}"); b("s_mov_b32 s39, 0x20000")
    b("s_lshl_b32 s43, s34, 10")
    b("s_mov_b32 m0, s43")
    b("s_nop 0")
    b("buffer_load_dwordx4 v55, s[36:39], s42 offen lds")

def wof32_end(b):
    b("v_lshrrev_b32 v54, 5, v53")
    b("v_lshlrev_b32 v54, 8, v54")
    b("v_bfe_u32 v55, v53, 2, 2")
    b("v_lshl_add_u32 v54, v55, 6, v54")
    b("v_bfe_u32 v55, v53, 4, 1")
    b("v_lshl_add_u32 v54, v55, 5, v54")
    b("v_and_b32 v55, 3, v53")
    b("v_lshl_add_u32 v54, v55, 3, v54")
    b("v_add_u32 v54, s43, v54")
    b("v_bfe_u32 v55, v53, 4, 1")
    b("v_lshlrev_b32 v55, 9, v55")
    b("v_lshrrev_b32 v64, 5, v53")
    b("v_lshl_add_u32 v55, v64, 8, v55")
    b("v_and_b32 v64, 15, v53")
    b("v_lshl_add_u32 v55, v64, 4, v55")
    b("s_mul_i32 s42, s40, 36")
    b("s_lshl_b32 s44, s41, 1")
    b("s_add_u32 s42, s42, s44")
    b("s_lshl_b32 s42, s42, 9")
    b("s_cmp_lt_u32 s35, 648")
    b("s_cselect_b32 s42, s42, 0x7f000000")
    srd(b, 36, 6, SZ_WO, WS_WOF)
    b("s_waitcnt vmcnt(0)" if False else f"s_waitcnt vmcnt({8})")
    b("ds_read_b64_tr_b16 v[66:67], v54")
    b("ds_read_b64_tr_b16 v[68:69], v54 offset:512")
    b("s_waitcnt lgkmcnt(0)")
    b("buffer_store_dwordx4 v[66:69], v55, s[36:39], s42 offen")


def ln_part(b):
    b("v_lshrrev_b32 v1, 5, v0")
    b("s_lshl_b32 s3, s2, 3")
    b("v_add_u32 v1, s3, v1")
    b("v_and_b32 v2, 31, v0")
    b("v_mul_u32_u24 v3, 1152, v1")
    b("v_lshl_add_u32 v3, v2, 2, v3")
    b("v_lshrrev_b32 v4, 5, v1")
    b("v_mul_u32_u24 v4, 36864, v4")
    if M16:
        b("v_lshrrev_b32 v5, 4, v2")
        b("v_lshl_add_u32 v4, v5, 11, v4")
        b("v_bfe_u32 v5, v1, 4, 1")
        b("v_lshl_add_u32 v4, v5, 10, v4")
        b("v_bfe_u32 v5, v2, 2, 2")
        b("v_lshl_add_u32 v4, v5, 8, v4")
        b("v_and_b32 v5, 15, v1")
        b("v_lshl_add_u32 v4, v5, 4, v4")
        b("v_and_b32 v5, 3, v2")
        b("v_lshl_add_u32 v4, v5, 2, v4")
    else:
        b("v_lshrrev_b32 v5, 3, v2")
        b("v_lshl_add_u32 v4, v5, 10, v4")
        b("v_bfe_u32 v5, v2, 2, 1")
        b("v_lshl_add_u32 v4, v5, 9, v4")
        b("v_and_b32 v5, 31, v1")
        b("v_lshl_add_u32 v4, v5, 4, v4")
        b("v_and_b32 v5, 3, v2")
        b("v_lshl_add_u32 v4, v5, 2, v4")
    b("s_waitcnt lgkmcnt(0)")
    srd(b, 8, 4, SZ_X)
    srd(b, 12, 6, SZ_T, WS_XN)
    X = 8
    for i in range(9): b(f"buffer_load_dword v{X+i}, v3, s[8:11], 0 offen offset:{i*128}")
    L = 20
    for i in range(9):
        b(f"s_waitcnt vmcnt({8-i})")
        b(f"v_lshlrev_b32 v{L+2*i}, 16, v{X+i}")
        b(f"v_and_b32 v{L+2*i+1}, 0xffff0000, v{X+i}")
    def reduce32(r, t):
        b("s_nop 1")
        b(f"v_add_f32_dpp v{r}, v{r}, v{r} quad_perm:[1,0,3,2] row_mask:0xf bank_mask:0xf")
        b("s_nop 1")
        b(f"v_add_f32_dpp v{r}, v{r}, v{r} quad_perm:[2,3,0,1] row_mask:0xf bank_mask:0xf")
        b("s_nop 1")
        b(f"v_add_f32_dpp v{r}, v{r}, v{r} row_half_mirror row_mask:0xf bank_mask:0xf")
        b("s_nop 1")
        b(f"v_add_f32_dpp v{r}, v{r}, v{r} row_mirror row_mask:0xf bank_mask:0xf")
        b("s_nop 0")
        b(f"v_mov_b32 v{t}, v{r}")
        b("s_nop 1")
        b(f"v_permlane16_swap_b32 v{r}, v{t}")
        b("s_nop 0")
        b(f"v_add_f32 v{r}, v{r}, v{t}")
    b(f"v_add_f32 v40, v{L}, v{L+1}")
    b(f"v_add_f32 v41, v{L+2}, v{L+3}")
    for i in range(2, 9):
        b(f"v_add_f32 v40, v40, v{L+2*i}")
        b(f"v_add_f32 v41, v41, v{L+2*i+1}")
    b("v_add_f32 v40, v40, v41")
    reduce32(40, 42)
    b(f"v_mul_f32 v40, {f32hex(1.0/576)}, v40")
    b(f"v_sub_f32 v43, v{L}, v40")
    b(f"v_mul_f32 v44, v43, v43")
    b(f"v_sub_f32 v43, v{L+1}, v40")
    b(f"v_mul_f32 v45, v43, v43")
    for i in range(1, 9):
        b(f"v_sub_f32 v43, v{L+2*i}, v40")
        b(f"v_sub_f32 v46, v{L+2*i+1}, v40")
        b(f"v_fmac_f32 v44, v43, v43")
        b(f"v_fmac_f32 v45, v46, v46")
    b("v_add_f32 v44, v44, v45")
    reduce32(44, 42)
    b(f"v_mul_f32 v44, {f32hex(1.0/576)}, v44")
    b("v_cvt_pk_bf16_f32 v45, v40, v44")
    b("v_lshlrev_b32 v40, 16, v45")
    b("v_and_b32 v44, 0xffff0000, v45")
    b(f"v_add_f32 v44, {f32hex(1e-5)}, v44")
    b("v_cvt_pk_bf16_f32 v44, v44, v44")
    b("v_and_b32 v44, 0xffff0000, v44")
    b("v_sqrt_f32 v44, v44")
    b("s_nop 0")
    b("v_cvt_pk_bf16_f32 v44, v44, v44")
    b("v_and_b32 v44, 0xffff0000, v44")
    b("v_rcp_f32 v44, v44")
    for i in range(9):
        b(f"v_sub_f32 v{L+2*i}, v{L+2*i}, v40")
        b(f"v_sub_f32 v{L+2*i+1}, v{L+2*i+1}, v40")
        b(f"v_cvt_pk_bf16_f32 v{X+i}, v{L+2*i}, v{L+2*i+1}")
    for i in range(9):
        b(f"v_lshlrev_b32 v{L+2*i}, 16, v{X+i}")
        b(f"v_and_b32 v{L+2*i+1}, 0xffff0000, v{X+i}")
        b(f"v_mul_f32 v{L+2*i}, v{L+2*i}, v44")
        b(f"v_mul_f32 v{L+2*i+1}, v{L+2*i+1}, v44")
        b(f"v_cvt_pk_bf16_f32 v{X+i}, v{L+2*i}, v{L+2*i+1}")
        b(f"s_mov_b32 s16, {i*4096}")
        b(f"buffer_store_dword v{X+i}, v4, s[12:15], s16 offen")

def wof16_begin(b):
    b("s_lshl_b32 s35, s2, 2")
    b("s_add_u32 s35, s35, s34")
    b("s_mul_i32 s40, s35, 3641")
    b("s_lshr_b32 s40, s40, 16")
    b("s_mul_i32 s41, s40, 18")
    b("s_sub_u32 s41, s35, s41")
    b("v_lshrrev_b32 v54, 2, v53")
    for half in range(2):
        d = 55 + half if half == 0 else 70
        b(f"v_mul_u32_u24 v{d}, 1152, v54")
        b("v_bfe_u32 v64, v54, 2, 1")
        b(f"v_add_u32 v64, {2*half}, v64")
        b("v_lshlrev_b32 v64, 2, v64")
        b("v_lshrrev_b32 v65, 3, v54")
        b("v_lshlrev_b32 v65, 1, v65")
        b("v_add_u32 v64, v64, v65")
        b("v_bfe_u32 v65, v54, 1, 1")
        b("v_add_u32 v64, v64, v65")
        b("v_mul_u32_u24 v64, 18, v64")
        b("v_and_b32 v65, 1, v54")
        b("v_add_u32 v64, v64, v65")
        b("v_add_u32 v64, 16, v64")
        b("v_mul_u32_u24 v64, 1152, v64")
        b("s_cmp_lt_u32 s40, 16")
        b("s_cselect_b64 vcc, -1, 0")
        b(f"v_cndmask_b32 v{d}, v64, v{d}, vcc")
        b("v_and_b32 v65, 3, v53")
        b(f"v_lshl_add_u32 v{d}, v65, 4, v{d}")
    b(f"s_mul_i32 s42, s40, {36*1152}")
    b("s_sub_u32 s43, s40, 16")
    b(f"s_mul_i32 s43, s43, {16*18*1152}")
    b("s_cmp_lt_u32 s40, 16")
    b("s_cselect_b32 s42, s42, s43")
    b(f"s_cselect_b32 s44, {18*1152}, 0")
    b("s_lshl_b32 s43, s41, 6")
    b("s_add_u32 s42, s42, s43")
    b("s_cmp_lt_u32 s35, 324")
    b("s_cselect_b32 s42, s42, 0x7f000000")
    b("s_add_u32 s44, s44, s42")
    b("s_waitcnt lgkmcnt(0)")
    b(f"s_mov_b32 s38, {SZ_WO}"); b("s_mov_b32 s39, 0x20000")
    b("s_lshl_b32 s43, s34, 11")
    b("s_mov_b32 m0, s43")
    b("s_nop 0")
    b("buffer_load_dwordx4 v55, s[36:39], s42 offen lds")
    b("s_add_u32 m0, s43, 1024")
    b("s_nop 0")
    b("buffer_load_dwordx4 v70, s[36:39], s44 offen lds")
def wof16_end(b, nyoung):
    b("v_lshrrev_b32 v54, 5, v53")
    b("v_lshlrev_b32 v54, 10, v54")
    b("v_bfe_u32 v55, v53, 4, 1")
    b("v_lshl_add_u32 v54, v55, 8, v54")
    b("v_bfe_u32 v55, v53, 2, 2")
    b("v_lshl_add_u32 v54, v55, 6, v54")
    b("v_and_b32 v55, 3, v53")
    b("v_lshl_add_u32 v54, v55, 3, v54")
    b("v_add_u32 v54, s43, v54")
    b("v_lshlrev_b32 v55, 4, v53")
    b("s_mul_i32 s42, s40, 36")
    b("s_lshl_b32 s44, s41, 1")
    b("s_add_u32 s42, s42, s44")
    b("s_lshl_b32 s42, s42, 10")
    b("s_cmp_lt_u32 s35, 324")
    b("s_cselect_b32 s42, s42, 0x7f000000")
    srd(b, 36, 6, SZ_WO, WS_WOF)
    b(f"s_waitcnt vmcnt({nyoung})")
    for nb in range(2):
        b(f"ds_read_b64_tr_b16 v[{66+4*nb}:{67+4*nb}], v54 offset:{nb*32}")
        b(f"ds_read_b64_tr_b16 v[{68+4*nb}:{69+4*nb}], v54 offset:{nb*32+512}")
    b("s_waitcnt lgkmcnt(0)")
    b("buffer_store_dwordx4 v[66:69], v55, s[36:39], s42 offen")
    b("buffer_store_dwordx4 v[70:73], v55, s[36:39], s42 offen offset:1024")

def aux_part(b, r128):
    b(f"s_load_dwordx2 s[20:21], s[0:1], {KA_WG}")
    b(f"s_load_dwordx2 s[24:25], s[0:1], {KA_WU}")
    b(f"s_load_dwordx2 s[28:29], s[0:1], {KA_WQKV}")
    b(f"s_load_dwordx2 s[36:37], s[0:1], {KA_WO}")
    b("v_readfirstlane_b32 s34, v0")
    b("v_and_b32 v53, 63, v0")
    b("s_lshr_b32 s34, s34, 6")
    if F16: wof16_begin(b)
    else:
        wof32_begin(b)
    for base, size in ((20, SZ_WG), (24, SZ_WG), (28, SZ_WQKV)):
        b(f"s_mov_b32 s{base+2}, {size}"); b(f"s_mov_b32 s{base+3}, 0x20000")
    b("s_and_b32 s17, s2, 7")
    b("s_bfe_u32 s18, s2, 0x20003")
    b("s_lshl_b32 s18, s18, 3")
    b("s_add_u32 s17, s17, s18")
    b("s_lshr_b32 s18, s2, 5")
    b("s_mul_i32 s18, s18, 72")
    b("s_mul_i32 s19, s17, 5")
    if r128:
        b("s_add_u32 s19, s19, 1"); b("s_and_b32 s19, s19, -2")
    b("s_lshl_b32 s32, s17, 2")
    b("s_add_u32 s32, s32, 16")
    b("s_cmp_lt_u32 s17, 16")
    b("s_cselect_b32 s19, s19, s32")
    b("s_lshl_b32 s19, s19, 6")
    b("s_mul_i32 s32, s18, 9216")
    b("s_add_u32 s19, s19, s32")
    b("s_lshl_b32 s33, s17, 6")
    b("s_mul_i32 s32, s18, 3456")
    b("s_add_u32 s33, s33, s32")
    for n in range(3):
        b(f"v_add_u32 v50, {256*n}, v0")
        b("v_lshrrev_b32 v51, 3, v50")
        b("v_mul_u32_u24 v51, 9216, v51")
        b("v_and_b32 v52, 7, v50")
        b("v_lshl_add_u32 v51, v52, 4, v51")
        if n == 2:
            b("v_cmp_gt_u32 vcc, 576, v50")
            b("v_mov_b32 v52, 0x7f000000")
            b("s_nop 0")
            b("v_cndmask_b32 v51, v52, v51, vcc")
        b(f"buffer_load_dwordx4 v[56:59], v51, s[20:23], s19 offen")
        b(f"buffer_load_dwordx4 v[60:63], v51, s[24:27], s19 offen")
    for n in range(2):
        b(f"v_add_u32 v50, {256*n}, v0")
        b("v_lshrrev_b32 v51, 2, v50")
        b("v_mul_u32_u24 v51, 3456, v51")
        b("v_and_b32 v52, 3, v50")
        b("v_lshl_add_u32 v51, v52, 4, v51")
        if n == 1:
            b("v_cmp_gt_u32 vcc, 288, v50")
            b("v_mov_b32 v52, 0x7f000000")
            b("s_nop 0")
            b("v_cndmask_b32 v51, v52, v51, vcc")
        b(f"buffer_load_dwordx4 v[56:59], v51, s[28:31], s33 offen")
    if FLG:
        b("s_cmp_lt_u32 s2, 3")
        b("s_cbranch_scc0 L_k0_noflg")
        b(f"s_add_u32 s52, s6, {WS_FLG}")
        b("s_addc_u32 s53, s7, 0")
        b("s_mov_b32 s54, 0x3000"); b("s_mov_b32 s55, 0x20000")
        b("s_lshl_b32 s56, s2, 12")
        b("v_lshlrev_b32 v50, 4, v0")
        for i in range(4): b(f"v_mov_b32 v{74+i}, 0")
        b("buffer_store_dwordx4 v[74:77], v50, s[52:55], s56 offen")
        b.label("L_k0_noflg")
    if CODEPF:
        b("s_getpc_b64 s[46:47]")
        b.label("L_k0_pc")
        b("s_add_u32 s46, s46, L_code_begin-L_k0_pc")
        b("s_addc_u32 s47, s47, 0")
        b("s_lshr_b32 s48, s2, 3")
        b("s_lshl_b32 s48, s48, 12")
        b("v_lshlrev_b32 v50, 4, v0")
        b("v_add_u32 v50, s48, v50")
        b(f"v_cmp_gt_u32 vcc, L_code_end-L_code_begin-16, v50")
        b("s_and_saveexec_b64 s[50:51], vcc")
        b("s_cbranch_execz L_k0_nocode")
        b("global_load_dwordx4 v[56:59], v50, s[46:47]")
        b.label("L_k0_nocode")
        b("s_mov_b64 exec, s[50:51]")
    if F16: wof16_end(b, 8)
    else: wof32_end(b)

def gen_k0(prof=False, r128=False, opts=()):
    global M16, CODEPF, F16, FLG
    FLG = 'fuse' in opts
    F16 = 'f16' in opts
    M16 = 'm16' in opts
    CODEPF = 'cpf' in opts
    name = "ln_kernel"
    b = Blk(name)
    b("s_cmp_ge_u32 s2, 256")
    b("s_cbranch_scc1 L_k0_end")
    if prof: prof_begin(b)
    b(f"s_load_dwordx2 s[4:5], s[0:1], {KA_X}")
    b(f"s_load_dwordx2 s[6:7], s[0:1], {KA_WS}")
    b("v_readfirstlane_b32 s45, v0")
    b("s_nop 3")
    b("s_cmp_ge_u32 s45, 256")
    b("s_cbranch_scc1 L_k0_aux")
    l = Blk(); ln_part(l); check(l.ins, "ln")
    b.ext(l)
    b("s_branch L_k0_done")
    b.label("L_k0_aux")
    b("v_subrev_u32 v0, 256, v0")
    b("s_nop 0")
    aux_part(b, r128)
    if "k0wait" in opts: b("s_waitcnt vmcnt(0)")
    b.label("L_k0_done")
    if prof: prof_end(b, 0, 8)
    b.label("L_k0_end")
    b("s_endpgm")
    return name, kernel_text(name, b.text(), 80, 80, 100)
```

```python
from common import *
import k2a, k2b as _k2b, k2c, k3f, sys
k2b = k2c if 'd16' in sys.argv else _k2b
MIX_LDS = max(k2a.A_LDS, k2b.B_LDS)
def gen_mix(prof=False, order="ad", prio=None, aopts=(), dopts=()):
    k2a.OPT.clear(); k2a.OPT.update(aopts)
    name = "mix_kernel"
    fused = "flags" in aopts
    b = Blk()
    b(f"s_cmp_ge_u32 s2, {768 if fused else 512}")
    b("s_cbranch_scc1 L_mix_end")
    if prof: prof_begin(b)
    if fused:
        b("s_cmp_ge_u32 s2, 512")
        b("s_cbranch_scc1 L_mix_third")
    b("s_cmp_ge_u32 s2, 256")
    b("s_cbranch_scc1 L_mix_second")
    dn = lambda: k2b.gen_down_role(dopts)
    first, second = (k2a.gen_attn_role, dn) if order == "ad" else (dn, k2a.gen_attn_role)
    if prio == "first": b("s_setprio 1")
    b.ext(first())
    b("s_branch L_mix_done")
    b.label("L_mix_second")
    if prio == "second": b("s_setprio 1")
    b.ext(second())
    if fused:
        b("s_branch L_mix_done")
        b.label("L_mix_third")
        b.ext(k3f.gen_f_role(True))
    b.label("L_mix_done")
    if prof: prof_end(b, 2, 4)
    b.label("L_mix_end")
    b("s_endpgm")
    return name, kernel_text(name, b.text(), 256, 256, 100)
```

```python
from common import *
STG = 14336; NSLOT = 4; A_LDS = STG*NSLOT + 64
FLAG = STG*NSLOT
vL8, vL16, vKrd, vVrd, vKd0, vKd1, vVd, vIdx, vT0, vT1, vT2, vT3 = 1,2,3,4,5,6,7,8,9,10,11,12
vQoff = 13
SA, SB, OA, OB = 16, 32, 48, 64
QA0, QA1, QB0, QB1 = 80, 84, 88, 92
KB = [96, 104]
VB = [112, 120]
CA, CB = 128, 144
vMA, vMB = 160, 161
sWS = 4
sK, sV, sQ, sOo = 8, 12, 16, 20
sW, sHD, sQB, sVd, sSp, sCnt, sKoff, sVoff, sTmp, sTmp2, sMode, sTB, sC0, sMask = range(24, 38)
sExec = 40

OPT = set()
def rd_K(buf, b, slot):
    o = slot*STG
    assert o % 512 == 0
    u = o//512 + 3*b
    return [f"ds_read2st64_b64 v[{KB[buf]}:{KB[buf]+3}], v{vL8} offset0:{u} offset1:{u+1}",
            f"ds_read_b64 v[{KB[buf]+4}:{KB[buf]+5}], v{vL8} offset:{(u+2)*512}"]
def rd_V(buf, b, slot):
    o = slot*STG + 6144 + b*2048
    return [f"ds_read_b128 v[{VB[buf]}:{VB[buf]+3}], v{vL16} offset:{o}",
            f"ds_read_b128 v[{VB[buf]+4}:{VB[buf]+7}], v{vL16} offset:{o+1024}"]
def qk(S, Q0, Q1, kb, C):
    c = "0" if C is None else f"v[{C}:{C+15}]"
    return [f"v_mfma_f32_32x32x16_bf16 v[{S}:{S+15}], v[{kb}:{kb+3}], v[{Q0}:{Q0+3}], {c}",
            f"v_mfma_f32_32x32x16_bf16 v[{S}:{S+15}], v[{kb+4}:{kb+7}], v[{Q1}:{Q1+3}], v[{S}:{S+15}]" if "k8" not in OPT else
            f"v_mfma_f32_32x32x8bf16_1k v[{S}:{S+15}], v[{kb+4}:{kb+5}], v[{Q1}:{Q1+1}], v[{S}:{S+15}]"]
def pv(O, S, vb):
    return [f"v_smfmac_f32_32x32x32_bf16 v[{O}:{O+15}], v[{vb}:{vb+3}], v[{S}:{S+7}], v{vIdx}",
            f"v_smfmac_f32_32x32x32_bf16 v[{O}:{O+15}], v[{vb+4}:{vb+7}], v[{S+8}:{S+15}], v{vIdx}"]
def phase(SX, OY, SY, QY0, QY1, vb, kb, CY, pre=(), w_v=None, w_k=None):
    e = [f"v_exp_f32 v{SX+i}, v{SX+i}" for i in range(16)]
    p = pv(OY, SY, vb); q = qk(SY, QY0, QY1, kb, CY)
    out = []
    if w_v: out.append(w_v[0])
    out += [p[0]] + list(pre) + e[0:3]
    if w_v: out.append(w_v[1])
    out += [p[1]] + e[3:6]
    if w_k: out.append(w_k[0])
    out += [q[0]] + e[6:9]
    if w_k: out.append(w_k[1])
    out += [q[1]] + e[9:16]
    return out

def dma_stage(slot):
    b = Blk()
    b(f"s_add_u32 m0, s{sTmp2}, {slot*STG}")
    b(f"s_add_u32 s{sVoff}, s{sKoff}, s{sVd}")
    b(f"buffer_load_dwordx4 v{vKd0}, s[{sK}:{sK+3}], s{sKoff} offen lds ;#kv")
    b(f"s_add_u32 m0, s{sMask}, {slot*STG}")
    b(f"s_mov_b64 s[{sExec+2}:{sExec+3}], s[{sExec}:{sExec+1}]") if False else None
    b("s_nop 0")
    b(f"buffer_load_dwordx4 v{vKd1}, s[{sK}:{sK+3}], s{sKoff} offen lds ;#kv")
    b(f"s_add_u32 m0, s{sC0}, {slot*STG}")
    b(f"s_mov_b64 exec, s[{sExec}:{sExec+1}]")
    b(f"buffer_load_dwordx4 v{vVd}, s[{sV}:{sV+3}], s{sVoff} offen lds ;#kv")
    b(f"buffer_load_dwordx4 v{vVd}, s[{sV}:{sV+3}], s{sVoff} offen offset:1024 lds ;#kvl")
    b("s_mov_b64 exec, -1")
    b(f"s_add_u32 s{sKoff}, s{sKoff}, {4*36864}")
    return b.ins

LOOK = 3
def stage_body(W, safe, slot):
    CAx, CBx = (CA, CB) if safe else (None, None)
    o = [W.wv("kvl%d" % ((slot+1) % NSLOT)), "s_barrier"]
    dm = [x.replace(";#kvl", ";#kvl%d" % ((slot+LOOK) % NSLOT)) for x in dma_stage((slot+LOOK) % NSLOT)]
    i1 = next(i for i, x in enumerate(dm) if x.startswith("buffer_load")) + 1
    i2 = next(i for i, x in enumerate(dm) if x.startswith("buffer_load") and i >= i1) + 1
    parts = [dm[:i1], dm[i1:i2], dm[i2:], []] if "burst" not in OPT else [dm, [], [], []]
    for b in range(4):
        kb, kn = KB[b % 2], KB[(b+1) % 2]
        vb, vp = VB[b % 2], VB[(b+1) % 2]
        pre = rd_V(b % 2, b, slot)
        pre += rd_K((b+1) % 2, b+1, slot) if b < 3 else rd_K(0, 0, (slot+1) % NSLOT)
        ph1 = phase(SA, OB, SB, QB0, QB1, vp, kb, CBx, pre=pre)
        ph1 = ph1[:len(pre)+5] + parts[b] + ph1[len(pre)+5:]
        o += ph1
        wall = W.wl(f"v[{vb}:{vb+7}]", f"v[{kn}:{kn+5}]")
        ph2 = phase(SB, OA, SA, QA0, QA1, vb, kn, CAx)
        o += [wall] + ph2
    if "nods" in OPT: o = [x for x in o if not x.startswith("ds_read") and not x.startswith("@WL")]
    if "nodma" in OPT: o = [x for x in o if not x.startswith("buffer_load") and x != "s_barrier" and not x.startswith("@WV")]
    if "nobar" in OPT: o = [x for x in o if x != "s_barrier"]
    if "noload" in OPT: o = [x for x in o if not x.startswith("buffer_load")]
    if "noexp" in OPT: o = [x for x in o if not x.startswith("v_exp")]
    return o

def max_body(W, slot):
    o = ["s_waitcnt vmcnt(0)", "s_barrier"] + dma_stage((slot+LOOK) % NSLOT)
    for b in range(4):
        o += rd_K(0, b, slot) + ["s_waitcnt lgkmcnt(0)"]
        o += qk(SA, QA0, QA1, KB[0], None) + qk(SB, QB0, QB1, KB[0], None)
        o += ["s_nop 7", "s_nop 3"]
        for S, M in ((SA, vMA), (SB, vMB)):
            for i in range(8): o.append(f"v_max3_f32 v{M}, v{S+2*i}, v{S+2*i+1}, v{M}")
    return o

def stream_init():
    b = Blk()
    b(f"s_mul_i32 s{sKoff}, s{sHD}, 9")
    b(f"s_lshr_b32 s{sKoff}, s{sKoff}, 2")
    b(f"s_lshl_b32 s{sKoff}, s{sKoff}, 9")
    b(f"s_sub_u32 s{sVd}, 0, s{sKoff}")
    for st in range(LOOK): b.ext([x.replace(";#kvl", ";#kvl%d" % st) for x in dma_stage(st)])
    b(f"s_mov_b32 s{sCnt}, 4")
    return b.ins

def main_init(W, safe):
    b = Blk()
    for i in range(16): b(f"v_mov_b32 v{OA+i}, 0"); b(f"v_mov_b32 v{OB+i}, 0"); b(f"v_mov_b32 v{SB+i}, 0")
    for i in range(8): b(f"v_mov_b32 v{VB[1]+i}, 0")
    b(W.wv("kvl0"))
    b("s_barrier")
    b.ext(rd_K(0, 0, 0))
    b("s_waitcnt lgkmcnt(0)")
    b.ext(qk(SA, QA0, QA1, KB[0], CA if safe else None))
    b("s_nop 7"); b("s_nop 3")
    return b.ins

def gen_attn_role(prof=False):
    W = Waits()
    b = Blk()
    b(f"s_load_dwordx2 s[{sWS}:{sWS+1}], s[0:1], {KA_WS}")
    b(f"v_readfirstlane_b32 s{sW}, v0")
    b("v_and_b32 v0, 63, v0")
    b(f"s_lshr_b32 s{sW}, s{sW}, 6")
    b(f"s_and_b32 s{sHD}, s2, 7")
    b(f"s_lshr_b32 s{sTmp}, s2, 3")
    b(f"s_and_b32 s{sTmp}, s{sTmp}, 3")
    b(f"s_lshl_b32 s{sTmp}, s{sTmp}, 3")
    b(f"s_add_u32 s{sHD}, s{sHD}, s{sTmp}")
    b(f"s_lshr_b32 s{sQB}, s2, 5")
    b(f"s_and_b32 s{sQB}, s{sQB}, 7")
    b(f"s_lshl_b32 s{sTB}, s{sQB}, 3")
    b(f"s_lshl_b32 s{sTmp}, s{sW}, 1")
    b(f"s_add_u32 s{sTB}, s{sTB}, s{sTmp}")
    b(f"v_lshlrev_b32 v{vL8}, 3, v0")
    b(f"v_lshlrev_b32 v{vL16}, 4, v0")
    b(f"v_mov_b32 v{vIdx}, 0xdddddddd")
    def kpiece(dst, sj):
        b(f"s_lshl_b32 s{sTmp}, s{sj}, 10")
        b(f"v_add_u32 v{vT0}, s{sTmp}, v{vL16}")
        b(f"v_mul_u32_u24 v{vT1}, 43691, v{vT0}")
        b(f"v_lshrrev_b32 v{vT1}, 26, v{vT1}")
        b(f"v_mul_u32_u24 v{vT1}, {36864-1536}, v{vT1}")
        b(f"v_add_u32 v{dst}, v{vT0}, v{vT1}")
    kpiece(vKd0, sW)
    b(f"s_add_u32 s{sTmp2}, s{sW}, 4")
    b(f"s_cmp_lt_u32 s{sW}, 2")
    b(f"s_cselect_b32 s{sMask}, s{sTmp2}, s{sW}")
    kpiece(vKd1, sMask)
    b(f"s_lshl_b32 s{sMask}, s{sMask}, 10")
    b(f"s_mul_i32 s{sC0}, s{sHD}, 18")
    b(f"v_and_b32 v{vT0}, 31, v0")
    b(f"v_min_u32 v{vT0}, 17, v{vT0}")
    b(f"v_add_u32 v{vT0}, s{sC0}, v{vT0}")
    b(f"v_lshrrev_b32 v{vT1}, 5, v{vT0}")
    b(f"v_lshlrev_b32 v{vT1}, 11, v{vT1}")
    b(f"v_and_b32 v{vT0}, 31, v{vT0}")
    b(f"v_and_b32 v{vT2}, 32, v0")
    b(f"v_add_u32 v{vT0}, v{vT0}, v{vT2}")
    b(f"v_lshl_add_u32 v{vT0}, v{vT0}, 4, v{vT1}")
    b(f"s_mul_i32 s{sTmp}, s{sW}, 36864")
    b(f"v_add_u32 v{vVd}, s{sTmp}, v{vT0}")
    b(f"s_and_b32 s{sTmp}, s{sC0}, 7")
    b(f"v_lshrrev_b32 v{vT0}, 5, v0")
    b(f"v_lshlrev_b32 v{vT0}, 2, v{vT0}")
    b(f"v_subrev_u32 v{vT3}, s{sTmp}, v{vT0}")
    b(f"s_mov_b32 s{sExec}, 0x3ffff")
    b(f"s_mov_b32 s{sExec+1}, 0x3ffff")
    b("s_waitcnt lgkmcnt(0)")
    srd(b, sK, sWS, SZ_T, WS_K)
    srd(b, sV, sWS, SZ_T, WS_V)
    srd(b, sQ, sWS, SZ_T, WS_Q)
    srd(b, sOo, sWS, SZ_T, WS_O)
    b(f"s_mul_i32 s{sTmp}, s{sHD}, 9")
    b(f"s_lshr_b32 s{sTmp}, s{sTmp}, 2")
    b(f"s_lshl_b32 s{sTmp}, s{sTmp}, 9")
    b(f"s_mul_i32 s{sTmp2}, s{sTB}, 36864")
    b(f"s_add_u32 s{sTmp}, s{sTmp}, s{sTmp2}")
    for Q0, Q1 in ((QA0, QA1), (QB0, QB1)):
        b(f"buffer_load_dwordx2 v[{Q0}:{Q0+1}], v{vL8}, s[{sQ}:{sQ+3}], s{sTmp} offen")
        b(f"buffer_load_dwordx2 v[{Q0+2}:{Q0+3}], v{vL8}, s[{sQ}:{sQ+3}], s{sTmp} offen offset:512")
        b(f"buffer_load_dwordx2 v[{Q1}:{Q1+1}], v{vL8}, s[{sQ}:{sQ+3}], s{sTmp} offen offset:1024")
        b(f"s_add_u32 s{sTmp}, s{sTmp}, 36864")
    b(f"s_lshl_b32 s{sTmp2}, s{sW}, 10")
    b(f"s_lshl_b32 s{sC0}, s{sW}, 11")
    b(f"s_add_u32 s{sC0}, s{sC0}, 6144")
    b.ext(stream_init())
    b(f"v_and_b32 v{vT0}, 31, v0")
    b(f"v_cmp_eq_u32 vcc, 18, v{vT0}")
    b(f"v_mov_b32 v{vT1}, 0x3f803f80")
    b("s_nop 0")
    b(f"v_cndmask_b32 v16, 0, v{vT1}, vcc")
    b("v_mov_b32 v17, v16"); b("v_mov_b32 v18, v16"); b("v_mov_b32 v19, v16")
    b(f"s_mul_i32 s{sTmp}, s{sW}, 2048")
    b(f"v_add_u32 v{vT0}, s{sTmp}, v{vL16}")
    b(f"s_not_b64 exec, s[{sExec}:{sExec+1}]")
    for sl in range(NSLOT):
        for s_ in range(2):
            b(f"ds_write_b128 v{vT0}, v[16:19] offset:{sl*STG + 6144 + s_*1024}")
    b("s_mov_b64 exec, -1")
    b("v_mov_b32 v20, 0")
    b(f"v_mov_b32 v21, {FLAG}")
    b("ds_write_b32 v21, v20")
    for kb in KB: b(f"v_mov_b32 v{kb+6}, 0"); b(f"v_mov_b32 v{kb+7}, 0")
    b(f"s_waitcnt vmcnt({4*LOOK})")
    for Q0, Q1 in ((QA0, QA1), (QB0, QB1)):
        for k in range(6):
            G, jp = k//2, k % 2
            r = (Q0 + k) if k < 4 else (Q1 + k - 4)
            b(f"v_add_u32 v{vT0}, {8*G + 2*jp}, v{vT3}")
            b(f"v_cmp_gt_u32 vcc, 18, v{vT0}")
            b("s_nop 1")
            b(f"v_cndmask_b32 v{r}, 0, v{r}, vcc")
        b(f"v_mov_b32 v{Q1+2}, 0"); b(f"v_mov_b32 v{Q1+3}, 0")
    b("s_waitcnt lgkmcnt(0)")
    b(f"s_mov_b32 s{sMode}, 0")
    pro = list(b.ins)
    ini = main_init(W, False); body = sum((stage_body(W, False, sl) for sl in range(NSLOT)), [])
    loop_tail = [f"s_sub_u32 s{sCnt}, s{sCnt}, 1", f"s_cmp_lg_u32 s{sCnt}, 0"]
    inis = main_init(W, True); bodys = sum((stage_body(W, True, sl) for sl in range(NSLOT)), [])
    mx = sum((max_body(W, sl) for sl in range(NSLOT)), [])
    fin = Blk()
    fin("s_nop 1")
    fin.ext(pv(OB, SB, VB[1]))
    fin("s_waitcnt vmcnt(0) lgkmcnt(0)")
    fin("s_nop 7"); fin("s_nop 3")
    for O, t in ((OA, vT0), (OB, vT1)):
        fin(f"v_mov_b32 v{t}, v{O+10}")
        fin(f"v_mov_b32 v{vT2}, v{O+10}")
        fin("s_nop 1")
        fin(f"v_permlane32_swap_b32 v{t}, v{vT2}")
    chk = Blk()
    chk(f"v_mov_b32 v{vT2}, 0")
    for O in (OA, OB):
        for i in range(10): chk(f"v_fmac_f32 v{vT2}, 0, v{O+i}")
    chk(f"v_cmp_u_f32 vcc, v{vT2}, v{vT2}")
    chk("s_nop 0")
    chk(f"s_mov_b64 s[{sExec+2}:{sExec+3}], vcc")
    for t in (vT0, vT1):
        chk(f"v_cmp_nle_f32 vcc, {f32hex(2.0**-80)}, v{t}")
        chk("s_nop 0")
        chk(f"s_or_b64 s[{sExec+2}:{sExec+3}], s[{sExec+2}:{sExec+3}], vcc")
        chk(f"v_cmp_nge_f32 vcc, {f32hex(2.0**100)}, v{t}")
        chk("s_nop 0")
        chk(f"s_or_b64 s[{sExec+2}:{sExec+3}], s[{sExec+2}:{sExec+3}], vcc")
    chk(f"s_cmp_lg_u64 s[{sExec+2}:{sExec+3}], 0")
    chk(f"s_cselect_b32 s{sTmp}, 1, 0")
    chk(f"v_mov_b32 v20, s{sTmp}")
    chk(f"v_mov_b32 v21, {FLAG}")
    chk("ds_or_b32 v21, v20")
    chk("s_waitcnt lgkmcnt(0)")
    chk("s_barrier")
    chk("ds_read_b32 v20, v21")
    chk("s_waitcnt lgkmcnt(0)")
    chk(f"v_readfirstlane_b32 s{sTmp}, v20")
    chk("s_nop 3")
    chk(f"s_cmp_lg_u32 s{sTmp}, 0")
    out = Blk()
    for (O, t, k) in ((OA, vT0, 0), (OB, vT1, 1)):
        out(f"v_rcp_f32 v{t}, v{t}")
        out("s_nop 0")
        for i in range(10): out(f"v_mul_f32 v{O+i}, v{O+i}, v{t}")
        for i in range(5): out(f"v_cvt_pk_bf16_f32 v{SA+8*k+i}, v{O+2*i}, v{O+2*i+1}")
    if "f16" in OPT:
        out(f"v_bfe_u32 v{vT0}, v0, 4, 1"); out(f"v_lshlrev_b32 v{vT0}, 10, v{vT0}")
        out(f"v_lshrrev_b32 v{vT1}, 5, v0"); out(f"v_lshl_add_u32 v{vT2}, v{vT1}, 8, v{vT0}")
        out(f"v_and_b32 v{vT1}, 15, v0"); out(f"v_lshl_add_u32 v{vT2}, v{vT1}, 4, v{vT2}")
        out(f"v_lshl_add_u32 v{vT0}, v{vT1}, 4, v{vT0}")
        out(f"s_mul_i32 s{sTmp}, s{sTB}, 18")
        out(f"s_lshr_b32 s{sTmp2}, s{sHD}, 1")
        out(f"s_add_u32 s{sTmp}, s{sTmp}, s{sTmp2}")
        out(f"s_lshl_b32 s{sTmp}, s{sTmp}, 11")
        out(f"s_and_b32 s{sTmp2}, s{sHD}, 1")
        out(f"s_lshl_b32 s{sTmp2}, s{sTmp2}, 9")
        out(f"s_add_u32 s{sTmp}, s{sTmp}, s{sTmp2}")
        out(f"buffer_store_dwordx4 v[{SA}:{SA+3}], v{vT2}, s[{sOo}:{sOo+3}], s{sTmp} offen sc1")
        out(f"s_add_u32 s{sTmp2}, s{sTmp}, 36864")
        out(f"buffer_store_dwordx4 v[{SA+8}:{SA+11}], v{vT2}, s[{sOo}:{sOo+3}], s{sTmp2} offen sc1")
        out(f"s_mul_i32 s{sTmp}, s{sTB}, 18")
        out(f"s_lshr_b32 s{sTmp2}, s{sHD}, 4")
        out(f"s_add_u32 s{sTmp}, s{sTmp}, s{sTmp2}")
        out(f"s_add_u32 s{sTmp}, s{sTmp}, 16")
        out(f"s_lshl_b32 s{sTmp}, s{sTmp}, 11")
        out(f"s_bfe_u32 s{sTmp2}, s{sHD}, 0x20002")
        out(f"s_lshl_b32 s{sTmp2}, s{sTmp2}, 8")
        out(f"s_add_u32 s{sTmp}, s{sTmp}, s{sTmp2}")
        out(f"s_and_b32 s{sTmp2}, s{sHD}, 3")
        out(f"s_lshl_b32 s{sTmp2}, s{sTmp2}, 2")
        out(f"s_add_u32 s{sTmp}, s{sTmp}, s{sTmp2}")
        out("s_mov_b32 exec_hi, 0")
        out(f"buffer_store_dword v{SA+4}, v{vT0}, s[{sOo}:{sOo+3}], s{sTmp} offen sc1")
        out(f"s_add_u32 s{sTmp}, s{sTmp}, 36864")
        out(f"buffer_store_dword v{SA+12}, v{vT0}, s[{sOo}:{sOo+3}], s{sTmp} offen sc1")
        out("s_mov_b64 exec, -1")
    else:
        out(f"s_mul_i32 s{sTmp}, s{sTB}, 36")
        out(f"s_add_u32 s{sTmp}, s{sTmp}, s{sHD}")
        out(f"s_lshl_b32 s{sTmp}, s{sTmp}, 10")
        out(f"buffer_store_dwordx4 v[{SA}:{SA+3}], v{vL16}, s[{sOo}:{sOo+3}], s{sTmp} offen sc1")
        out(f"s_add_u32 s{sTmp2}, s{sTmp}, 36864")
        out(f"buffer_store_dwordx4 v[{SA+8}:{SA+11}], v{vL16}, s[{sOo}:{sOo+3}], s{sTmp2} offen sc1")
        out(f"s_mul_i32 s{sTmp}, s{sTB}, 36")
        out(f"s_lshr_b32 s{sTmp2}, s{sHD}, 3")
        out(f"s_add_u32 s{sTmp}, s{sTmp}, s{sTmp2}")
        out(f"s_add_u32 s{sTmp}, s{sTmp}, 32")
        out(f"s_lshl_b32 s{sTmp}, s{sTmp}, 10")
        out(f"s_bfe_u32 s{sTmp2}, s{sHD}, 0x10002")
        out(f"s_lshl_b32 s{sTmp2}, s{sTmp2}, 9")
        out(f"s_add_u32 s{sTmp}, s{sTmp}, s{sTmp2}")
        out(f"s_and_b32 s{sTmp2}, s{sHD}, 3")
        out(f"s_lshl_b32 s{sTmp2}, s{sTmp2}, 2")
        out(f"s_add_u32 s{sTmp}, s{sTmp}, s{sTmp2}")
        out("s_mov_b32 exec_hi, 0")
        out(f"buffer_store_dword v{SA+4}, v{vL16}, s[{sOo}:{sOo+3}], s{sTmp} offen")
        out(f"s_add_u32 s{sTmp}, s{sTmp}, 36864")
        out(f"buffer_store_dword v{SA+12}, v{vL16}, s[{sOo}:{sOo+3}], s{sTmp} offen")
        out("s_mov_b64 exec, -1")
    mxi = Blk()
    mxi(f"v_mov_b32 v{vMA}, 0xff7fffff"); mxi(f"v_mov_b32 v{vMB}, 0xff7fffff")
    mxi("s_waitcnt vmcnt(0)"); mxi("s_barrier")
    mxe = Blk()
    for M, C in ((vMA, CA), (vMB, CB)):
        mxe(f"v_mov_b32 v{vT2}, v{M}")
        mxe("s_nop 1")
        mxe(f"v_permlane32_swap_b32 v{M}, v{vT2}")
        mxe("s_nop 0")
        mxe(f"v_max_f32 v{M}, v{M}, v{vT2}")
        for i in range(16): mxe(f"v_sub_f32 v{C+i}, 0, v{M}")
    mxe("s_waitcnt vmcnt(0)"); mxe("s_barrier")
    t_fast = pro + ini + body + loop_tail + body + loop_tail + body + fin.ins + chk.ins + out.ins
    t_safe = pro + ini + body + fin.ins + chk.ins + stream_init() + mxi.ins + mx + mx + mxe.ins + stream_init() + inis + bodys + bodys + fin.ins + out.ins
    for tr in (t_fast, t_safe): W.simulate(tr)
    R = W.resolve
    bad = len(check(R(t_fast), "attn_fast")) + len(check(R(t_safe), "attn_safe"))
    assert bad == 0 or (OPT - {'k8','f16','flags'})
    o = Blk(); o.ext(R(pro)); o.ext(R(ini))
    if "stamp" in OPT: o("s_memtime s[76:77]"); o("s_waitcnt lgkmcnt(0)")
    o.label("L_at_loop"); o.ext(R(body)); o.ext(loop_tail); o("s_cbranch_scc1 L_at_loop")
    if "stamp" in OPT:
        o("s_memtime s[78:79]"); o("s_waitcnt lgkmcnt(0)"); o("s_sub_u32 s98, s78, s76")
        o("s_sub_u32 s99, s76, s90")
    o.ext(fin); o.ext(chk)
    if "nosafe" in OPT: o("s_branch L_at_out")
    o("s_cbranch_scc0 L_at_out")
    o("s_waitcnt vmcnt(0)"); o("s_barrier")
    o.ext(stream_init()); o.ext(mxi)
    o.label("L_at_mx"); o.ext(mx); o.ext(loop_tail); o("s_cbranch_scc1 L_at_mx")
    o.ext(mxe)
    o.ext(stream_init()); o.ext(R(inis))
    o.label("L_at_loop2"); o.ext(R(bodys)); o.ext(loop_tail); o("s_cbranch_scc1 L_at_loop2")
    o.ext(fin)
    o.label("L_at_out")
    o.ext(out)
    if "flags" in OPT: signal(o, sWS, [f"s_lshl_b32 s{sTmp}, s{sQB}, 3"], sTmp, sW, vT0, "a", 8)
    return o

def gen_attn_kernel(prof=False, opts=()):
    OPT.clear(); OPT.update(opts)
    name = "attn_kernel"
    b = Blk()
    b("s_cmp_ge_u32 s2, 256")
    b("s_cbranch_scc1 L_at_end")
    if prof:
        prof_begin(b)
    b.ext(gen_attn_role())
    if prof: prof_end(b, 2, 4)
    b.label("L_at_end")
    b("s_endpgm")
    return name, kernel_text(name, b.text(), 256, 256, 100)
if __name__ == "__main__":
    n, t = gen_attn_kernel()
    open("k2a.s", "w").write('.amdgcn_target "amdgcn-amd-amdhsa--gfx950"\n' + t)
```

```python
from common import *
SLOT = 20480; NSL = 4; B_LDS = SLOT*NSL
vL16, vTRb, vBo = 1, 2, 3
vD = 4
vT = [[84, 85], [86, 87]]
vTRo, vPs = 88, 89
vA = 12
vB = 36
ACC = 96
sWS, sWDp = 4, 6
sWD, sHB, sPT = 8, 12, 16
sW, sX, sTB, sNH, sSlotR, sSlotW, sWoff, sHoff, sIt, sTmp, sTmp2, sW1024 = range(24, 36)
OPT = set()

def a_reads(g):
    pass

def dma_stage():
    o = []
    for i in range(5):
        o.append(f"s_add_u32 m0, s{sSlotW}, {i*4096}")
        o.append("s_nop 0")
        o.append(f"buffer_load_dwordx4 v{vD+i}, s[{sWD}:{sWD+3}], s{sWoff} offen lds ;#w")
    o.append(f"s_add_u32 s{sWoff}, s{sWoff}, {2*18432}")
    o.append(f"s_add_u32 s{sSlotW}, s{sSlotW}, {SLOT}")
    o.append(f"s_cmp_ge_u32 s{sSlotW}, {SLOT*NSL}")
    o.append(f"s_cselect_b32 s{sTmp}, {SLOT*NSL}, 0")
    o.append(f"s_sub_u32 s{sSlotW}, s{sSlotW}, s{sTmp}")
    return o
def adv_read():
    return [f"s_add_u32 s{sSlotR}, s{sSlotR}, {SLOT}",
            f"s_cmp_eq_u32 s{sSlotR}, {SLOT*NSL}",
            f"s_cselect_b32 s{sSlotR}, 0, s{sSlotR}"]

import sys
PD = 5 if 'dpd5' in sys.argv else (3 if 'dpd3' in sys.argv else 4)
def rd(g):
    st = g//18; u = g % 18
    r = vA + (g % 6)*4
    base = vT[st % 2][u % 2]
    return [f"ds_read_b64_tr_b16 v[{r}:{r+1}], v{base} offset:{u*32}",
            f"ds_read_b64_tr_b16 v[{r+2}:{r+3}], v{base} offset:{u*32+8*576}"]
def body(W):
    o = []
    for g in range(108):
        st = g//18; u = g % 18
        if u == 0:
            o += [W.wv("wn"), "s_barrier", W.wv(f"b{2*st}"), W.wv(f"b{2*st+1}")]
            for o_ in OPT:
                if o_.startswith("hs") and int(o_[2:]) % 6 == st:
                    o += [f"s_cmp_eq_u32 s{sIt}, {3 - int(o_[2:])//6}", f"s_cbranch_scc0 L_dn_hs{st}", "s_setprio 0", f"L_dn_hs{st}:"]
        r = vA + (g % 6)*4; b0 = vB + (2*st)*4; a = ACC + u*8
        o.append(W.wl(f"v[{r}:{r+3}]"))
        rr = rd(g + PD)
        pre = []
        if u == 18 - PD - 2:
            pre = adv_read() + [f"v_add_u32 v{vT[(st+1) % 2][0]}, s{sSlotR}, v{vTRb}", f"v_add_u32 v{vT[(st+1) % 2][1]}, s{sSlotR}, v{vTRo}"]
        o.append(f"v_mfma_f32_16x16x32_bf16 v[{a}:{a+3}], v[{r}:{r+3}], v[{b0}:{b0+3}], v[{a}:{a+3}]")
        o += pre + rr[:1]
        o.append(f"v_mfma_f32_16x16x32_bf16 v[{a+4}:{a+7}], v[{r}:{r+3}], v[{b0+4}:{b0+7}], v[{a+4}:{a+7}]")
        o += rr[1:]
        d = dma_stage()
        if u == 0 and st == 3: o += [f"s_cmp_eq_u32 s{sIt}, 1", f"s_cselect_b32 s{sWD+2}, 0, {SZ_WG}"]
        if u in (2, 5, 8, 11, 14):
            i = (u - 2)//3
            o += d[3*i:3*i+3]
        if u == 15: o += d[15:]
        if u in (1, 10):
            k = 2*st + (0 if u == 1 else 1)
            kn = (k + 10) % 12
            rb = vB + kn*4
            tt = k % 2
            o.append(f"buffer_load_dwordx4 v[{rb}:{rb+3}], v{vBo}, s[{sHB}:{sHB+3}], s{sHoff} offen offset:{tt*256} ;#b{kn}")
            if tt == 1: o.append(f"s_add_u32 s{sHoff}, s{sHoff}, 2048")
            if k == 1:
                o += [f"s_cmp_eq_u32 s{sIt}, 1", f"s_cselect_b32 s{sHB+2}, 0, {SZ_H}"]
    if "nods" in OPT: o = [x for x in o if not x.startswith("ds_read") and not x.startswith("@WL")]
    return o

def gen_down_role(opts=()):
    OPT.clear(); OPT.update(opts)
    W = Waits()
    b = Blk()
    b(f"s_load_dwordx2 s[{sWS}:{sWS+1}], s[0:1], {KA_WS}")
    b(f"s_load_dwordx2 s[{sWDp}:{sWDp+1}], s[0:1], {KA_WD}")
    b(f"v_readfirstlane_b32 s{sW}, v0")
    b("v_and_b32 v0, 63, v0")
    b(f"s_lshr_b32 s{sW}, s{sW}, 6")
    if "xtok" in OPT:
        b(f"s_bfe_u32 s{sX}, s2, 0x30003")
        b(f"s_bfe_u32 s{sNH}, s2, 0x10006")
        b(f"s_and_b32 s{sTB}, s2, 7")
        b(f"s_lshl_b32 s{sTB}, s{sTB}, 1")
        b(f"s_bfe_u32 s{sTmp}, s2, 0x10007")
        b(f"s_add_u32 s{sTB}, s{sTB}, s{sTmp}")
    else:
        b(f"s_and_b32 s{sX}, s2, 7")
        b(f"s_bfe_u32 s{sNH}, s2, 0x10003")
        b(f"s_bfe_u32 s{sTB}, s2, 0x40004")
    b(f"s_lshl_b32 s{sTB}, s{sTB}, 2")
    b(f"s_add_u32 s{sTB}, s{sTB}, s{sW}")
    b(f"s_lshl_b32 s{sW1024}, s{sW}, 10")
    b(f"v_lshlrev_b32 v{vL16}, 4, v0")
    b("v_lshrrev_b32 v10, 5, v0")
    b("v_lshlrev_b32 v10, 4, v10")
    b("v_bfe_u32 v11, v0, 4, 1")
    b("v_lshl_add_u32 v10, v11, 2, v10")
    b("v_bfe_u32 v9, v0, 2, 2")
    b("v_add_u32 v10, v10, v9")
    b("v_mul_u32_u24 v10, 576, v10")
    b("v_and_b32 v9, 3, v0")
    b("v_lshl_add_u32 v10, v9, 3, v10")
    b("v_lshlrev_b32 v11, 5, v11")
    b(f"v_add_u32 v{vTRb}, v10, v11")
    b(f"v_sub_u32 v{vTRo}, v10, v11")
    b(f"v_mov_b32 v{vT[0][0]}, v{vTRb}")
    b(f"v_mov_b32 v{vT[0][1]}, v{vTRo}")
    b("v_lshrrev_b32 v10, 5, v0")
    b("v_lshlrev_b32 v10, 10, v10")
    b("v_bfe_u32 v11, v0, 4, 1")
    b("v_lshl_add_u32 v10, v11, 9, v10")
    b("v_and_b32 v11, 15, v0")
    b(f"v_lshl_add_u32 v{vBo}, v11, 4, v10")
    b("v_bfe_u32 v10, v0, 4, 1")
    b("v_lshlrev_b32 v10, 9, v10")
    b("v_lshl_add_u32 v10, v11, 4, v10")
    b("v_lshrrev_b32 v11, 5, v0")
    b(f"v_lshl_add_u32 v{vPs}, v11, 3, v10")
    for i in range(5):
        b(f"s_add_u32 s{sTmp}, s{sW}, {4*i}")
        b(f"s_lshl_b32 s{sTmp2}, s{sTmp}, 10")
        b(f"v_add_u32 v10, s{sTmp2}, v{vL16}")
        b("v_lshrrev_b32 v11, 6, v10")
        b("v_mul_u32_u24 v11, 7282, v11")
        b("v_lshrrev_b32 v11, 16, v11")
        b("v_mul_u32_u24 v11, 576, v11")
        b(f"v_add_u32 v{vD+i}, v10, v11")
        b("v_mul_u32_u24 v11, 7282, v9") if False else None
        b("v_lshrrev_b32 v11, 6, v10"); b("v_mul_u32_u24 v11, 7282, v11"); b("v_lshrrev_b32 v11, 16, v11")
        b("v_mul_u32_u24 v9, 576, v11"); b("v_sub_u32 v9, v10, v9")
        b("v_bfe_u32 v11, v11, 2, 1"); b("v_lshlrev_b32 v11, 5, v11")
        b("v_xor_b32 v11, v9, v11"); b("v_sub_u32 v11, v11, v9")
        b(f"v_add_u32 v{vD+i}, v{vD+i}, v11")
        if i == 4:
            b(f"s_cmp_ge_u32 s{sTmp}, 18")
            b(f"s_cselect_b32 s{sTmp2}, 0x7f000000, 0")
            b(f"v_add_u32 v{vD+i}, s{sTmp2}, v{vD+i}")
    b("s_waitcnt lgkmcnt(0)")
    srd(b, sWD, sWDp, SZ_WG)
    srd(b, sHB, sWS, SZ_H, WS_H)
    srd(b, sPT, sWS, NSPLIT*SZ_T, WS_P)
    b(f"s_mul_i32 s{sWoff}, s{sX}, {576*1152}")
    b(f"s_mul_i32 s{sTmp}, s{sNH}, 576")
    b(f"s_add_u32 s{sWoff}, s{sWoff}, s{sTmp}")
    b(f"s_mul_i32 s{sHoff}, s{sTB}, 288")
    b(f"s_mul_i32 s{sTmp}, s{sX}, 36")
    b(f"s_add_u32 s{sHoff}, s{sHoff}, s{sTmp}")
    b(f"s_lshl_b32 s{sHoff}, s{sHoff}, 10")
    b(f"s_mov_b32 s{sSlotW}, s{sW1024}")
    b(f"s_mov_b32 s{sSlotR}, 0")
    def bl(k):
        o = [f"buffer_load_dwordx4 v[{vB+4*k}:{vB+4*k+3}], v{vBo}, s[{sHB}:{sHB+3}], s{sHoff} offen offset:{(k % 2)*256} ;#b{k}"]
        if k % 2 == 1: o.append(f"s_add_u32 s{sHoff}, s{sHoff}, 2048")
        return o
    b.ext([x.replace(";#w", ";#w0") for x in dma_stage()])
    for k in range(2): b.ext(bl(k))
    b.ext([x.replace(";#w", ";#w1") for x in dma_stage()])
    for k in range(2, 6): b.ext(bl(k))
    b.ext([x.replace(";#w", ";#w2") for x in dma_stage()])
    for k in range(6, 10): b.ext(bl(k))
    for i in range(144): b(f"v_mov_b32 v{ACC+i}, 0")
    b(W.wv("w0")); b("s_barrier")
    for g in range(PD): b.ext(rd(g))
    b(f"s_mov_b32 s{sIt}, 3")
    pro = list(b.ins)
    bd = body(W)
    tail = [f"s_sub_u32 s{sIt}, s{sIt}, 1", f"s_cmp_lg_u32 s{sIt}, 0"]
    def trace(n):
        t = list(pro)
        st = 0; issued = 3
        for it in range(n):
            for s in bd + tail:
                if s.startswith("@WV") and s.endswith(" wn"):
                    t.append(s[:-2] + f"w{st+1}"); st += 1
                elif ";#w" in s and s.endswith(";#w"):
                    t.append(s.replace(";#w", f";#w{issued}"))
                    cnt = sum(1 for x in t if x.endswith(f";#w{issued}"))
                    if cnt == 5: issued += 1
                else: t.append(s)
        return t
    tr = [x for x in trace(3) if not x.startswith(("s_cbranch", "L_dn_hs"))]
    W.simulate(tr)
    R = W.resolve
    epi = Blk()
    epi("s_waitcnt vmcnt(0) lgkmcnt(0)")
    epi("s_nop 7"); epi("s_nop 3")
    epi(f"s_lshl_b32 s{sTmp}, s{sX}, 6")
    epi(f"s_add_u32 s{sTmp}, s{sTmp}, s{sTB}")
    epi(f"s_mul_i32 s{sTmp}, s{sTmp}, 18")
    epi(f"s_mul_i32 s{sTmp2}, s{sNH}, 9")
    epi(f"s_add_u32 s{sTmp}, s{sTmp}, s{sTmp2}")
    epi(f"s_lshl_b32 s{sTmp}, s{sTmp}, 11")
    for u in range(18):
        a = ACC + u*8; p = vB + (u % 8)*4
        for i in range(4): epi(f"v_cvt_pk_bf16_f32 v{p+i}, v{a+2*i}, v{a+2*i+1}")
        if "f16" in OPT:
            epi(f"buffer_store_dwordx4 v[{p}:{p+3}], v{vL16}, s[{sPT}:{sPT+3}], s{sTmp} offen offset:{(u % 2)*1024} sc1")
        else:
            for tt in range(2):
                epi(f"buffer_store_dwordx2 v[{p+2*tt}:{p+2*tt+1}], v{vPs}, s[{sPT}:{sPT+3}], s{sTmp} offen offset:{(u % 2)*1024 + tt*256} sc1")
        if u % 2 == 1: epi(f"s_add_u32 s{sTmp}, s{sTmp}, 2048")
    if "wbl2" in OPT:
        epi("s_waitcnt vmcnt(0)")
        epi("s_barrier")
        epi(f"s_cmp_eq_u32 s{sW}, 0")
        epi("s_cbranch_scc0 L_dn_nowb")
        epi("buffer_wbl2 sc1")
        epi.label("L_dn_nowb")
    if "flags" in OPT:
        signal(epi, sWS, [f"s_lshr_b32 s{sTmp}, s{sTB}, 2", f"s_lshl_b32 s{sTmp}, s{sTmp}, 1", f"s_add_u32 s{sTmp}, s{sTmp}, s{sNH}", f"s_add_u32 s{sTmp}, s{sTmp}, 64"], sTmp, sW, 10, "d", 1)
    if "nowo" not in OPT:
        epi(f"s_lshr_b32 s{sTmp}, s2, 3")
        epi(f"s_and_b32 s{sTmp}, s{sTmp}, 31")
        epi(f"s_lshl_b32 s{sTmp}, s{sTmp}, 2")
        epi(f"s_add_u32 s{sTmp}, s{sTmp}, s{sW}")
        epi(f"s_mul_i32 s{sTmp}, s{sTmp}, {6*1024}")
        srd(epi, sWD, sWS, SZ_WO, WS_WOF)
        for i in range(6):
            epi(f"buffer_load_dwordx4 v[{ACC+4*i}:{ACC+4*i+3}], v{vL16}, s[{sWD}:{sWD+3}], s{sTmp} offen")
            epi(f"s_add_u32 s{sTmp}, s{sTmp}, 1024")
    assert len(check(R(tr) + [x for x in epi.ins if not x.startswith("s_cbranch")], "down")) == 0 or (OPT - {"hi1","hi2","hi3","xtok","wbl2","f16","flags","hs13","hs14","hs15","hs16","hs10","hs12","al"})
    o = Blk(); o.ext(R(pro))
    if "stamp" in OPT: o("s_memtime s[76:77]"); o("s_waitcnt lgkmcnt(0)")
    hi = [x for x in OPT if x.startswith("hi")]
    if hi or any(x.startswith("hs") for x in OPT): o("s_setprio 2")
    if "al" in OPT: o(".p2align 6")
    o.label("L_dn_loop"); o.ext(R(bd))
    if hi:
        n = int(hi[0][2:])
        o(f"s_cmp_eq_u32 s{sIt}, {4-n}")
        o("s_cbranch_scc0 L_dn_keep")
        o("s_setprio 0")
        o.label("L_dn_keep")
    o.ext(tail); o("s_cbranch_scc1 L_dn_loop")
    if "stamp" in OPT:
        o("s_memtime s[78:79]"); o("s_waitcnt lgkmcnt(0)"); o("s_sub_u32 s98, s78, s76")
    o.ext(epi)
    return o

def gen_down_kernel(prof=False, opts=()):
    name = "down_kernel"
    b = Blk()
    b("s_cmp_ge_u32 s2, 256")
    b("s_cbranch_scc1 L_dn_end")
    if prof: prof_begin(b)
    b.ext(gen_down_role(opts))
    if prof: prof_end(b, 3, 4)
    b.label("L_dn_end")
    b("s_endpgm")
    return name, kernel_text(name, b.text(), 256, 256, 100)
if __name__ == "__main__":
    n, t = gen_down_kernel()
    open("k2b.s", "w").write('.amdgcn_target "amdgcn-amd-amdhsa--gfx950"\n' + t)
```

```python
from common import *
O_LDS = 0
A8_LDS = 36*1024
X_LDS = A8_LDS + 20*1024
F_LDS = X_LDS + 12*1024
vL16, vXr, vXd, vT0, vT1 = 1, 2, 3, 4, 5
vFl = 6
ACC = 8
vS = 28
vB = 64
vC = 88
vA = 112
sWS, sXp, sOp, sDb = 4, 8, 10, 6
sWO, sOB, sPT, sX, sOut = 12, 16, 20, 24, 28
sW, sTB, sQ, sTmp, sTmp2, sOff, sU, sW1024, sTT, sSpin = range(32, 42)
sFl = 44

def spin(b, idx_sreg, target, tag):
    b(f"s_cmp_lg_u32 s{sW}, 0")
    b(f"s_cbranch_scc1 L_f_go{tag}")
    b(f"s_lshl_b32 s{sTmp}, s{idx_sreg}, 7")
    b(f"s_add_u32 s{sTmp}, s{sTmp}, {WS_FLG}")
    b(f"v_mov_b32 v{vFl}, s{sTmp}")
    b(f"s_mov_b32 s{sSpin}, 0x4000")
    b.label(f"L_f_spin{tag}")
    b(f"global_load_dword v{vT0}, v{vFl}, s[{sWS}:{sWS+1}] sc1")
    b("s_waitcnt vmcnt(0)")
    b(f"v_readfirstlane_b32 s{sTmp}, v{vT0}")
    b("s_nop 3")
    b(f"s_cmp_ge_u32 s{sTmp}, {target}")
    b(f"s_cbranch_scc1 L_f_go{tag}")
    b("s_sleep 4")
    b(f"s_sub_u32 s{sSpin}, s{sSpin}, 1")
    b(f"s_cmp_lg_u32 s{sSpin}, 0")
    b(f"s_cbranch_scc1 L_f_spin{tag}")
    b.label(f"L_f_go{tag}")
    b("s_barrier")

def gen_f_role(flags=False, wgbits="s2", stampk=0):
    W = Waits()
    b = Blk()
    sc = " sc1" if flags else ""
    b(f"s_load_dwordx2 s[{sWS}:{sWS+1}], s[0:1], {KA_WS}")
    b(f"s_load_dwordx2 s[{sXp}:{sXp+1}], s[0:1], {KA_X}")
    b(f"s_load_dwordx2 s[{sOp}:{sOp+1}], s[0:1], {KA_OUT}")
    b(f"v_readfirstlane_b32 s{sW}, v0")
    b("v_and_b32 v0, 63, v0")
    b(f"s_lshr_b32 s{sW}, s{sW}, 6")
    b(f"s_and_b32 s{sTB}, s2, 7")
    b(f"s_bfe_u32 s{sTmp}, s2, 0x30005")
    b(f"s_lshl_b32 s{sTmp}, s{sTmp}, 3")
    b(f"s_add_u32 s{sTB}, s{sTB}, s{sTmp}")
    b(f"s_bfe_u32 s{sQ}, s2, 0x20003")
    b(f"s_mul_i32 s{sU}, s{sQ}, 9")
    b(f"s_lshl_b32 s{sW1024}, s{sW}, 10")
    b(f"s_and_b32 s{sTT}, s{sW}, 1")
    b(f"v_lshlrev_b32 v{vL16}, 4, v0")
    b(f"v_and_b32 v{vT0}, 15, v0")
    b(f"v_mul_u32_u24 v{vT0}, 288, v{vT0}")
    b(f"v_lshrrev_b32 v{vT1}, 4, v0")
    b(f"v_lshl_add_u32 v{vXr}, v{vT1}, 3, v{vT0}")
    b(f"v_add_u32 v{vXr}, {X_LDS}, v{vXr}")
    b("s_waitcnt lgkmcnt(0)")
    srd(b, sWO, sWS, SZ_WO, WS_WOF)
    srd(b, sOB, sWS, SZ_T, WS_O)
    srd(b, sPT, sWS, NSPLIT*SZ_T, WS_P)
    srd(b, sX, sXp, SZ_X)
    srd(b, sOut, sOp, SZ_X)
    b(f"s_mul_i32 s{sOff}, s{sTB}, {32*1152}")
    b(f"s_mul_i32 s{sTmp}, s{sQ}, 288")
    b(f"s_add_u32 s{sOff}, s{sOff}, s{sTmp}")
    def piece(dst, i):
        o = [f"s_add_u32 s{sTmp}, s{sW}, {4*i}", f"s_lshl_b32 s{sTmp}, s{sTmp}, 6",
             f"v_add_u32 v{vT0}, s{sTmp}, v0",
             f"v_mul_u32_u24 v{vT1}, 3641, v{vT0}", f"v_lshrrev_b32 v{vT1}, 16, v{vT1}",
             f"v_mul_u32_u24 v{vT1}, 864, v{vT1}",
             f"v_lshl_add_u32 v{dst}, v{vT0}, 4, v{vT1}"]
        if i == 2:
            o += [f"v_cmp_gt_u32 vcc, 576, v{vT0}", f"v_mov_b32 v{vT1}, 0x7f000000", "s_nop 0", f"v_cndmask_b32 v{dst}, v{vT1}, v{dst}, vcc"]
        return o
    for i in range(3):
        b.ext(piece(vXd, i))
        b(f"s_add_u32 m0, s{sW1024}, {X_LDS + i*4096}")
        b("s_nop 0")
        b(f"buffer_load_dwordx4 v{vXd}, s[{sX}:{sX+3}], s{sOff} offen lds ;#x")
    b(f"s_mul_i32 s{sOff}, s{sW}, 36")
    b(f"s_add_u32 s{sOff}, s{sOff}, s{sU}")
    b(f"s_add_u32 s{sOff}, s{sOff}, 8")
    b(f"s_lshl_b32 s{sOff}, s{sOff}, 10")
    for i in range(5):
        b(f"s_add_u32 m0, s{sW1024}, {A8_LDS + i*4096}")
        b("s_nop 0")
        b(f"buffer_load_dwordx4 v{vL16}, s[{sWO}:{sWO+3}], s{sOff} offen lds ;#x")
        b(f"s_add_u32 s{sOff}, s{sOff}, {4*36*1024}")
    b(f"s_lshl_b32 s{sOff}, s{sW}, 1")
    b(f"s_add_u32 s{sOff}, s{sOff}, s{sU}")
    b(f"s_lshl_b32 s{sOff}, s{sOff}, 10")
    for m in range(18):
        for e in range(2):
            r = vA + (2*m+e)*4
            b(f"buffer_load_dwordx4 v[{r}:{r+3}], v{vL16}, s[{sWO}:{sWO+3}], s{sOff} offen offset:{e*1024} ;#a{m}")
        b(f"s_add_u32 s{sOff}, s{sOff}, {36*1024}")
    b(W.wv("x")); b("s_barrier")
    b(f"s_lshl_b32 s{sTmp}, s{sW}, 6")
    b(f"v_add_u32 v{vT0}, s{sTmp}, v{vXr}")
    for e in range(2):
        for tt in range(2):
            r = vS + (e*2+tt)*2
            b(f"ds_read_b64 v[{r}:{r+1}], v{vT0} offset:{e*32 + tt*16*288}")
    b(f"s_mul_i32 s{sTmp}, s{sTT}, {16*288}")
    b(f"v_add_u32 v{vT1}, s{sTmp}, v{vXr}")
    b(f"ds_read_b64 v[{vS+8}:{vS+9}], v{vT1} offset:256")
    b("s_waitcnt lgkmcnt(0)")
    for i in range(10):
        b(f"v_lshlrev_b32 v{ACC+2*i}, 16, v{vS+i}")
        b(f"v_and_b32 v{ACC+2*i+1}, 0xffff0000, v{vS+i}")
    if flags:
        b(f"s_lshr_b32 s{sTmp2}, s{sTB}, 2"); b(f"s_lshl_b32 s{sTmp2}, s{sTmp2}, 1")
        b(f"s_lshr_b32 s{sTmp}, s{sQ}, 1"); b(f"s_add_u32 s{sTmp2}, s{sTmp2}, s{sTmp}"); b(f"s_add_u32 s{sTmp2}, s{sTmp2}, 64")
        b("s_waitcnt vmcnt(0)")
        spin(b, sTmp2, 8, "p")
    b(f"s_mul_i32 s{sOff}, s{sTB}, 36")
    b(f"s_add_u32 s{sOff}, s{sOff}, s{sU}")
    b(f"s_add_u32 s{sTmp2}, s{sOff}, 8")
    b(f"s_lshl_b32 s{sTmp2}, s{sTmp2}, 10")
    b(f"s_cmp_lt_u32 s{sW}, 2")
    b(f"s_cselect_b32 s{sTmp2}, s{sTmp2}, 0x70000000")
    b(f"s_lshl_b32 s{sTmp}, s{sW}, 1")
    b(f"s_add_u32 s{sOff}, s{sOff}, s{sTmp}")
    b(f"s_lshl_b32 s{sOff}, s{sOff}, 10")
    def p_load(s_):
        r = vS + (s_ % 3)*12
        return [f"buffer_load_dwordx4 v[{r}:{r+3}], v{vL16}, s[{sPT}:{sPT+3}], s{sOff} offen{sc} ;#p{s_}",
                f"buffer_load_dwordx4 v[{r+4}:{r+7}], v{vL16}, s[{sPT}:{sPT+3}], s{sOff} offen offset:1024{sc} ;#p{s_}",
                f"buffer_load_dwordx4 v[{r+8}:{r+11}], v{vL16}, s[{sPT}:{sPT+3}], s{sTmp2} offen{sc} ;#p{s_}",
                f"s_add_u32 s{sOff}, s{sOff}, {SZ_T}", f"s_add_u32 s{sTmp2}, s{sTmp2}, {SZ_T}"]
    def p_add(s_):
        r = vS + (s_ % 3)*12
        o = [W.wv(f"p{s_}")]
        for i in range(8):
            o += [f"v_lshlrev_b32 v{vT0}, 16, v{r+i}", f"v_and_b32 v{r+i}, 0xffff0000, v{r+i}",
                  f"v_add_f32 v{ACC+2*i}, v{ACC+2*i}, v{vT0}", f"v_add_f32 v{ACC+2*i+1}, v{ACC+2*i+1}, v{r+i}"]
        o += [f"v_cndmask_b32 v{r+8}, v{r+8}, v{r+10}, s[46:47]", f"v_cndmask_b32 v{r+9}, v{r+9}, v{r+11}, s[46:47]"]
        for i in range(2):
            o += [f"v_lshlrev_b32 v{vT0}, 16, v{r+8+i}", f"v_and_b32 v{r+8+i}, 0xffff0000, v{r+8+i}",
                  f"v_add_f32 v{ACC+16+2*i}, v{ACC+16+2*i}, v{vT0}", f"v_add_f32 v{ACC+17+2*i}, v{ACC+17+2*i}, v{r+8+i}"]
        return o
    b(f"s_cmp_lg_u32 s{sTT}, 0")
    b("s_cselect_b64 s[46:47], -1, 0")
    def o_dma():
        o = [f"s_mul_i32 s{sTmp}, s{sTB}, 36864", f"s_add_u32 s{sTmp}, s{sTmp}, s{sW1024}"]
        for i in range(9):
            o += [f"s_add_u32 m0, s{sW1024}, {O_LDS + i*4096}", "s_nop 0",
                  f"buffer_load_dwordx4 v{vL16}, s[{sOB}:{sOB+3}], s{sTmp} offen{sc} lds ;#o",
                  f"s_add_u32 s{sTmp}, s{sTmp}, 4096"]
        return o
    if not flags: b.ext(o_dma())
    for s_ in range(3): b.ext(p_load(s_))
    for s_ in range(NSPLIT):
        b.ext(p_add(s_))
        if s_ + 3 < NSPLIT: b.ext(p_load(s_ + 3))
    if flags:
        b(f"s_lshr_b32 s{sTmp2}, s{sTB}, 3")
        b(f"s_lshl_b32 s{sTmp2}, s{sTmp2}, 3")
        b(f"s_and_b32 s{sOff}, s2, 7")
        b(f"s_add_u32 s{sTmp2}, s{sTmp2}, s{sOff}")
        spin(b, sTmp2, 32, "o")
        b.ext(o_dma())
    b(W.wv("o")); b("s_barrier")
    def rdB(m):
        r = vB + (m % 3)*8
        return [f"ds_read_b128 v[{r}:{r+3}], v{vL16} offset:{O_LDS + m*2048}",
                f"ds_read_b128 v[{r+4}:{r+7}], v{vL16} offset:{O_LDS + m*2048 + 1024}"]
    def rdC(m):
        r = vC + (m % 3)*4
        return [f"ds_read_b128 v[{r}:{r+3}], v{vL16} offset:{A8_LDS + m*1024}"]
    for i in range(8): b(f"v_mov_b32 v{100+i}, 0")
    for m in range(2): b.ext(rdB(m)); b.ext(rdC(m))
    for m in range(18):
        rb = vB + (m % 3)*8; rc = vC + (m % 3)*4
        b(W.wv(f"a{m}"))
        b(W.wl(f"v[{rb}:{rb+7}]", f"v[{rc}:{rc+3}]"))
        for e in range(2):
            ra = vA + (2*m+e)*4
            for tt in range(2):
                a = ACC + e*8 + tt*4
                b(f"v_mfma_f32_16x16x32_bf16 v[{a}:{a+3}], v[{ra}:{ra+3}], v[{rb+4*tt}:{rb+4*tt+3}], v[{a}:{a+3}]")
        b(f"v_mfma_f32_16x16x32_bf16 v[100:103], v[{rc}:{rc+3}], v[{rb}:{rb+3}], v[100:103]")
        b(f"v_mfma_f32_16x16x32_bf16 v[104:107], v[{rc}:{rc+3}], v[{rb+4}:{rb+7}], v[104:107]")
        if m + 2 < 18: b.ext(rdB(m+2)); b.ext(rdC(m+2))
    b("s_nop 7")
    for i in range(4):
        b(f"v_cndmask_b32 v{100+i}, v{100+i}, v{104+i}, s[46:47]")
    for i in range(4): b(f"v_add_f32 v{ACC+16+i}, v{ACC+16+i}, v{100+i}")
    for i in range(10): b(f"v_cvt_pk_bf16_f32 v{vS+i}, v{ACC+2*i}, v{ACC+2*i+1}")
    b(f"s_lshl_b32 s{sTmp}, s{sW}, 6")
    b(f"v_add_u32 v{vT0}, s{sTmp}, v{vXr}")
    for e in range(2):
        for tt in range(2):
            r = vS + (e*2+tt)*2
            b(f"ds_write_b64 v{vT0}, v[{r}:{r+1}] offset:{e*32 + tt*16*288}")
    b(f"s_cmp_lt_u32 s{sW}, 2")
    b("s_cbranch_scc0 L_f_no9")
    n9 = [f"ds_write_b64 v{vT1}, v[{vS+8}:{vS+9}] offset:256"]
    pre9 = [f"s_mul_i32 s{sTmp}, s{sTT}, {16*288}", f"v_add_u32 v{vT1}, s{sTmp}, v{vXr}"]
    b.ext(pre9); b.ext(n9)
    b.label("L_f_no9")
    b("s_waitcnt lgkmcnt(0)"); b("s_barrier")
    b(f"s_mul_i32 s{sOff}, s{sTB}, {32*1152}")
    b(f"s_mul_i32 s{sTmp}, s{sQ}, 288")
    b(f"s_add_u32 s{sOff}, s{sOff}, s{sTmp}")
    for i in range(3):
        b.ext(piece(vXd, i))
        b(f"v_lshlrev_b32 v{vT0}, 4, v{vT0}")
        b(f"ds_read_b128 v[{vB+4*i}:{vB+4*i+3}], v{vT0} offset:{X_LDS}")
        b("s_waitcnt lgkmcnt(0)")
        b(f"buffer_store_dwordx4 v[{vB+4*i}:{vB+4*i+3}], v{vXd}, s[{sOut}:{sOut+3}], s{sOff} offen")
    ins = list(b.ins)
    lin = [x for x in ins if not x.startswith(("s_cbranch", "L_f_"))]
    W.simulate(lin)
    b.ins = W.resolve(ins)
    assert len(check([x for x in W.resolve(lin)], "frole")) == 0
    return b

def gen_k3(prof=False, outsc1=False, stamp=0):
    name = "final_kernel"
    b = Blk()
    b("s_cmp_ge_u32 s2, 256")
    b("s_cbranch_scc1 L_k3_end")
    if prof: prof_begin(b)
    b.ext(gen_f_role(False))
    if prof: prof_end(b, 4, 4)
    b.label("L_k3_end")
    b("s_endpgm")
    return name, kernel_text(name, b.text(), 256, 256, 100)
K3_LDS = F_LDS
if __name__ == "__main__":
    n, t = gen_k3()
    open("k3.s", "w").write('.amdgcn_target "amdgcn-amd-amdhsa--gfx950"\n' + t)
```

```python
import sys
from build import *
import k0, k0b
import k1, k1b, k1c
from k2a import gen_attn_kernel, A_LDS
from k2b import gen_down_kernel, B_LDS
from k2 import gen_mix, MIX_LDS
import k3, k3c, k3d, k3f
if 'f16' in sys.argv: sys.argv += ['a:f16', 'd:f16']
if 'fuse' in sys.argv: sys.argv += ['a:flags', 'd:flags']
if 'oldk3' in sys.argv: gen_k3, K3_LDS, K3G, K3B = k3.gen_k3, k3.K3_LDS, 288, 256
elif 'f16' in sys.argv: gen_k3, K3_LDS, K3G, K3B = k3f.gen_k3, k3f.K3_LDS, 256, 256
elif 'k3c' in sys.argv: gen_k3, K3_LDS, K3G, K3B = k3c.gen_k3, k3c.K3_LDS, 256, 320
else: gen_k3, K3_LDS, K3G, K3B = k3d.gen_k3, k3d.K3_LDS, 256, 320
prof = "prof" in sys.argv
out = sys.argv[1]
extra = tuple(a[2:] for a in sys.argv if a.startswith("o:"))
if "old1" in sys.argv: gen_k1, K1_LDS, k1o = k1.gen_k1, k1.K1_LDS, ("wfirst","step3")
elif 'm16' in sys.argv: gen_k1, K1_LDS, k1o = k1c.gen_k1, k1c.K1_LDS, ()
else: gen_k1, K1_LDS, k1o = k1b.gen_k1, k1b.K1_LDS, ()
k1o = k1o + extra + (("rt",) if prof else ())
pf = "nopf0" not in sys.argv
pfrows = 576
for a in sys.argv:
    if a.startswith("rows"): pfrows = int(a[4:])
K0 = (k0.gen_k0(prof, pf, pfrows, 'not0' not in sys.argv),256,256,4096) if 'oldk0' in sys.argv else (k0b.gen_k0(prof, 'r128' in extra, sys.argv),256,512,k0b.K0_LDS)
if "mix" in sys.argv:
    order = "da" if "da" in sys.argv else "ad"
    prio = "first" if "p1" in sys.argv else ("second" if "p2" in sys.argv else None)
    cfg = [K0,(gen_k1("R8", False, k1o),256,512,K1_LDS),(gen_mix(prof, order, prio, tuple(a[2:] for a in sys.argv if a.startswith("a:")), tuple(a[2:] for a in sys.argv if a.startswith("d:"))),512,256,MIX_LDS),(gen_k3(prof, "outsc1" in sys.argv, *([int(a[2:]) for a in sys.argv if a.startswith("s:")])),K3G,K3B,K3_LDS)]
else:
    cfg = [K0,(gen_k1("R8", False, k1o),256,512,K1_LDS),(gen_attn_kernel(prof),256,256,A_LDS),(gen_down_kernel(prof),256,256,B_LDS),(gen_k3(prof, "outsc1" in sys.argv, *([int(a[2:]) for a in sys.argv if a.startswith("s:")])),K3G,K3B,K3_LDS)]
if 'fuse' in sys.argv:
    cfg = cfg[:2] + [(cfg[2][0], 768, 256, cfg[2][3])]
open(out,"w").write(build_all(cfg))
```

```python
from common import *
O_LDS = 0
A8_LDS = 36*1024
X_LDS = A8_LDS + 20*1024
F_LDS = X_LDS + 12*1024
vL16, vXr, vXd, vT0, vT1 = 1, 2, 3, 4, 5
vFl = 6
ACC = 8
vS = 28
vB = 64
vC = 88
vA = 112
sWS, sXp, sOp, sDb = 4, 8, 10, 6
sWO, sOB, sPT, sX, sOut = 12, 16, 20, 24, 28
sW, sTB, sQ, sTmp, sTmp2, sOff, sU, sW1024, sTT, sSpin = range(32, 42)
sFl = 44

def spin(b, idx_sreg, target, tag):
    b(f"s_cmp_lg_u32 s{sW}, 0")
    b(f"s_cbranch_scc1 L_f_go{tag}")
    b(f"s_lshl_b32 s{sTmp}, s{idx_sreg}, 7")
    b(f"s_add_u32 s{sTmp}, s{sTmp}, {WS_FLG}")
    b(f"v_mov_b32 v{vFl}, s{sTmp}")
    b(f"s_mov_b32 s{sSpin}, 0x4000")
    b.label(f"L_f_spin{tag}")
    b(f"global_load_dword v{vT0}, v{vFl}, s[{sWS}:{sWS+1}] sc1")
    b("s_waitcnt vmcnt(0)")
    b(f"v_readfirstlane_b32 s{sTmp}, v{vT0}")
    b("s_nop 3")
    b(f"s_cmp_ge_u32 s{sTmp}, {target}")
    b(f"s_cbranch_scc1 L_f_go{tag}")
    b("s_sleep 4")
    b(f"s_sub_u32 s{sSpin}, s{sSpin}, 1")
    b(f"s_cmp_lg_u32 s{sSpin}, 0")
    b(f"s_cbranch_scc1 L_f_spin{tag}")
    b.label(f"L_f_go{tag}")
    b("s_barrier")

def gen_f_role(flags=False, wgbits="s2", stampk=0):
    W = Waits()
    b = Blk()
    sc = " sc1" if flags else ""
    b(f"s_load_dwordx2 s[{sWS}:{sWS+1}], s[0:1], {KA_WS}")
    b(f"s_load_dwordx2 s[{sXp}:{sXp+1}], s[0:1], {KA_X}")
    b(f"s_load_dwordx2 s[{sOp}:{sOp+1}], s[0:1], {KA_OUT}")
    b(f"v_readfirstlane_b32 s{sW}, v0")
    b("v_and_b32 v0, 63, v0")
    b(f"s_lshr_b32 s{sW}, s{sW}, 6")
    b(f"s_and_b32 s{sTB}, s2, 7")
    b(f"s_bfe_u32 s{sTmp}, s2, 0x30005")
    b(f"s_lshl_b32 s{sTmp}, s{sTmp}, 3")
    b(f"s_add_u32 s{sTB}, s{sTB}, s{sTmp}")
    b(f"s_bfe_u32 s{sQ}, s2, 0x20003")
    b(f"s_mul_i32 s{sU}, s{sQ}, 9")
    b(f"s_lshl_b32 s{sW1024}, s{sW}, 10")
    b(f"s_and_b32 s{sTT}, s{sW}, 1")
    b(f"v_lshlrev_b32 v{vL16}, 4, v0")
    b(f"v_and_b32 v{vT0}, 15, v0")
    b(f"v_mul_u32_u24 v{vT0}, 288, v{vT0}")
    b(f"v_lshrrev_b32 v{vT1}, 4, v0")
    b(f"v_lshl_add_u32 v{vXr}, v{vT1}, 3, v{vT0}")
    b(f"v_add_u32 v{vXr}, {X_LDS}, v{vXr}")
    b("s_waitcnt lgkmcnt(0)")
    srd(b, sWO, sWS, SZ_WO, WS_WOF)
    srd(b, sOB, sWS, SZ_T, WS_O)
    srd(b, sPT, sWS, NSPLIT*SZ_T, WS_P)
    srd(b, sX, sXp, SZ_X)
    srd(b, sOut, sOp, SZ_X)
    b(f"s_mul_i32 s{sOff}, s{sTB}, {32*1152}")
    b(f"s_mul_i32 s{sTmp}, s{sQ}, 288")
    b(f"s_add_u32 s{sOff}, s{sOff}, s{sTmp}")
    def piece(dst, i):
        o = [f"s_add_u32 s{sTmp}, s{sW}, {4*i}", f"s_lshl_b32 s{sTmp}, s{sTmp}, 6",
             f"v_add_u32 v{vT0}, s{sTmp}, v0",
             f"v_mul_u32_u24 v{vT1}, 3641, v{vT0}", f"v_lshrrev_b32 v{vT1}, 16, v{vT1}",
             f"v_mul_u32_u24 v{vT1}, 864, v{vT1}",
             f"v_lshl_add_u32 v{dst}, v{vT0}, 4, v{vT1}"]
        if i == 2:
            o += [f"v_cmp_gt_u32 vcc, 576, v{vT0}", f"v_mov_b32 v{vT1}, 0x7f000000", "s_nop 0", f"v_cndmask_b32 v{dst}, v{vT1}, v{dst}, vcc"]
        return o
    for i in range(3):
        b.ext(piece(vXd, i))
        b(f"s_add_u32 m0, s{sW1024}, {X_LDS + i*4096}")
        b("s_nop 0")
        b(f"buffer_load_dwordx4 v{vXd}, s[{sX}:{sX+3}], s{sOff} offen lds ;#x")
    b(f"s_mul_i32 s{sOff}, s{sW}, 36")
    b(f"s_add_u32 s{sOff}, s{sOff}, s{sU}")
    b(f"s_add_u32 s{sOff}, s{sOff}, 8")
    b(f"s_lshl_b32 s{sOff}, s{sOff}, 10")
    for i in range(5):
        b(f"s_add_u32 m0, s{sW1024}, {A8_LDS + i*4096}")
        b("s_nop 0")
        b(f"buffer_load_dwordx4 v{vL16}, s[{sWO}:{sWO+3}], s{sOff} offen lds ;#x")
        b(f"s_add_u32 s{sOff}, s{sOff}, {4*36*1024}")
    b(f"s_lshl_b32 s{sOff}, s{sW}, 1")
    b(f"s_add_u32 s{sOff}, s{sOff}, s{sU}")
    b(f"s_lshl_b32 s{sOff}, s{sOff}, 10")
    for m in range(18):
        for e in range(2):
            r = vA + (2*m+e)*4
            b(f"buffer_load_dwordx4 v[{r}:{r+3}], v{vL16}, s[{sWO}:{sWO+3}], s{sOff} offen offset:{e*1024} ;#a{m}")
        b(f"s_add_u32 s{sOff}, s{sOff}, {36*1024}")
    b(W.wv("x")); b("s_barrier")
    b(f"s_lshl_b32 s{sTmp}, s{sW}, 6")
    b(f"v_add_u32 v{vT0}, s{sTmp}, v{vXr}")
    for e in range(2):
        for tt in range(2):
            r = vS + (e*2+tt)*2
            b(f"ds_read_b64 v[{r}:{r+1}], v{vT0} offset:{e*32 + tt*16*288}")
    b(f"s_mul_i32 s{sTmp}, s{sTT}, {16*288}")
    b(f"v_add_u32 v{vT1}, s{sTmp}, v{vXr}")
    b(f"ds_read_b64 v[{vS+8}:{vS+9}], v{vT1} offset:256")
    b("s_waitcnt lgkmcnt(0)")
    for i in range(10):
        b(f"v_lshlrev_b32 v{ACC+2*i}, 16, v{vS+i}")
        b(f"v_and_b32 v{ACC+2*i+1}, 0xffff0000, v{vS+i}")
    if flags:
        b(f"s_lshr_b32 s{sTmp2}, s{sTB}, 2"); b(f"s_lshl_b32 s{sTmp2}, s{sTmp2}, 1")
        b(f"s_lshr_b32 s{sTmp}, s{sQ}, 1"); b(f"s_add_u32 s{sTmp2}, s{sTmp2}, s{sTmp}"); b(f"s_add_u32 s{sTmp2}, s{sTmp2}, 64")
        b("s_waitcnt vmcnt(0)")
        spin(b, sTmp2, 8, "p")
    b(f"s_mul_i32 s{sOff}, s{sTB}, 36")
    b(f"s_add_u32 s{sOff}, s{sOff}, s{sU}")
    b(f"s_add_u32 s{sTmp2}, s{sOff}, 8")
    b(f"s_lshl_b32 s{sTmp2}, s{sTmp2}, 10")
    b(f"s_cmp_lt_u32 s{sW}, 2")
    b(f"s_cselect_b32 s{sTmp2}, s{sTmp2}, 0x70000000")
    b(f"s_lshl_b32 s{sTmp}, s{sW}, 1")
    b(f"s_add_u32 s{sOff}, s{sOff}, s{sTmp}")
    b(f"s_lshl_b32 s{sOff}, s{sOff}, 10")
    def p_load(s_):
        r = vS + (s_ % 3)*12
        return [f"buffer_load_dwordx4 v[{r}:{r+3}], v{vL16}, s[{sPT}:{sPT+3}], s{sOff} offen{sc} ;#p{s_}",
                f"buffer_load_dwordx4 v[{r+4}:{r+7}], v{vL16}, s[{sPT}:{sPT+3}], s{sOff} offen offset:1024{sc} ;#p{s_}",
                f"buffer_load_dwordx4 v[{r+8}:{r+11}], v{vL16}, s[{sPT}:{sPT+3}], s{sTmp2} offen{sc} ;#p{s_}",
                f"s_add_u32 s{sOff}, s{sOff}, {SZ_T}", f"s_add_u32 s{sTmp2}, s{sTmp2}, {SZ_T}"]
    def p_add(s_):
        r = vS + (s_ % 3)*12
        o = [W.wv(f"p{s_}")]
        for i in range(8):
            o += [f"v_lshlrev_b32 v{vT0}, 16, v{r+i}", f"v_and_b32 v{r+i}, 0xffff0000, v{r+i}",
                  f"v_add_f32 v{ACC+2*i}, v{ACC+2*i}, v{vT0}", f"v_add_f32 v{ACC+2*i+1}, v{ACC+2*i+1}, v{r+i}"]
        o += [f"v_cndmask_b32 v{r+8}, v{r+8}, v{r+10}, s[46:47]", f"v_cndmask_b32 v{r+9}, v{r+9}, v{r+11}, s[46:47]"]
        for i in range(2):
            o += [f"v_lshlrev_b32 v{vT0}, 16, v{r+8+i}", f"v_and_b32 v{r+8+i}, 0xffff0000, v{r+8+i}",
                  f"v_add_f32 v{ACC+16+2*i}, v{ACC+16+2*i}, v{vT0}", f"v_add_f32 v{ACC+17+2*i}, v{ACC+17+2*i}, v{r+8+i}"]
        return o
    b(f"s_cmp_lg_u32 s{sTT}, 0")
    b("s_cselect_b64 s[46:47], -1, 0")
    def o_dma():
        o = [f"s_mul_i32 s{sTmp}, s{sTB}, 36864", f"s_add_u32 s{sTmp}, s{sTmp}, s{sW1024}"]
        for i in range(9):
            o += [f"s_add_u32 m0, s{sW1024}, {O_LDS + i*4096}", "s_nop 0",
                  f"buffer_load_dwordx4 v{vL16}, s[{sOB}:{sOB+3}], s{sTmp} offen{sc} lds ;#o",
                  f"s_add_u32 s{sTmp}, s{sTmp}, 4096"]
        return o
    if not flags: b.ext(o_dma())
    for s_ in range(3): b.ext(p_load(s_))
    for s_ in range(NSPLIT):
        b.ext(p_add(s_))
        if s_ + 3 < NSPLIT: b.ext(p_load(s_ + 3))
    if flags:
        b(f"s_lshr_b32 s{sTmp2}, s{sTB}, 3")
        b(f"s_lshl_b32 s{sTmp2}, s{sTmp2}, 3")
        b(f"s_and_b32 s{sOff}, s2, 7")
        b(f"s_add_u32 s{sTmp2}, s{sTmp2}, s{sOff}")
        spin(b, sTmp2, 32, "o")
        b(f"s_mul_i32 s{sTmp}, s{sTB}, 36864"); b(f"s_add_u32 s{sTmp}, s{sTmp}, s{sW1024}")
        for i in range(9):
            b(f"buffer_load_dwordx4 v[{vS+4*i}:{vS+4*i+3}], v{vL16}, s[{sOB}:{sOB+3}], s{sTmp} offen sc1 ;#o{i}")
            b(f"s_add_u32 s{sTmp}, s{sTmp}, 4096")
        b(f"v_add_u32 v{vT0}, s{sW1024}, v{vL16}")
        for i in range(9):
            b(W.wv(f"o{i}"))
            b(f"ds_write_b128 v{vT0}, v[{vS+4*i}:{vS+4*i+3}] offset:{O_LDS + i*4096}")
        b("s_waitcnt lgkmcnt(0)"); b("s_barrier")
    else:
        b(W.wv("o")); b("s_barrier")
    def rdB(m):
        r = vB + (m % 3)*8
        return [f"ds_read_b128 v[{r}:{r+3}], v{vL16} offset:{O_LDS + m*2048}",
                f"ds_read_b128 v[{r+4}:{r+7}], v{vL16} offset:{O_LDS + m*2048 + 1024}"]
    def rdC(m):
        r = vC + (m % 3)*4
        return [f"ds_read_b128 v[{r}:{r+3}], v{vL16} offset:{A8_LDS + m*1024}"]
    for i in range(8): b(f"v_mov_b32 v{100+i}, 0")
    for m in range(2): b.ext(rdB(m)); b.ext(rdC(m))
    for m in range(18):
        rb = vB + (m % 3)*8; rc = vC + (m % 3)*4
        b(W.wv(f"a{m}"))
        b(W.wl(f"v[{rb}:{rb+7}]", f"v[{rc}:{rc+3}]"))
        for e in range(2):
            ra = vA + (2*m+e)*4
            for tt in range(2):
                a = ACC + e*8 + tt*4
                b(f"v_mfma_f32_16x16x32_bf16 v[{a}:{a+3}], v[{ra}:{ra+3}], v[{rb+4*tt}:{rb+4*tt+3}], v[{a}:{a+3}]")
        b(f"v_mfma_f32_16x16x32_bf16 v[100:103], v[{rc}:{rc+3}], v[{rb}:{rb+3}], v[100:103]")
        b(f"v_mfma_f32_16x16x32_bf16 v[104:107], v[{rc}:{rc+3}], v[{rb+4}:{rb+7}], v[104:107]")
        if m + 2 < 18: b.ext(rdB(m+2)); b.ext(rdC(m+2))
    b("s_nop 7")
    for i in range(4):
        b(f"v_cndmask_b32 v{100+i}, v{100+i}, v{104+i}, s[46:47]")
    for i in range(4): b(f"v_add_f32 v{ACC+16+i}, v{ACC+16+i}, v{100+i}")
    for i in range(10): b(f"v_cvt_pk_bf16_f32 v{vS+i}, v{ACC+2*i}, v{ACC+2*i+1}")
    b(f"s_lshl_b32 s{sTmp}, s{sW}, 6")
    b(f"v_add_u32 v{vT0}, s{sTmp}, v{vXr}")
    for e in range(2):
        for tt in range(2):
            r = vS + (e*2+tt)*2
            b(f"ds_write_b64 v{vT0}, v[{r}:{r+1}] offset:{e*32 + tt*16*288}")
    b(f"s_cmp_lt_u32 s{sW}, 2")
    b("s_cbranch_scc0 L_f_no9")
    n9 = [f"ds_write_b64 v{vT1}, v[{vS+8}:{vS+9}] offset:256"]
    pre9 = [f"s_mul_i32 s{sTmp}, s{sTT}, {16*288}", f"v_add_u32 v{vT1}, s{sTmp}, v{vXr}"]
    b.ext(pre9); b.ext(n9)
    b.label("L_f_no9")
    b("s_waitcnt lgkmcnt(0)"); b("s_barrier")
    b(f"s_mul_i32 s{sOff}, s{sTB}, {32*1152}")
    b(f"s_mul_i32 s{sTmp}, s{sQ}, 288")
    b(f"s_add_u32 s{sOff}, s{sOff}, s{sTmp}")
    for i in range(3):
        b.ext(piece(vXd, i))
        b(f"v_lshlrev_b32 v{vT0}, 4, v{vT0}")
        b(f"ds_read_b128 v[{vB+4*i}:{vB+4*i+3}], v{vT0} offset:{X_LDS}")
        b("s_waitcnt lgkmcnt(0)")
        b(f"buffer_store_dwordx4 v[{vB+4*i}:{vB+4*i+3}], v{vXd}, s[{sOut}:{sOut+3}], s{sOff} offen")
    ins = list(b.ins)
    lin = [x for x in ins if not x.startswith(("s_cbranch", "L_f_"))]
    W.simulate(lin)
    b.ins = W.resolve(ins)
    assert len(check([x for x in W.resolve(lin)], "frole")) == 0
    return b

def gen_k3(prof=False, outsc1=False, stamp=0):
    name = "final_kernel"
    b = Blk()
    b("s_cmp_ge_u32 s2, 256")
    b("s_cbranch_scc1 L_k3_end")
    if prof: prof_begin(b)
    b.ext(gen_f_role(False))
    if prof: prof_end(b, 4, 4)
    b.label("L_k3_end")
    b("s_endpgm")
    return name, kernel_text(name, b.text(), 256, 256, 100)
K3_LDS = F_LDS
if __name__ == "__main__":
    n, t = gen_k3()
    open("k3.s", "w").write('.amdgcn_target "amdgcn-amd-amdhsa--gfx950"\n' + t)
```

```python
from common import *
STG = 14336; NSLOT = 4; A_LDS = STG*NSLOT + 64
FLAG = STG*NSLOT
vL8, vL16, vKrd, vVrd, vKd0, vKd1, vVd, vIdx, vT0, vT1, vT2, vT3 = 1,2,3,4,5,6,7,8,9,10,11,12
vQoff = 13
SA, SB, OA, OB = 16, 32, 48, 64
QA0, QA1, QB0, QB1 = 80, 84, 88, 92
KB = [96, 104]
VB = [112, 120]
CA, CB = 128, 144
vMA, vMB = 160, 161
sWS = 4
sK, sV, sQ, sOo = 8, 12, 16, 20
sW, sHD, sQB, sVd, sSp, sCnt, sKoff, sVoff, sTmp, sTmp2, sMode, sTB, sC0, sMask = range(24, 38)
sExec = 40

OPT = set()
def rd_K(buf, b, slot):
    o = slot*STG
    assert o % 512 == 0
    u = o//512 + 3*b
    return [f"ds_read2st64_b64 v[{KB[buf]}:{KB[buf]+3}], v{vL8} offset0:{u} offset1:{u+1}",
            f"ds_read_b64 v[{KB[buf]+4}:{KB[buf]+5}], v{vL8} offset:{(u+2)*512}"]
def rd_V(buf, b, slot):
    o = slot*STG + 6144 + b*2048
    return [f"ds_read_b128 v[{VB[buf]}:{VB[buf]+3}], v{vL16} offset:{o}",
            f"ds_read_b128 v[{VB[buf]+4}:{VB[buf]+7}], v{vL16} offset:{o+1024}"]
def qk(S, Q0, Q1, kb, C):
    c = "0" if C is None else f"v[{C}:{C+15}]"
    return [f"v_mfma_f32_32x32x16_bf16 v[{S}:{S+15}], v[{kb}:{kb+3}], v[{Q0}:{Q0+3}], {c}",
            f"v_mfma_f32_32x32x16_bf16 v[{S}:{S+15}], v[{kb+4}:{kb+7}], v[{Q1}:{Q1+3}], v[{S}:{S+15}]" if "k8" not in OPT else
            f"v_mfma_f32_32x32x8bf16_1k v[{S}:{S+15}], v[{kb+4}:{kb+5}], v[{Q1}:{Q1+1}], v[{S}:{S+15}]"]
def pv(O, S, vb):
    return [f"v_smfmac_f32_32x32x32_bf16 v[{O}:{O+15}], v[{vb}:{vb+3}], v[{S}:{S+7}], v{vIdx}",
            f"v_smfmac_f32_32x32x32_bf16 v[{O}:{O+15}], v[{vb+4}:{vb+7}], v[{S+8}:{S+15}], v{vIdx}"]
def phase(SX, OY, SY, QY0, QY1, vb, kb, CY, pre=(), w_v=None, w_k=None):
    e = [f"v_exp_f32 v{SX+i}, v{SX+i}" for i in range(16)]
    p = pv(OY, SY, vb); q = qk(SY, QY0, QY1, kb, CY)
    out = []
    if w_v: out.append(w_v[0])
    out += [p[0]] + list(pre) + e[0:3]
    if w_v: out.append(w_v[1])
    out += [p[1]] + e[3:6]
    if w_k: out.append(w_k[0])
    out += [q[0]] + e[6:9]
    if w_k: out.append(w_k[1])
    out += [q[1]] + e[9:16]
    return out

def dma_stage(slot):
    b = Blk()
    b(f"s_add_u32 m0, s{sTmp2}, {slot*STG}")
    b(f"s_add_u32 s{sVoff}, s{sKoff}, s{sVd}")
    b(f"buffer_load_dwordx4 v{vKd0}, s[{sK}:{sK+3}], s{sKoff} offen lds ;#kv")
    b(f"s_add_u32 m0, s{sMask}, {slot*STG}")
    b(f"s_mov_b64 s[{sExec+2}:{sExec+3}], s[{sExec}:{sExec+1}]") if False else None
    b("s_nop 0")
    b(f"buffer_load_dwordx4 v{vKd1}, s[{sK}:{sK+3}], s{sKoff} offen lds ;#kv")
    b(f"s_add_u32 m0, s{sC0}, {slot*STG}")
    b(f"s_mov_b64 exec, s[{sExec}:{sExec+1}]")
    b(f"buffer_load_dwordx4 v{vVd}, s[{sV}:{sV+3}], s{sVoff} offen lds ;#kv")
    b(f"buffer_load_dwordx4 v{vVd}, s[{sV}:{sV+3}], s{sVoff} offen offset:1024 lds ;#kvl")
    b("s_mov_b64 exec, -1")
    b(f"s_add_u32 s{sKoff}, s{sKoff}, {4*36864}")
    return b.ins

import sys
LOOK = 2 if 'look2' in sys.argv else 3
def stage_body(W, safe, slot):
    CAx, CBx = (CA, CB) if safe else (None, None)
    o = [W.wv("kvl%d" % ((slot+1) % NSLOT)), "s_barrier"]
    dm = [x.replace(";#kvl", ";#kvl%d" % ((slot+LOOK) % NSLOT)) for x in dma_stage((slot+LOOK) % NSLOT)]
    i1 = next(i for i, x in enumerate(dm) if x.startswith("buffer_load")) + 1
    i2 = next(i for i, x in enumerate(dm) if x.startswith("buffer_load") and i >= i1) + 1
    parts = [dm[:i1], dm[i1:i2], dm[i2:], []] if "burst" not in OPT else [dm, [], [], []]
    for b in range(4):
        kb, kn = KB[b % 2], KB[(b+1) % 2]
        vb, vp = VB[b % 2], VB[(b+1) % 2]
        pre = rd_V(b % 2, b, slot)
        pre += rd_K((b+1) % 2, b+1, slot) if b < 3 else rd_K(0, 0, (slot+1) % NSLOT)
        ph1 = phase(SA, OB, SB, QB0, QB1, vp, kb, CBx, pre=pre)
        ph1 = ph1[:len(pre)+5] + parts[b] + ph1[len(pre)+5:]
        o += ph1
        wall = W.wl(f"v[{vb}:{vb+7}]", f"v[{kn}:{kn+5}]")
        ph2 = phase(SB, OA, SA, QA0, QA1, vb, kn, CAx)
        o += [wall] + ph2
    if "nods" in OPT: o = [x for x in o if not x.startswith("ds_read") and not x.startswith("@WL")]
    if "nodma" in OPT: o = [x for x in o if not x.startswith("buffer_load") and x != "s_barrier" and not x.startswith("@WV")]
    if "nobar" in OPT: o = [x for x in o if x != "s_barrier"]
    if "noload" in OPT: o = [x for x in o if not x.startswith("buffer_load")]
    if "noexp" in OPT: o = [x for x in o if not x.startswith("v_exp")]
    return o

def max_body(W, slot):
    o = ["s_waitcnt vmcnt(0)", "s_barrier"] + dma_stage((slot+LOOK) % NSLOT)
    for b in range(4):
        o += rd_K(0, b, slot) + ["s_waitcnt lgkmcnt(0)"]
        o += qk(SA, QA0, QA1, KB[0], None) + qk(SB, QB0, QB1, KB[0], None)
        o += ["s_nop 7", "s_nop 3"]
        for S, M in ((SA, vMA), (SB, vMB)):
            for i in range(8): o.append(f"v_max3_f32 v{M}, v{S+2*i}, v{S+2*i+1}, v{M}")
    return o

def stream_init():
    b = Blk()
    b(f"s_mul_i32 s{sKoff}, s{sHD}, 9")
    b(f"s_lshr_b32 s{sKoff}, s{sKoff}, 2")
    b(f"s_lshl_b32 s{sKoff}, s{sKoff}, 9")
    b(f"s_sub_u32 s{sVd}, 0, s{sKoff}")
    for st in range(LOOK): b.ext([x.replace(";#kvl", ";#kvl%d" % st) for x in dma_stage(st)])
    b(f"s_mov_b32 s{sCnt}, 4")
    return b.ins

def main_init(W, safe):
    b = Blk()
    for i in range(16): b(f"v_mov_b32 v{OA+i}, 0"); b(f"v_mov_b32 v{OB+i}, 0"); b(f"v_mov_b32 v{SB+i}, 0")
    for i in range(8): b(f"v_mov_b32 v{VB[1]+i}, 0")
    b(W.wv("kvl0"))
    b("s_barrier")
    b.ext(rd_K(0, 0, 0))
    b("s_waitcnt lgkmcnt(0)")
    b.ext(qk(SA, QA0, QA1, KB[0], CA if safe else None))
    b("s_nop 7"); b("s_nop 3")
    return b.ins

def gen_attn_role(prof=False):
    W = Waits()
    b = Blk()
    b(f"s_load_dwordx2 s[{sWS}:{sWS+1}], s[0:1], {KA_WS}")
    b(f"v_readfirstlane_b32 s{sW}, v0")
    b("v_and_b32 v0, 63, v0")
    b(f"s_lshr_b32 s{sW}, s{sW}, 6")
    b(f"s_and_b32 s{sHD}, s2, 7")
    b(f"s_lshr_b32 s{sTmp}, s2, 3")
    b(f"s_and_b32 s{sTmp}, s{sTmp}, 3")
    b(f"s_lshl_b32 s{sTmp}, s{sTmp}, 3")
    b(f"s_add_u32 s{sHD}, s{sHD}, s{sTmp}")
    b(f"s_lshr_b32 s{sQB}, s2, 5")
    b(f"s_and_b32 s{sQB}, s{sQB}, 7")
    b(f"s_lshl_b32 s{sTB}, s{sQB}, 3")
    b(f"s_lshl_b32 s{sTmp}, s{sW}, 1")
    b(f"s_add_u32 s{sTB}, s{sTB}, s{sTmp}")
    b(f"v_lshlrev_b32 v{vL8}, 3, v0")
    b(f"v_lshlrev_b32 v{vL16}, 4, v0")
    b(f"v_mov_b32 v{vIdx}, 0xdddddddd")
    def kpiece(dst, sj):
        b(f"s_lshl_b32 s{sTmp}, s{sj}, 10")
        b(f"v_add_u32 v{vT0}, s{sTmp}, v{vL16}")
        b(f"v_mul_u32_u24 v{vT1}, 43691, v{vT0}")
        b(f"v_lshrrev_b32 v{vT1}, 26, v{vT1}")
        b(f"v_mul_u32_u24 v{vT1}, {36864-1536}, v{vT1}")
        b(f"v_add_u32 v{dst}, v{vT0}, v{vT1}")
    kpiece(vKd0, sW)
    b(f"s_add_u32 s{sTmp2}, s{sW}, 4")
    b(f"s_cmp_lt_u32 s{sW}, 2")
    b(f"s_cselect_b32 s{sMask}, s{sTmp2}, s{sW}")
    kpiece(vKd1, sMask)
    b(f"s_lshl_b32 s{sMask}, s{sMask}, 10")
    b(f"s_mul_i32 s{sC0}, s{sHD}, 18")
    b(f"v_and_b32 v{vT0}, 31, v0")
    b(f"v_min_u32 v{vT0}, 17, v{vT0}")
    b(f"v_add_u32 v{vT0}, s{sC0}, v{vT0}")
    b(f"v_lshrrev_b32 v{vT1}, 5, v{vT0}")
    b(f"v_lshlrev_b32 v{vT1}, 11, v{vT1}")
    b(f"v_and_b32 v{vT0}, 31, v{vT0}")
    b(f"v_and_b32 v{vT2}, 32, v0")
    b(f"v_add_u32 v{vT0}, v{vT0}, v{vT2}")
    b(f"v_lshl_add_u32 v{vT0}, v{vT0}, 4, v{vT1}")
    b(f"s_mul_i32 s{sTmp}, s{sW}, 36864")
    b(f"v_add_u32 v{vVd}, s{sTmp}, v{vT0}")
    b(f"s_and_b32 s{sTmp}, s{sC0}, 7")
    b(f"v_lshrrev_b32 v{vT0}, 5, v0")
    b(f"v_lshlrev_b32 v{vT0}, 2, v{vT0}")
    b(f"v_subrev_u32 v{vT3}, s{sTmp}, v{vT0}")
    b(f"s_mov_b32 s{sExec}, 0x3ffff")
    b(f"s_mov_b32 s{sExec+1}, 0x3ffff")
    b("s_waitcnt lgkmcnt(0)")
    srd(b, sK, sWS, SZ_T, WS_K)
    srd(b, sV, sWS, SZ_T, WS_V)
    srd(b, sQ, sWS, SZ_T, WS_Q)
    srd(b, sOo, sWS, SZ_T, WS_O)
    b(f"s_mul_i32 s{sTmp}, s{sHD}, 9")
    b(f"s_lshr_b32 s{sTmp}, s{sTmp}, 2")
    b(f"s_lshl_b32 s{sTmp}, s{sTmp}, 9")
    b(f"s_mul_i32 s{sTmp2}, s{sTB}, 36864")
    b(f"s_add_u32 s{sTmp}, s{sTmp}, s{sTmp2}")
    for Q0, Q1 in ((QA0, QA1), (QB0, QB1)):
        b(f"buffer_load_dwordx2 v[{Q0}:{Q0+1}], v{vL8}, s[{sQ}:{sQ+3}], s{sTmp} offen")
        b(f"buffer_load_dwordx2 v[{Q0+2}:{Q0+3}], v{vL8}, s[{sQ}:{sQ+3}], s{sTmp} offen offset:512")
        b(f"buffer_load_dwordx2 v[{Q1}:{Q1+1}], v{vL8}, s[{sQ}:{sQ+3}], s{sTmp} offen offset:1024")
        b(f"s_add_u32 s{sTmp}, s{sTmp}, 36864")
    b(f"s_lshl_b32 s{sTmp2}, s{sW}, 10")
    b(f"s_lshl_b32 s{sC0}, s{sW}, 11")
    b(f"s_add_u32 s{sC0}, s{sC0}, 6144")
    b.ext(stream_init())
    b(f"v_and_b32 v{vT0}, 31, v0")
    b(f"v_cmp_eq_u32 vcc, 18, v{vT0}")
    b(f"v_mov_b32 v{vT1}, 0x3f803f80")
    b("s_nop 0")
    b(f"v_cndmask_b32 v16, 0, v{vT1}, vcc")
    b("v_mov_b32 v17, v16"); b("v_mov_b32 v18, v16"); b("v_mov_b32 v19, v16")
    b(f"s_mul_i32 s{sTmp}, s{sW}, 2048")
    b(f"v_add_u32 v{vT0}, s{sTmp}, v{vL16}")
    b(f"s_not_b64 exec, s[{sExec}:{sExec+1}]")
    for sl in range(NSLOT):
        for s_ in range(2):
            b(f"ds_write_b128 v{vT0}, v[16:19] offset:{sl*STG + 6144 + s_*1024}")
    b("s_mov_b64 exec, -1")
    b("v_mov_b32 v20, 0")
    b(f"v_mov_b32 v21, {FLAG}")
    b("ds_write_b32 v21, v20")
    for kb in KB: b(f"v_mov_b32 v{kb+6}, 0"); b(f"v_mov_b32 v{kb+7}, 0")
    b(f"s_waitcnt vmcnt({4*LOOK})")
    for Q0, Q1 in ((QA0, QA1), (QB0, QB1)):
        for k in range(6):
            G, jp = k//2, k % 2
            r = (Q0 + k) if k < 4 else (Q1 + k - 4)
            b(f"v_add_u32 v{vT0}, {8*G + 2*jp}, v{vT3}")
            b(f"v_cmp_gt_u32 vcc, 18, v{vT0}")
            b("s_nop 1")
            b(f"v_cndmask_b32 v{r}, 0, v{r}, vcc")
        b(f"v_mov_b32 v{Q1+2}, 0"); b(f"v_mov_b32 v{Q1+3}, 0")
    b("s_waitcnt lgkmcnt(0)")
    b(f"s_mov_b32 s{sMode}, 0")
    pro = list(b.ins)
    ini = main_init(W, False); body = sum((stage_body(W, False, sl) for sl in range(NSLOT)), [])
    loop_tail = [f"s_sub_u32 s{sCnt}, s{sCnt}, 1", f"s_cmp_lg_u32 s{sCnt}, 0"]
    inis = main_init(W, True); bodys = sum((stage_body(W, True, sl) for sl in range(NSLOT)), [])
    mx = sum((max_body(W, sl) for sl in range(NSLOT)), [])
    fin = Blk()
    fin("s_nop 1")
    fin.ext(pv(OB, SB, VB[1]))
    fin("s_waitcnt vmcnt(0) lgkmcnt(0)")
    fin("s_nop 7"); fin("s_nop 3")
    for O, t in ((OA, vT0), (OB, vT1)):
        fin(f"v_mov_b32 v{t}, v{O+10}")
        fin(f"v_mov_b32 v{vT2}, v{O+10}")
        fin("s_nop 1")
        fin(f"v_permlane32_swap_b32 v{t}, v{vT2}")
    chk = Blk()
    chk(f"v_mov_b32 v{vT2}, 0")
    for O in (OA, OB):
        for i in range(10): chk(f"v_fmac_f32 v{vT2}, 0, v{O+i}")
    chk(f"v_cmp_u_f32 vcc, v{vT2}, v{vT2}")
    chk("s_nop 0")
    chk(f"s_mov_b64 s[{sExec+2}:{sExec+3}], vcc")
    for t in (vT0, vT1):
        chk(f"v_cmp_nle_f32 vcc, {f32hex(2.0**-80)}, v{t}")
        chk("s_nop 0")
        chk(f"s_or_b64 s[{sExec+2}:{sExec+3}], s[{sExec+2}:{sExec+3}], vcc")
        chk(f"v_cmp_nge_f32 vcc, {f32hex(2.0**100)}, v{t}")
        chk("s_nop 0")
        chk(f"s_or_b64 s[{sExec+2}:{sExec+3}], s[{sExec+2}:{sExec+3}], vcc")
    chk(f"s_cmp_lg_u64 s[{sExec+2}:{sExec+3}], 0")
    chk(f"s_cselect_b32 s{sTmp}, 1, 0")
    chk(f"v_mov_b32 v20, s{sTmp}")
    chk(f"v_mov_b32 v21, {FLAG}")
    chk("ds_or_b32 v21, v20")
    chk2 = Blk()
    chk, chk_a = chk2, chk
    chk("s_waitcnt lgkmcnt(0)")
    chk("s_barrier")
    chk("ds_read_b32 v20, v21")
    chk("s_waitcnt lgkmcnt(0)")
    chk(f"v_readfirstlane_b32 s{sTmp}, v20")
    chk("s_nop 3")
    chk(f"s_cmp_lg_u32 s{sTmp}, 0")
    out = Blk()
    for (O, t, k) in ((OA, vT0, 0), (OB, vT1, 1)):
        out(f"v_rcp_f32 v{t}, v{t}")
        out("s_nop 0")
        for i in range(10): out(f"v_mul_f32 v{O+i}, v{O+i}, v{t}")
        for i in range(5): out(f"v_cvt_pk_bf16_f32 v{SA+8*k+i}, v{O+2*i}, v{O+2*i+1}")
    if "f16" in OPT:
        out(f"v_bfe_u32 v{vT0}, v0, 4, 1"); out(f"v_lshlrev_b32 v{vT0}, 10, v{vT0}")
        out(f"v_lshrrev_b32 v{vT1}, 5, v0"); out(f"v_lshl_add_u32 v{vT2}, v{vT1}, 8, v{vT0}")
        out(f"v_and_b32 v{vT1}, 15, v0"); out(f"v_lshl_add_u32 v{vT2}, v{vT1}, 4, v{vT2}")
        out(f"v_lshl_add_u32 v{vT0}, v{vT1}, 4, v{vT0}")
        out(f"s_mul_i32 s{sTmp}, s{sTB}, 18")
        out(f"s_lshr_b32 s{sTmp2}, s{sHD}, 1")
        out(f"s_add_u32 s{sTmp}, s{sTmp}, s{sTmp2}")
        out(f"s_lshl_b32 s{sTmp}, s{sTmp}, 11")
        out(f"s_and_b32 s{sTmp2}, s{sHD}, 1")
        out(f"s_lshl_b32 s{sTmp2}, s{sTmp2}, 9")
        out(f"s_add_u32 s{sTmp}, s{sTmp}, s{sTmp2}")
        out(f"buffer_store_dwordx4 v[{SA}:{SA+3}], v{vT2}, s[{sOo}:{sOo+3}], s{sTmp} offen sc1")
        out(f"s_add_u32 s{sTmp2}, s{sTmp}, 36864")
        out(f"buffer_store_dwordx4 v[{SA+8}:{SA+11}], v{vT2}, s[{sOo}:{sOo+3}], s{sTmp2} offen sc1")
        out(f"s_mul_i32 s{sTmp}, s{sTB}, 18")
        out(f"s_lshr_b32 s{sTmp2}, s{sHD}, 4")
        out(f"s_add_u32 s{sTmp}, s{sTmp}, s{sTmp2}")
        out(f"s_add_u32 s{sTmp}, s{sTmp}, 16")
        out(f"s_lshl_b32 s{sTmp}, s{sTmp}, 11")
        out(f"s_bfe_u32 s{sTmp2}, s{sHD}, 0x20002")
        out(f"s_lshl_b32 s{sTmp2}, s{sTmp2}, 8")
        out(f"s_add_u32 s{sTmp}, s{sTmp}, s{sTmp2}")
        out(f"s_and_b32 s{sTmp2}, s{sHD}, 3")
        out(f"s_lshl_b32 s{sTmp2}, s{sTmp2}, 2")
        out(f"s_add_u32 s{sTmp}, s{sTmp}, s{sTmp2}")
        out("s_mov_b32 exec_hi, 0")
        out(f"buffer_store_dword v{SA+4}, v{vT0}, s[{sOo}:{sOo+3}], s{sTmp} offen sc1")
        out(f"s_add_u32 s{sTmp}, s{sTmp}, 36864")
        out(f"buffer_store_dword v{SA+12}, v{vT0}, s[{sOo}:{sOo+3}], s{sTmp} offen sc1")
        out("s_mov_b64 exec, -1")
    else:
        out(f"s_mul_i32 s{sTmp}, s{sTB}, 36")
        out(f"s_add_u32 s{sTmp}, s{sTmp}, s{sHD}")
        out(f"s_lshl_b32 s{sTmp}, s{sTmp}, 10")
        out(f"buffer_store_dwordx4 v[{SA}:{SA+3}], v{vL16}, s[{sOo}:{sOo+3}], s{sTmp} offen sc1")
        out(f"s_add_u32 s{sTmp2}, s{sTmp}, 36864")
        out(f"buffer_store_dwordx4 v[{SA+8}:{SA+11}], v{vL16}, s[{sOo}:{sOo+3}], s{sTmp2} offen sc1")
        out(f"s_mul_i32 s{sTmp}, s{sTB}, 36")
        out(f"s_lshr_b32 s{sTmp2}, s{sHD}, 3")
        out(f"s_add_u32 s{sTmp}, s{sTmp}, s{sTmp2}")
        out(f"s_add_u32 s{sTmp}, s{sTmp}, 32")
        out(f"s_lshl_b32 s{sTmp}, s{sTmp}, 10")
        out(f"s_bfe_u32 s{sTmp2}, s{sHD}, 0x10002")
        out(f"s_lshl_b32 s{sTmp2}, s{sTmp2}, 9")
        out(f"s_add_u32 s{sTmp}, s{sTmp}, s{sTmp2}")
        out(f"s_and_b32 s{sTmp2}, s{sHD}, 3")
        out(f"s_lshl_b32 s{sTmp2}, s{sTmp2}, 2")
        out(f"s_add_u32 s{sTmp}, s{sTmp}, s{sTmp2}")
        out("s_mov_b32 exec_hi, 0")
        out(f"buffer_store_dword v{SA+4}, v{vL16}, s[{sOo}:{sOo+3}], s{sTmp} offen")
        out(f"s_add_u32 s{sTmp}, s{sTmp}, 36864")
        out(f"buffer_store_dword v{SA+12}, v{vL16}, s[{sOo}:{sOo+3}], s{sTmp} offen")
        out("s_mov_b64 exec, -1")
    mxi = Blk()
    mxi(f"v_mov_b32 v{vMA}, 0xff7fffff"); mxi(f"v_mov_b32 v{vMB}, 0xff7fffff")
    mxi("s_waitcnt vmcnt(0)"); mxi("s_barrier")
    mxe = Blk()
    for M, C in ((vMA, CA), (vMB, CB)):
        mxe(f"v_mov_b32 v{vT2}, v{M}")
        mxe("s_nop 1")
        mxe(f"v_permlane32_swap_b32 v{M}, v{vT2}")
        mxe("s_nop 0")
        mxe(f"v_max_f32 v{M}, v{M}, v{vT2}")
        for i in range(16): mxe(f"v_sub_f32 v{C+i}, 0, v{M}")
    mxe("s_waitcnt vmcnt(0)"); mxe("s_barrier")
    t_fast = pro + ini + body + loop_tail + body + loop_tail + body + fin.ins + chk_a.ins + out.ins + chk.ins
    t_safe = pro + ini + body + fin.ins + chk_a.ins + out.ins + chk.ins + stream_init() + mxi.ins + mx + mx + mxe.ins + stream_init() + inis + bodys + bodys + fin.ins + out.ins
    for tr in (t_fast, t_safe): W.simulate(tr)
    R = W.resolve
    bad = len(check(R(t_fast), "attn_fast")) + len(check(R(t_safe), "attn_safe"))
    assert bad == 0 or (OPT - {'k8','f16','flags','al'})
    o = Blk(); o.ext(R(pro)); o.ext(R(ini))
    if "stamp" in OPT: o("s_memtime s[76:77]"); o("s_waitcnt lgkmcnt(0)")
    if "al" in OPT: o(".p2align 6")
    o.label("L_at_loop"); o.ext(R(body)); o.ext(loop_tail); o("s_cbranch_scc1 L_at_loop")
    if "stamp" in OPT:
        o("s_memtime s[78:79]"); o("s_waitcnt lgkmcnt(0)"); o("s_sub_u32 s98, s78, s76")
        o("s_sub_u32 s99, s76, s90")
    o.ext(fin); o.ext(chk_a); o.ext(out); o.ext(chk)
    if "nosafe" in OPT: o("s_branch L_at_out")
    o("s_cbranch_scc0 L_at_out")
    o("s_waitcnt vmcnt(0)"); o("s_barrier")
    o(f"s_lshl_b32 s{sTmp2}, s{sW}, 10")
    o.ext(stream_init()); o.ext(mxi)
    o.label("L_at_mx"); o.ext(mx); o.ext(loop_tail); o("s_cbranch_scc1 L_at_mx")
    o.ext(mxe)
    o.ext(stream_init()); o.ext(R(inis))
    o.label("L_at_loop2"); o.ext(R(bodys)); o.ext(loop_tail); o("s_cbranch_scc1 L_at_loop2")
    o.ext(fin)
    o.ext(out)
    o.label("L_at_out")
    if "flags" in OPT: signal(o, sWS, [f"s_lshl_b32 s{sTmp}, s{sQB}, 3"], sTmp, sW, vT0, "a", 8)
    return o

def gen_attn_kernel(prof=False, opts=()):
    OPT.clear(); OPT.update(opts)
    name = "attn_kernel"
    b = Blk()
    b("s_cmp_ge_u32 s2, 256")
    b("s_cbranch_scc1 L_at_end")
    if prof:
        prof_begin(b)
    b.ext(gen_attn_role())
    if prof: prof_end(b, 2, 4)
    b.label("L_at_end")
    b("s_endpgm")
    return name, kernel_text(name, b.text(), 256, 256, 100)
if __name__ == "__main__":
    n, t = gen_attn_kernel()
    open("k2a.s", "w").write('.amdgcn_target "amdgcn-amd-amdhsa--gfx950"\n' + t)
```

```python
from common import *
import sys
def fstamp(b, k):
    if f'fs{k}' in sys.argv: b('s_memrealtime s[76:77]'); b('s_waitcnt lgkmcnt(0)'); b('s_mov_b32 s98, s76')
O_LDS = 0
A8_LDS = 36*1024
X_LDS = A8_LDS + 20*1024
F_LDS = X_LDS + 12*1024
vL16, vXr, vXd, vT0, vT1 = 1, 2, 3, 4, 5
vFl = 6
NPRE_F = 6
ACC = 8
vS = 28
vB = 64
vC = 88
vA = 112
sWS, sXp, sOp, sDb = 4, 8, 10, 6
sWO, sOB, sPT, sX, sOut = 12, 16, 20, 24, 28
sW, sTB, sQ, sTmp, sTmp2, sOff, sU, sW1024, sTT, sSpin = range(32, 42)
sFl = 44

def spin(b, idx_sreg, target, tag):
    b(f"s_cmp_lg_u32 s{sW}, 0")
    b(f"s_cbranch_scc1 L_f_go{tag}")
    b(f"s_lshl_b32 s{sTmp}, s{idx_sreg}, 7")
    b(f"s_add_u32 s{sTmp}, s{sTmp}, {WS_FLG}")
    b(f"v_mov_b32 v{vFl}, s{sTmp}")
    b(f"s_mov_b32 s{sSpin}, 0x4000")
    b.label(f"L_f_spin{tag}")
    b(f"global_load_dword v{vT0}, v{vFl}, s[{sWS}:{sWS+1}] sc1")
    b("s_waitcnt vmcnt(0)")
    b(f"v_readfirstlane_b32 s{sTmp}, v{vT0}")
    b("s_nop 3")
    b(f"s_cmp_ge_u32 s{sTmp}, {target}")
    b(f"s_cbranch_scc1 L_f_go{tag}")
    b("s_sleep 4")
    b(f"s_sub_u32 s{sSpin}, s{sSpin}, 1")
    b(f"s_cmp_lg_u32 s{sSpin}, 0")
    b(f"s_cbranch_scc1 L_f_spin{tag}")
    b.label(f"L_f_go{tag}")
    b("s_barrier")

def gen_f_role(flags=False, wgbits="s2", stampk=0):
    global NPRE_F
    for a_ in sys.argv:
        if a_.startswith('npre'): NPRE_F = int(a_[4:])
    W = Waits()
    b = Blk()
    sc = " sc1" if flags else ""
    b(f"s_load_dwordx2 s[{sWS}:{sWS+1}], s[0:1], {KA_WS}")
    b(f"s_load_dwordx2 s[{sXp}:{sXp+1}], s[0:1], {KA_X}")
    b(f"s_load_dwordx2 s[{sOp}:{sOp+1}], s[0:1], {KA_OUT}")
    b(f"v_readfirstlane_b32 s{sW}, v0")
    b("v_and_b32 v0, 63, v0")
    b(f"s_lshr_b32 s{sW}, s{sW}, 6")
    b(f"s_and_b32 s{sTB}, s2, 7")
    b(f"s_bfe_u32 s{sTmp}, s2, 0x30005")
    b(f"s_lshl_b32 s{sTmp}, s{sTmp}, 3")
    b(f"s_add_u32 s{sTB}, s{sTB}, s{sTmp}")
    b(f"s_bfe_u32 s{sQ}, s2, 0x20003")
    b(f"s_mul_i32 s{sU}, s{sQ}, 9")
    b(f"s_lshl_b32 s{sW1024}, s{sW}, 10")
    b(f"s_and_b32 s{sTT}, s{sW}, 1")
    b(f"v_lshlrev_b32 v{vL16}, 4, v0")
    b(f"v_and_b32 v{vT0}, 15, v0")
    b(f"v_mul_u32_u24 v{vT0}, 288, v{vT0}")
    b(f"v_lshrrev_b32 v{vT1}, 4, v0")
    b(f"v_lshl_add_u32 v{vXr}, v{vT1}, 3, v{vT0}")
    b(f"v_add_u32 v{vXr}, {X_LDS}, v{vXr}")
    b("s_waitcnt lgkmcnt(0)")
    srd(b, sWO, sWS, SZ_WO, WS_WOF)
    srd(b, sOB, sWS, SZ_T, WS_O)
    srd(b, sPT, sWS, NSPLIT*SZ_T, WS_P)
    srd(b, sX, sXp, SZ_X)
    srd(b, sOut, sOp, SZ_X)
    b(f"s_mul_i32 s{sOff}, s{sTB}, {32*1152}")
    b(f"s_mul_i32 s{sTmp}, s{sQ}, 288")
    b(f"s_add_u32 s{sOff}, s{sOff}, s{sTmp}")
    def piece(dst, i):
        o = [f"s_add_u32 s{sTmp}, s{sW}, {4*i}", f"s_lshl_b32 s{sTmp}, s{sTmp}, 6",
             f"v_add_u32 v{vT0}, s{sTmp}, v0",
             f"v_mul_u32_u24 v{vT1}, 3641, v{vT0}", f"v_lshrrev_b32 v{vT1}, 16, v{vT1}",
             f"v_mul_u32_u24 v{vT1}, 864, v{vT1}",
             f"v_lshl_add_u32 v{dst}, v{vT0}, 4, v{vT1}"]
        if i == 2:
            o += [f"v_cmp_gt_u32 vcc, 576, v{vT0}", f"v_mov_b32 v{vT1}, 0x7f000000", "s_nop 0", f"v_cndmask_b32 v{dst}, v{vT1}, v{dst}, vcc"]
        return o
    for i in range(3):
        b.ext(piece(vXd, i))
        b(f"s_add_u32 m0, s{sW1024}, {X_LDS + i*4096}")
        b("s_nop 0")
        b(f"buffer_load_dwordx4 v{vXd}, s[{sX}:{sX+3}], s{sOff} offen lds ;#x")
    b(f"s_mul_i32 s{sOff}, s{sW}, 36")
    b(f"s_add_u32 s{sOff}, s{sOff}, s{sU}")
    b(f"s_add_u32 s{sOff}, s{sOff}, 8")
    b(f"s_lshl_b32 s{sOff}, s{sOff}, 10")
    for i in range(5):
        b(f"s_add_u32 m0, s{sW1024}, {A8_LDS + i*4096}")
        b("s_nop 0")
        b(f"buffer_load_dwordx4 v{vL16}, s[{sWO}:{sWO+3}], s{sOff} offen lds ;#x")
        b(f"s_add_u32 s{sOff}, s{sOff}, {4*36*1024}")
    b(f"s_lshl_b32 s{sOff}, s{sW}, 1")
    b(f"s_add_u32 s{sOff}, s{sOff}, s{sU}")
    b(f"s_lshl_b32 s{sOff}, s{sOff}, 10")
    sAo = 42
    b(f"s_mov_b32 s{sAo}, s{sOff}")
    def a_load(m):
        o = []
        for e in range(2):
            r = vA + (2*m+e)*4
            o.append(f"buffer_load_dwordx4 v[{r}:{r+3}], v{vL16}, s[{sWO}:{sWO+3}], s{sAo} offen offset:{e*1024} ;#a{m}")
        o.append(f"s_add_u32 s{sAo}, s{sAo}, {36*1024}")
        return o
    NPRE = 18 if not flags else NPRE_F
    for m in range(NPRE): b.ext(a_load(m))
    b(W.wv("x")); b("s_barrier")
    b(f"s_lshl_b32 s{sTmp}, s{sW}, 6")
    b(f"v_add_u32 v{vT0}, s{sTmp}, v{vXr}")
    for e in range(2):
        for tt in range(2):
            r = vS + (e*2+tt)*2
            b(f"ds_read_b64 v[{r}:{r+1}], v{vT0} offset:{e*32 + tt*16*288}")
    b(f"s_mul_i32 s{sTmp}, s{sTT}, {16*288}")
    b(f"v_add_u32 v{vT1}, s{sTmp}, v{vXr}")
    b(f"ds_read_b64 v[{vS+8}:{vS+9}], v{vT1} offset:256")
    b("s_waitcnt lgkmcnt(0)")
    for i in range(10):
        b(f"v_lshlrev_b32 v{ACC+2*i}, 16, v{vS+i}")
        b(f"v_and_b32 v{ACC+2*i+1}, 0xffff0000, v{vS+i}")
    if flags:
        b(f"s_lshr_b32 s{sTmp2}, s{sTB}, 2"); b(f"s_lshl_b32 s{sTmp2}, s{sTmp2}, 1")
        b(f"s_lshr_b32 s{sTmp}, s{sQ}, 1"); b(f"s_add_u32 s{sTmp2}, s{sTmp2}, s{sTmp}"); b(f"s_add_u32 s{sTmp2}, s{sTmp2}, 64")
        fstamp(b, 0)
        spin(b, sTmp2, 8, "p")
        fstamp(b, 1)
    b(f"s_mul_i32 s{sOff}, s{sTB}, 36")
    b(f"s_add_u32 s{sOff}, s{sOff}, s{sU}")
    b(f"s_add_u32 s{sTmp2}, s{sOff}, 8")
    b(f"s_lshl_b32 s{sTmp2}, s{sTmp2}, 10")
    b(f"s_cmp_lt_u32 s{sW}, 2")
    b(f"s_cselect_b32 s{sTmp2}, s{sTmp2}, 0x70000000")
    b(f"s_lshl_b32 s{sTmp}, s{sW}, 1")
    b(f"s_add_u32 s{sOff}, s{sOff}, s{sTmp}")
    b(f"s_lshl_b32 s{sOff}, s{sOff}, 10")
    def p_load(s_):
        r = vS + (s_ % 3)*12
        return [f"buffer_load_dwordx4 v[{r}:{r+3}], v{vL16}, s[{sPT}:{sPT+3}], s{sOff} offen{sc} ;#p{s_}",
                f"buffer_load_dwordx4 v[{r+4}:{r+7}], v{vL16}, s[{sPT}:{sPT+3}], s{sOff} offen offset:1024{sc} ;#p{s_}",
                f"buffer_load_dwordx4 v[{r+8}:{r+11}], v{vL16}, s[{sPT}:{sPT+3}], s{sTmp2} offen{sc} ;#p{s_}",
                f"s_add_u32 s{sOff}, s{sOff}, {SZ_T}", f"s_add_u32 s{sTmp2}, s{sTmp2}, {SZ_T}"]
    def p_add(s_):
        r = vS + (s_ % 3)*12
        o = [W.wv(f"p{s_}")]
        for i in range(8):
            o += [f"v_lshlrev_b32 v{vT0}, 16, v{r+i}", f"v_and_b32 v{r+i}, 0xffff0000, v{r+i}",
                  f"v_add_f32 v{ACC+2*i}, v{ACC+2*i}, v{vT0}", f"v_add_f32 v{ACC+2*i+1}, v{ACC+2*i+1}, v{r+i}"]
        o += [f"v_cndmask_b32 v{r+8}, v{r+8}, v{r+10}, s[46:47]", f"v_cndmask_b32 v{r+9}, v{r+9}, v{r+11}, s[46:47]"]
        for i in range(2):
            o += [f"v_lshlrev_b32 v{vT0}, 16, v{r+8+i}", f"v_and_b32 v{r+8+i}, 0xffff0000, v{r+8+i}",
                  f"v_add_f32 v{ACC+16+2*i}, v{ACC+16+2*i}, v{vT0}", f"v_add_f32 v{ACC+17+2*i}, v{ACC+17+2*i}, v{r+8+i}"]
        return o
    b(f"s_cmp_lg_u32 s{sTT}, 0")
    b("s_cselect_b64 s[46:47], -1, 0")
    def o_dma():
        o = [f"s_mul_i32 s{sTmp}, s{sTB}, 36864", f"s_add_u32 s{sTmp}, s{sTmp}, s{sW1024}"]
        for i in range(9):
            o += [f"s_add_u32 m0, s{sW1024}, {O_LDS + i*4096}", "s_nop 0",
                  f"buffer_load_dwordx4 v{vL16}, s[{sOB}:{sOB+3}], s{sTmp} offen{sc} lds ;#o",
                  f"s_add_u32 s{sTmp}, s{sTmp}, 4096"]
        return o
    if not flags: b.ext(o_dma())
    for s_ in range(3): b.ext(p_load(s_))
    rest_a = list(range(NPRE, 18))
    for s_ in range(NSPLIT):
        b.ext(p_add(s_))
        if s_ + 3 < NSPLIT: b.ext(p_load(s_ + 3))
        elif rest_a:
            k = (len(rest_a) + (NSPLIT - 1 - s_)) // (NSPLIT - s_)
            for m in rest_a[:k]: b.ext(a_load(m))
            rest_a = rest_a[k:]
    assert not rest_a
    if flags:
        b(f"s_lshr_b32 s{sTmp2}, s{sTB}, 3")
        b(f"s_lshl_b32 s{sTmp2}, s{sTmp2}, 3")
        b(f"s_and_b32 s{sOff}, s2, 7")
        b(f"s_add_u32 s{sTmp2}, s{sTmp2}, s{sOff}")
        fstamp(b, 2)
        spin(b, sTmp2, 32, "o")
        fstamp(b, 3)
        b(f"s_mul_i32 s{sTmp}, s{sTB}, 36864"); b(f"s_add_u32 s{sTmp}, s{sTmp}, s{sW1024}")
        for i in range(9):
            b(f"buffer_load_dwordx4 v[{vS+4*i}:{vS+4*i+3}], v{vL16}, s[{sOB}:{sOB+3}], s{sTmp} offen sc1 ;#o{i}")
            b(f"s_add_u32 s{sTmp}, s{sTmp}, 4096")
        b(f"v_add_u32 v{vT0}, s{sW1024}, v{vL16}")
        for i in range(9):
            b(W.wv(f"o{i}"))
            b(f"ds_write_b128 v{vT0}, v[{vS+4*i}:{vS+4*i+3}] offset:{O_LDS + i*4096}")
        b("s_waitcnt lgkmcnt(0)"); b("s_barrier")
    else:
        b(W.wv("o")); b("s_barrier")
    fstamp(b, 4)
    def rdB(m):
        r = vB + (m % 3)*8
        return [f"ds_read_b128 v[{r}:{r+3}], v{vL16} offset:{O_LDS + m*2048}",
                f"ds_read_b128 v[{r+4}:{r+7}], v{vL16} offset:{O_LDS + m*2048 + 1024}"]
    def rdC(m):
        r = vC + (m % 3)*8
        return [f"ds_read_b128 v[{r}:{r+3}], v{vL16} offset:{A8_LDS + m*1024}",
                f"ds_read_b128 v[{r+4}:{r+7}], v{vFl} offset:{O_LDS + m*2048}"]
    b(f"s_lshl_b32 s{sTmp}, s{sTT}, 10")
    b(f"v_add_u32 v{vFl}, s{sTmp}, v{vL16}")
    for m in range(2): b.ext(rdB(m)); b.ext(rdC(m))
    for m in range(18):
        rb = vB + (m % 3)*8; rc = vC + (m % 3)*8
        b(W.wv(f"a{m}"))
        b(W.wl(f"v[{rb}:{rb+7}]", f"v[{rc}:{rc+7}]"))
        for e in range(2):
            ra = vA + (2*m+e)*4
            for tt in range(2):
                a = ACC + e*8 + tt*4
                b(f"v_mfma_f32_16x16x32_bf16 v[{a}:{a+3}], v[{ra}:{ra+3}], v[{rb+4*tt}:{rb+4*tt+3}], v[{a}:{a+3}]")
        b(f"v_mfma_f32_16x16x32_bf16 v[{ACC+16}:{ACC+19}], v[{rc}:{rc+3}], v[{rc+4}:{rc+7}], v[{ACC+16}:{ACC+19}]")
        if m + 2 < 18: b.ext(rdB(m+2)); b.ext(rdC(m+2))
    b("s_nop 7")
    fstamp(b, 5)
    for i in range(10): b(f"v_cvt_pk_bf16_f32 v{vS+i}, v{ACC+2*i}, v{ACC+2*i+1}")
    b(f"s_lshl_b32 s{sTmp}, s{sW}, 6")
    b(f"v_add_u32 v{vT0}, s{sTmp}, v{vXr}")
    for e in range(2):
        for tt in range(2):
            r = vS + (e*2+tt)*2
            b(f"ds_write_b64 v{vT0}, v[{r}:{r+1}] offset:{e*32 + tt*16*288}")
    b(f"s_cmp_lt_u32 s{sW}, 2")
    b("s_cbranch_scc0 L_f_no9")
    n9 = [f"ds_write_b64 v{vT1}, v[{vS+8}:{vS+9}] offset:256"]
    pre9 = [f"s_mul_i32 s{sTmp}, s{sTT}, {16*288}", f"v_add_u32 v{vT1}, s{sTmp}, v{vXr}"]
    b.ext(pre9); b.ext(n9)
    b.label("L_f_no9")
    b("s_waitcnt lgkmcnt(0)"); b("s_barrier")
    b(f"s_mul_i32 s{sOff}, s{sTB}, {32*1152}")
    b(f"s_mul_i32 s{sTmp}, s{sQ}, 288")
    b(f"s_add_u32 s{sOff}, s{sOff}, s{sTmp}")
    for i in range(3):
        b.ext(piece(vXd, i))
        b(f"v_lshlrev_b32 v{vT0}, 4, v{vT0}")
        b(f"ds_read_b128 v[{vB+4*i}:{vB+4*i+3}], v{vT0} offset:{X_LDS}")
        b("s_waitcnt lgkmcnt(0)")
        b(f"buffer_store_dwordx4 v[{vB+4*i}:{vB+4*i+3}], v{vXd}, s[{sOut}:{sOut+3}], s{sOff} offen")
    ins = list(b.ins)
    lin = []; skip = False
    for x in ins:
        if x.startswith("L_f_spin"): skip = True
        if x.startswith("L_f_go"): skip = False
        if skip or x.startswith(("s_cbranch", "L_f_")): continue
        lin.append(x)
    W.simulate(lin)
    b.ins = W.resolve(ins)
    assert len(check([x for x in W.resolve(lin)], "frole")) == 0
    return b

def gen_k3(prof=False, outsc1=False, stamp=0):
    name = "final_kernel"
    b = Blk()
    b("s_cmp_ge_u32 s2, 256")
    b("s_cbranch_scc1 L_k3_end")
    if prof: prof_begin(b)
    b.ext(gen_f_role(False))
    if prof: prof_end(b, 4, 4)
    b.label("L_k3_end")
    b("s_endpgm")
    return name, kernel_text(name, b.text(), 256, 256, 100)
K3_LDS = F_LDS
if __name__ == "__main__":
    n, t = gen_k3()
    open("k3.s", "w").write('.amdgcn_target "amdgcn-amd-amdhsa--gfx950"\n' + t)
```

```python
from common import *
K0_LDS = 8192
M16 = False
CODEPF = False
F16 = False
FLG = False
PF3 = False
def wof32_begin(b):
    b("s_lshl_b32 s35, s2, 2")
    b("s_add_u32 s35, s35, s34")
    b("s_mul_i32 s40, s35, 3641")
    b("s_lshr_b32 s40, s40, 16")
    b("s_mul_i32 s41, s40, 18")
    b("s_sub_u32 s41, s35, s41")
    b("v_lshrrev_b32 v54, 2, v53")
    b("v_mul_u32_u24 v55, 1152, v54")
    b("v_bfe_u32 v64, v54, 2, 1")
    b("v_lshlrev_b32 v64, 2, v64")
    b("v_lshrrev_b32 v65, 3, v54")
    b("v_lshlrev_b32 v65, 1, v65")
    b("v_add_u32 v64, v64, v65")
    b("v_bfe_u32 v65, v54, 1, 1")
    b("v_add_u32 v64, v64, v65")
    b("v_mul_u32_u24 v64, 18, v64")
    b("v_and_b32 v65, 1, v54")
    b("v_add_u32 v64, v64, v65")
    b("v_add_u32 v64, 16, v64")
    b("v_mul_u32_u24 v64, 1152, v64")
    b("s_cmp_lt_u32 s40, 32")
    b("s_cselect_b64 vcc, -1, 0")
    b("v_cndmask_b32 v55, v64, v55, vcc")
    b("v_and_b32 v65, 3, v53")
    b("v_lshl_add_u32 v55, v65, 4, v55")
    b(f"s_mul_i32 s42, s40, {18*1152}")
    b("s_sub_u32 s43, s40, 32")
    b(f"s_mul_i32 s43, s43, {8*18*1152}")
    b("s_cmp_lt_u32 s40, 32")
    b("s_cselect_b32 s42, s42, s43")
    b("s_lshl_b32 s43, s41, 6")
    b("s_add_u32 s42, s42, s43")
    b("s_cmp_lt_u32 s35, 648")
    b("s_cselect_b32 s42, s42, 0x7f000000")
    b("s_waitcnt lgkmcnt(0)")
    b(f"s_mov_b32 s38, {SZ_WO}"); b("s_mov_b32 s39, 0x20000")
    b("s_lshl_b32 s43, s34, 10")
    b("s_mov_b32 m0, s43")
    b("s_nop 0")
    b("buffer_load_dwordx4 v55, s[36:39], s42 offen lds")

def wof32_end(b):
    b("v_lshrrev_b32 v54, 5, v53")
    b("v_lshlrev_b32 v54, 8, v54")
    b("v_bfe_u32 v55, v53, 2, 2")
    b("v_lshl_add_u32 v54, v55, 6, v54")
    b("v_bfe_u32 v55, v53, 4, 1")
    b("v_lshl_add_u32 v54, v55, 5, v54")
    b("v_and_b32 v55, 3, v53")
    b("v_lshl_add_u32 v54, v55, 3, v54")
    b("v_add_u32 v54, s43, v54")
    b("v_bfe_u32 v55, v53, 4, 1")
    b("v_lshlrev_b32 v55, 9, v55")
    b("v_lshrrev_b32 v64, 5, v53")
    b("v_lshl_add_u32 v55, v64, 8, v55")
    b("v_and_b32 v64, 15, v53")
    b("v_lshl_add_u32 v55, v64, 4, v55")
    b("s_mul_i32 s42, s40, 36")
    b("s_lshl_b32 s44, s41, 1")
    b("s_add_u32 s42, s42, s44")
    b("s_lshl_b32 s42, s42, 9")
    b("s_cmp_lt_u32 s35, 648")
    b("s_cselect_b32 s42, s42, 0x7f000000")
    srd(b, 36, 6, SZ_WO, WS_WOF)
    b("s_waitcnt vmcnt(0)" if False else f"s_waitcnt vmcnt({8})")
    b("ds_read_b64_tr_b16 v[66:67], v54")
    b("ds_read_b64_tr_b16 v[68:69], v54 offset:512")
    b("s_waitcnt lgkmcnt(0)")
    b("buffer_store_dwordx4 v[66:69], v55, s[36:39], s42 offen")


def ln_part(b):
    b("v_lshrrev_b32 v1, 5, v0")
    b("s_lshl_b32 s3, s2, 3")
    b("v_add_u32 v1, s3, v1")
    b("v_and_b32 v2, 31, v0")
    b("v_mul_u32_u24 v3, 1152, v1")
    b("v_lshl_add_u32 v3, v2, 2, v3")
    b("v_lshrrev_b32 v4, 5, v1")
    b("v_mul_u32_u24 v4, 36864, v4")
    if M16:
        b("v_lshrrev_b32 v5, 4, v2")
        b("v_lshl_add_u32 v4, v5, 11, v4")
        b("v_bfe_u32 v5, v1, 4, 1")
        b("v_lshl_add_u32 v4, v5, 10, v4")
        b("v_bfe_u32 v5, v2, 2, 2")
        b("v_lshl_add_u32 v4, v5, 8, v4")
        b("v_and_b32 v5, 15, v1")
        b("v_lshl_add_u32 v4, v5, 4, v4")
        b("v_and_b32 v5, 3, v2")
        b("v_lshl_add_u32 v4, v5, 2, v4")
    else:
        b("v_lshrrev_b32 v5, 3, v2")
        b("v_lshl_add_u32 v4, v5, 10, v4")
        b("v_bfe_u32 v5, v2, 2, 1")
        b("v_lshl_add_u32 v4, v5, 9, v4")
        b("v_and_b32 v5, 31, v1")
        b("v_lshl_add_u32 v4, v5, 4, v4")
        b("v_and_b32 v5, 3, v2")
        b("v_lshl_add_u32 v4, v5, 2, v4")
    b("s_waitcnt lgkmcnt(0)")
    srd(b, 8, 4, SZ_X)
    srd(b, 12, 6, SZ_T, WS_XN)
    X = 8
    for i in range(9): b(f"buffer_load_dword v{X+i}, v3, s[8:11], 0 offen offset:{i*128}")
    L = 20
    for i in range(9):
        b(f"s_waitcnt vmcnt({8-i})")
        b(f"v_lshlrev_b32 v{L+2*i}, 16, v{X+i}")
        b(f"v_and_b32 v{L+2*i+1}, 0xffff0000, v{X+i}")
    def reduce32(r, t):
        b("s_nop 1")
        b(f"v_add_f32_dpp v{r}, v{r}, v{r} quad_perm:[1,0,3,2] row_mask:0xf bank_mask:0xf")
        b("s_nop 1")
        b(f"v_add_f32_dpp v{r}, v{r}, v{r} quad_perm:[2,3,0,1] row_mask:0xf bank_mask:0xf")
        b("s_nop 1")
        b(f"v_add_f32_dpp v{r}, v{r}, v{r} row_half_mirror row_mask:0xf bank_mask:0xf")
        b("s_nop 1")
        b(f"v_add_f32_dpp v{r}, v{r}, v{r} row_mirror row_mask:0xf bank_mask:0xf")
        b("s_nop 0")
        b(f"v_mov_b32 v{t}, v{r}")
        b("s_nop 1")
        b(f"v_permlane16_swap_b32 v{r}, v{t}")
        b("s_nop 0")
        b(f"v_add_f32 v{r}, v{r}, v{t}")
    b(f"v_add_f32 v40, v{L}, v{L+1}")
    b(f"v_add_f32 v41, v{L+2}, v{L+3}")
    for i in range(2, 9):
        b(f"v_add_f32 v40, v40, v{L+2*i}")
        b(f"v_add_f32 v41, v41, v{L+2*i+1}")
    b("v_add_f32 v40, v40, v41")
    reduce32(40, 42)
    b(f"v_mul_f32 v40, {f32hex(1.0/576)}, v40")
    b(f"v_sub_f32 v43, v{L}, v40")
    b(f"v_mul_f32 v44, v43, v43")
    b(f"v_sub_f32 v43, v{L+1}, v40")
    b(f"v_mul_f32 v45, v43, v43")
    for i in range(1, 9):
        b(f"v_sub_f32 v43, v{L+2*i}, v40")
        b(f"v_sub_f32 v46, v{L+2*i+1}, v40")
        b(f"v_fmac_f32 v44, v43, v43")
        b(f"v_fmac_f32 v45, v46, v46")
    b("v_add_f32 v44, v44, v45")
    reduce32(44, 42)
    b(f"v_mul_f32 v44, {f32hex(1.0/576)}, v44")
    b("v_cvt_pk_bf16_f32 v45, v40, v44")
    b("v_lshlrev_b32 v40, 16, v45")
    b("v_and_b32 v44, 0xffff0000, v45")
    b(f"v_add_f32 v44, {f32hex(1e-5)}, v44")
    b("v_cvt_pk_bf16_f32 v44, v44, v44")
    b("v_and_b32 v44, 0xffff0000, v44")
    b("v_sqrt_f32 v44, v44")
    b("s_nop 0")
    b("v_cvt_pk_bf16_f32 v44, v44, v44")
    b("v_and_b32 v44, 0xffff0000, v44")
    b("v_rcp_f32 v44, v44")
    for i in range(9):
        b(f"v_sub_f32 v{L+2*i}, v{L+2*i}, v40")
        b(f"v_sub_f32 v{L+2*i+1}, v{L+2*i+1}, v40")
        b(f"v_cvt_pk_bf16_f32 v{X+i}, v{L+2*i}, v{L+2*i+1}")
    for i in range(9):
        b(f"v_lshlrev_b32 v{L+2*i}, 16, v{X+i}")
        b(f"v_and_b32 v{L+2*i+1}, 0xffff0000, v{X+i}")
        b(f"v_mul_f32 v{L+2*i}, v{L+2*i}, v44")
        b(f"v_mul_f32 v{L+2*i+1}, v{L+2*i+1}, v44")
        b(f"v_cvt_pk_bf16_f32 v{X+i}, v{L+2*i}, v{L+2*i+1}")
        b(f"s_mov_b32 s16, {i*4096}")
        b(f"buffer_store_dword v{X+i}, v4, s[12:15], s16 offen")

def wof16_begin(b):
    b("s_lshl_b32 s35, s2, 2")
    b("s_add_u32 s35, s35, s34")
    b("s_mul_i32 s40, s35, 3641")
    b("s_lshr_b32 s40, s40, 16")
    b("s_mul_i32 s41, s40, 18")
    b("s_sub_u32 s41, s35, s41")
    b("v_lshrrev_b32 v54, 2, v53")
    for half in range(2):
        d = 55 + half if half == 0 else 70
        b(f"v_mul_u32_u24 v{d}, 1152, v54")
        b("v_bfe_u32 v64, v54, 2, 1")
        b(f"v_add_u32 v64, {2*half}, v64")
        b("v_lshlrev_b32 v64, 2, v64")
        b("v_lshrrev_b32 v65, 3, v54")
        b("v_lshlrev_b32 v65, 1, v65")
        b("v_add_u32 v64, v64, v65")
        b("v_bfe_u32 v65, v54, 1, 1")
        b("v_add_u32 v64, v64, v65")
        b("v_mul_u32_u24 v64, 18, v64")
        b("v_and_b32 v65, 1, v54")
        b("v_add_u32 v64, v64, v65")
        b("v_add_u32 v64, 16, v64")
        b("v_mul_u32_u24 v64, 1152, v64")
        b("s_cmp_lt_u32 s40, 16")
        b("s_cselect_b64 vcc, -1, 0")
        b(f"v_cndmask_b32 v{d}, v64, v{d}, vcc")
        b("v_and_b32 v65, 3, v53")
        b(f"v_lshl_add_u32 v{d}, v65, 4, v{d}")
    b(f"s_mul_i32 s42, s40, {36*1152}")
    b("s_sub_u32 s43, s40, 16")
    b(f"s_mul_i32 s43, s43, {16*18*1152}")
    b("s_cmp_lt_u32 s40, 16")
    b("s_cselect_b32 s42, s42, s43")
    b(f"s_cselect_b32 s44, {18*1152}, 0")
    b("s_lshl_b32 s43, s41, 6")
    b("s_add_u32 s42, s42, s43")
    b("s_cmp_lt_u32 s35, 324")
    b("s_cselect_b32 s42, s42, 0x7f000000")
    b("s_add_u32 s44, s44, s42")
    b("s_waitcnt lgkmcnt(0)")
    b(f"s_mov_b32 s38, {SZ_WO}"); b("s_mov_b32 s39, 0x20000")
    b("s_lshl_b32 s43, s34, 11")
    b("s_mov_b32 m0, s43")
    b("s_nop 0")
    b("buffer_load_dwordx4 v55, s[36:39], s42 offen lds")
    b("s_add_u32 m0, s43, 1024")
    b("s_nop 0")
    b("buffer_load_dwordx4 v70, s[36:39], s44 offen lds")
def wof16_end(b, nyoung):
    b("v_lshrrev_b32 v54, 5, v53")
    b("v_lshlrev_b32 v54, 10, v54")
    b("v_bfe_u32 v55, v53, 4, 1")
    b("v_lshl_add_u32 v54, v55, 8, v54")
    b("v_bfe_u32 v55, v53, 2, 2")
    b("v_lshl_add_u32 v54, v55, 6, v54")
    b("v_and_b32 v55, 3, v53")
    b("v_lshl_add_u32 v54, v55, 3, v54")
    b("v_add_u32 v54, s43, v54")
    b("v_lshlrev_b32 v55, 4, v53")
    b("s_mul_i32 s42, s40, 36")
    b("s_lshl_b32 s44, s41, 1")
    b("s_add_u32 s42, s42, s44")
    b("s_lshl_b32 s42, s42, 10")
    b("s_cmp_lt_u32 s35, 324")
    b("s_cselect_b32 s42, s42, 0x7f000000")
    srd(b, 36, 6, SZ_WO, WS_WOF)
    b(f"s_waitcnt vmcnt({nyoung})")
    for nb in range(2):
        b(f"ds_read_b64_tr_b16 v[{66+4*nb}:{67+4*nb}], v54 offset:{nb*32}")
        b(f"ds_read_b64_tr_b16 v[{68+4*nb}:{69+4*nb}], v54 offset:{nb*32+512}")
    b("s_waitcnt lgkmcnt(0)")
    b("buffer_store_dwordx4 v[66:69], v55, s[36:39], s42 offen")
    b("buffer_store_dwordx4 v[70:73], v55, s[36:39], s42 offen offset:1024")

def aux_part(b, r128):
    b(f"s_load_dwordx2 s[20:21], s[0:1], {KA_WG}")
    b(f"s_load_dwordx2 s[24:25], s[0:1], {KA_WU}")
    b(f"s_load_dwordx2 s[28:29], s[0:1], {KA_WQKV}")
    b(f"s_load_dwordx2 s[36:37], s[0:1], {KA_WO}")
    b("v_readfirstlane_b32 s34, v0")
    b("v_and_b32 v53, 63, v0")
    b("s_lshr_b32 s34, s34, 6")
    if F16: wof16_begin(b)
    else:
        wof32_begin(b)
    for base, size in ((20, SZ_WG), (24, SZ_WG), (28, SZ_WQKV)):
        b(f"s_mov_b32 s{base+2}, {size}"); b(f"s_mov_b32 s{base+3}, 0x20000")
    b("s_and_b32 s17, s2, 7")
    b("s_bfe_u32 s18, s2, 0x20003")
    b("s_lshl_b32 s18, s18, 3")
    b("s_add_u32 s17, s17, s18")
    b("s_lshr_b32 s18, s2, 5")
    b("s_mul_i32 s18, s18, 72")
    b("s_mul_i32 s19, s17, 5")
    if r128: b("s_lshl_b32 s19, s17, 1")
    b("s_lshl_b32 s32, s17, 2")
    b("s_add_u32 s32, s32, 16")
    b("s_cmp_lt_u32 s17, 16")
    b("s_cselect_b32 s19, s19, s32")
    b("s_lshl_b32 s19, s19, 6")
    b("s_mul_i32 s32, s18, 9216")
    b("s_add_u32 s19, s19, s32")
    b("s_lshl_b32 s33, s17, 6")
    b("s_mul_i32 s32, s18, 3456")
    b("s_add_u32 s33, s33, s32")
    if PF3:
        for n in range(4):
            b(f"v_add_u32 v50, {256*n}, v0")
            b("v_mul_u32_u24 v51, 5462, v50")
            b("v_lshrrev_b32 v51, 16, v51")
            b("v_mul_u32_u24 v52, 12, v51")
            b("v_sub_u32 v52, v50, v52")
            b("v_mul_u32_u24 v51, 9216, v51")
            b("v_lshl_add_u32 v51, v52, 4, v51")
            if n == 3:
                b("v_cmp_gt_u32 vcc, 864, v50")
                b("v_mov_b32 v52, 0x7f000000")
                b("s_nop 0")
                b("v_cndmask_b32 v51, v52, v51, vcc")
            b(f"buffer_load_dwordx4 v[56:59], v51, s[20:23], s19 offen")
            b(f"buffer_load_dwordx4 v[60:63], v51, s[24:27], s19 offen")
    else:
        for n in range(3):
            b(f"v_add_u32 v50, {256*n}, v0")
            b("v_lshrrev_b32 v51, 3, v50")
            b("v_mul_u32_u24 v51, 9216, v51")
            b("v_and_b32 v52, 7, v50")
            b("v_lshl_add_u32 v51, v52, 4, v51")
            if n == 2:
                b("v_cmp_gt_u32 vcc, 576, v50")
                b("v_mov_b32 v52, 0x7f000000")
                b("s_nop 0")
                b("v_cndmask_b32 v51, v52, v51, vcc")
            b(f"buffer_load_dwordx4 v[56:59], v51, s[20:23], s19 offen")
            b(f"buffer_load_dwordx4 v[60:63], v51, s[24:27], s19 offen")
    for n in range(2):
        b(f"v_add_u32 v50, {256*n}, v0")
        b("v_lshrrev_b32 v51, 2, v50")
        b("v_mul_u32_u24 v51, 3456, v51")
        b("v_and_b32 v52, 3, v50")
        b("v_lshl_add_u32 v51, v52, 4, v51")
        if n == 1:
            b("v_cmp_gt_u32 vcc, 288, v50")
            b("v_mov_b32 v52, 0x7f000000")
            b("s_nop 0")
            b("v_cndmask_b32 v51, v52, v51, vcc")
        b(f"buffer_load_dwordx4 v[56:59], v51, s[28:31], s33 offen")
    if FLG:
        b("s_cmp_lt_u32 s2, 3")
        b("s_cbranch_scc0 L_k0_noflg")
        b(f"s_add_u32 s52, s6, {WS_FLG}")
        b("s_addc_u32 s53, s7, 0")
        b("s_mov_b32 s54, 0x3000"); b("s_mov_b32 s55, 0x20000")
        b("s_lshl_b32 s56, s2, 12")
        b("v_lshlrev_b32 v50, 4, v0")
        for i in range(4): b(f"v_mov_b32 v{74+i}, 0")
        b("buffer_store_dwordx4 v[74:77], v50, s[52:55], s56 offen")
        b.label("L_k0_noflg")
    if CODEPF:
        b("s_getpc_b64 s[46:47]")
        b.label("L_k0_pc")
        b("s_add_u32 s46, s46, L_code_begin-L_k0_pc")
        b("s_addc_u32 s47, s47, 0")
        b("s_lshr_b32 s48, s2, 3")
        b("s_lshl_b32 s48, s48, 12")
        b("v_lshlrev_b32 v50, 4, v0")
        b("v_add_u32 v50, s48, v50")
        b(f"v_cmp_gt_u32 vcc, L_code_end-L_code_begin-16, v50")
        b("s_and_saveexec_b64 s[50:51], vcc")
        b("s_cbranch_execz L_k0_nocode")
        b("global_load_dwordx4 v[56:59], v50, s[46:47]")
        b.label("L_k0_nocode")
        b("s_mov_b64 exec, s[50:51]")
    if F16: wof16_end(b, 10 if PF3 else 8)
    else: wof32_end(b)

def gen_k0(prof=False, r128=False, opts=()):
    global M16, CODEPF, F16, FLG, PF3
    PF3 = 'pf3' in opts
    FLG = 'fuse' in opts
    F16 = 'f16' in opts
    M16 = 'm16' in opts
    CODEPF = 'cpf' in opts
    name = "ln_kernel"
    b = Blk(name)
    b("s_cmp_ge_u32 s2, 256")
    b("s_cbranch_scc1 L_k0_end")
    if prof: prof_begin(b)
    b(f"s_load_dwordx2 s[4:5], s[0:1], {KA_X}")
    b(f"s_load_dwordx2 s[6:7], s[0:1], {KA_WS}")
    b("v_readfirstlane_b32 s45, v0")
    b("s_nop 3")
    b("s_cmp_ge_u32 s45, 256")
    b("s_cbranch_scc1 L_k0_aux")
    l = Blk(); ln_part(l); check(l.ins, "ln")
    b.ext(l)
    b("s_branch L_k0_done")
    b.label("L_k0_aux")
    b("v_subrev_u32 v0, 256, v0")
    b("s_nop 0")
    aux_part(b, r128)
    if "k0wait" in opts: b("s_waitcnt vmcnt(0)")
    b.label("L_k0_done")
    if prof: prof_end(b, 0, 8)
    b.label("L_k0_end")
    b("s_endpgm")
    return name, kernel_text(name, b.text(), 80, 80, 100)
```

```python
from common import *
import math
HALF = 73728; SCR = 2*HALF; K1_LDS = SCR + 1024
C1 = -2.0*math.sqrt(2.0/math.pi)*math.log2(math.e); C2 = C1*0.044715
QSCALE = (18.0**-0.5)*math.log2(math.e)
sWS, sWQp, sWGp, sWUp = 4, 6, 8, 10
sXN, sLD, sH, sO, sWP, sWQ = 12, 16, 20, 24, 28, 48
sWD = 12
sWDp = 58
sR2, sR3, sR4, sD1, sD2, sT0 = 52, 53, 54, 55, 56, 57
vFF = [12, 13, 14, 15]
sW, sTB, sN1, sPh, sT, sP, sHoff, sW1024, sLDo, sLDs, sTmp, sTmp2, sScale, sOff, sRB, sCG = range(32, 48)
vHs, vL16, vDQ, vDP, vLD, vC2 = 1, 2, 3, 4, 5, 6
vTR = [7, 8, 9, 10]
vPart = 11
vT = 12
ACC = [(16, 32), (48, 64)]
X = 80
SACC = 96
OPT = set()
W = None
PRE = 2

def gelu_epilogue(G, U, delta='2048'):
    e = []
    for grp in range(4):
        E = [4*grp+i for i in range(4)]
        e += [f"v_mul_f32 v{vT+i}, v{G+E[i]}, v{G+E[i]}" for i in range(4)]
        e += [f"v_fmaak_f32 v{vT+i}, v{vT+i}, v{vC2}, {f32hex(C1)}" for i in range(4)]
        e += [f"v_mul_f32 v{vT+i}, v{vT+i}, v{G+E[i]}" for i in range(4)]
        e += [f"v_exp_f32 v{vT+i}, v{vT+i}" for i in range(4)]
        e += [f"v_mul_f32 v{G+E[i]}, v{G+E[i]}, v{U+E[i]}" for i in range(4)]
        e += [f"v_add_f32 v{vT+i}, 1.0, v{vT+i}" for i in range(4)]
        e += [f"v_rcp_f32 v{vT+i}, v{vT+i}" for i in range(4)]
        e += [f"v_mul_f32 v{G+E[i]}, v{G+E[i]}, v{vT+i}" for i in range(4)]
        e += [f"v_cvt_pk_bf16_f32 v{U+2*grp}, v{G+4*grp}, v{G+4*grp+1}",
              f"v_cvt_pk_bf16_f32 v{U+2*grp+1}, v{G+4*grp+2}, v{G+4*grp+3}"]
        nb, tt = grp//2, grp % 2
        e += [f"buffer_store_dwordx2 v[{U+2*grp}:{U+2*grp+1}], v{vHs}, s[{sH}:{sH+3}], s{sHoff} offen offset:{nb*1024 + tt*256}" + ("" if "plainst" in OPT else " sc1")]
    e.append(f"s_add_u32 s{sHoff}, s{sHoff}, {delta}")
    if "noepi" in OPT: e = [x for x in e if not x.startswith("v_")]
    if "nost" in OPT: e = [x for x in e if not x.startswith("buffer")]
    return e

def rd2(bases, nb, off, r):
    base, o = (bases[nb], off) if off < 65536 - 256 else (bases[2+nb], off - 65536)
    return [f"ds_read_b64_tr_b16 v[{r}:{r+1}], v{base} offset:{o}",
            f"ds_read_b64_tr_b16 v[{r+2}:{r+3}], v{base} offset:{o+256}"]
def poff(m, mat): return (m//2)*8192 + (((2*m) % 4)*2 + mat)*1024
def preg(f): return X + (f % 6)*4
def pair_reads(f): return rd2(vTR, f % 2, poff(f//4, (f//2) % 2), preg(f))
def sreg(f): return X + (f % 4)*4
def single_reads(f): return rd2(vTR, f % 2, (f//2)*2048, sreg(f))
def ffreg(f): return X + (f % 8)*4
def ff_reads(f): return rd2(vTR if (f//4) % 2 == 0 else vFF, f % 2, poff(f//8, (f//2) % 2), ffreg(f))
def set_bases(kind, half, dst=None):
    dst = dst or vTR
    sh = 11 if kind == "pair" else 10
    return [f"v_lshrrev_b32 v{dst[0]}, 5, v0", f"v_lshlrev_b32 v{dst[0]}, {sh}, v{dst[0]}",
            f"v_add_u32 v{dst[0]}, v{dst[0]}, v{vPart}", f"v_add_u32 v{dst[0]}, {half*HALF}, v{dst[0]}",
            f"v_xor_b32 v{dst[1]}, 32, v{dst[0]}",
            f"v_add_u32 v{dst[2]}, 0x10000, v{dst[0]}", f"v_add_u32 v{dst[3]}, 0x10000, v{dst[1]}"]

def loader(i, half):
    return [f"s_add_u32 m0, s{sW1024}, {half*HALF + i*8192}",
            f"s_nop 0",
            f"buffer_load_dwordx4 v{vLD}, s[{sLD}:{sLD+3}], s{sLDo} offen lds ;#ld",
            f"s_add_u32 s{sLDo}, s{sLDo}, s{sLDs}"]
def next_reads(kind):
    if kind == "pair": return [pair_reads(f) for f in range(4)]
    return [single_reads(f) for f in range(3)]
def mm(A, a_op, b_op, first):
    return f"v_mfma_f32_16x16x32_bf16 v[{A}:{A+3}], {a_op}, {b_op}, " + ("0" if first else f"v[{A}:{A+3}]")
def place(main, extra):
    out = []; a = 0
    for s in main:
        out.append(s)
        if s.startswith("v_mfma"):
            out += extra.get(a, []); a += 1
    return out

def pair_body(cur, half, nxt_kind, pf=(), delta="2048"):
    G, U = ACC[cur]; Gp, Up = ACC[1-cur]
    main = []
    NF = 72; PD = 4
    for f in range(NF):
        m, mat, nb = f//4, (f//2) % 2, f % 2
        r = preg(f); A = (G, U)[mat] + nb*8
        last = f >= NF - 2
        if f == NF - 2:
            main += [W.wv("ld"), "s_waitcnt lgkmcnt(0)", "s_barrier"] + set_bases(nxt_kind, 1-half)
        if not last:
            if "w2" in OPT:
                if f % 2 == 0: main.append(W.wl(f"v[{r}:{r+3}]", f"v[{preg(f+1)}:{preg(f+1)+3}]"))
            else: main.append(W.wl(f"v[{r}:{r+3}]"))
        if f + PD < NF: rr = pair_reads(f + PD)
        elif last:
            nr = next_reads(nxt_kind); k = f - (NF - 2)
            rr = sum(nr[2*k:2*k+2], [])
        else: rr = []
        main.append(mm(A, f"v[{r}:{r+3}]", f"a[{8*m}:{8*m+3}]", m == 0))
        main += rr[:len(rr)//2]
        main.append(mm(A+4, f"v[{r}:{r+3}]", f"a[{8*m+4}:{8*m+7}]", m == 0))
        main += rr[len(rr)//2:]
    extra = {}
    LS = 4
    for o_ in OPT:
        if o_.startswith("ls"): LS = int(o_[2:])
    for i in range(9): extra.setdefault(LS*i + 2, []).extend(loader(i, 1-half))
    for q, op in enumerate(pf): extra.setdefault(LS*9 + 6 + 8*q, []).extend(op)
    if "nodma" in OPT: extra = {k: [x for x in v if not x.startswith("buffer")] for k, v in extra.items()}
    main = place(main, extra)
    return interleave(main, gelu_epilogue(Gp, Up, delta), start=6, end=132)

def stream_ops(j):
    ops = []
    for h in range(2):
        if "r128" in OPT:
            ops.append([f"s_add_u32 m0, s{sW1024}, {h*HALF + j*8192}",
                        f"s_add_u32 s{sTmp}, s{sP}, {4*j*147456 + 8*9216*h}",
                        f"buffer_load_dwordx4 v{vDF}, s[{sWP}:{sWP+3}], s{sTmp} offen lds ;#w{j}"])
            continue
        ops.append([f"s_add_u32 m0, s{sW1024}, {h*HALF + j*8192}",
                    f"s_add_u32 s{sTmp}, s{sP}, {4*j*147456 + 64*h}",
                    f"buffer_load_dwordx4 v{vDP}, s[{sWP}:{sWP+3}], s{sTmp} offen lds ;#w{j}"])
    for q in range(4):
        ks = 4*j + q
        o = []
        if q == 0 and j: o.append(f"s_add_u32 s{sOff}, s{sOff}, 4096")
        o.append(f"buffer_load_dwordx4 a[{4*ks}:{4*ks+3}], v{vL16}, s[{sXN}:{sXN+3}], s{sOff} offen offset:{q*1024} ;#x{ks}")
        ops.append(o)
    return ops

def t0_loader(i):
    return [f"s_add_u32 m0, s{sW1024}, {i*8192}",
            f"s_add_u32 s{sTmp}, s{sLDo}, {i*8*55296}",
            f"buffer_load_dwordx4 v{vDQ}, s[{sWQ}:{sWQ+3}], s{sTmp} offen lds ;#ld"]

def l2_prefetch():
    ops = []
    for q in (2, 3, 4):
        o = [f"s_mul_i32 s{sTmp}, s{sRB}, {4*147456}",
             f"s_add_u32 s{sTmp}, s{sTmp}, s{sP}",
             f"s_add_u32 s{sTmp}, s{sTmp}, s{ {2: sR2, 3: sR3, 4: sR4}[q] }"]
        if q == 4:
            o += [f"s_cmp_lt_u32 s{sCG}, 16", f"s_cselect_b32 s{sTmp}, s{sTmp}, 0x7f000000"]
        o += [f"s_mov_b32 m0, {SCR}", "s_nop 0",
              f"buffer_load_dwordx4 v{vDP}, s[{sWP}:{sWP+3}], s{sTmp} offen lds ;#pf"]
        ops.append(o)
    for q in (1, 2):
        o = [f"s_mul_i32 s{sTmp}, s{sRB}, {8*55296}",
             f"s_add_u32 s{sTmp}, s{sTmp}, s{sLDo}",
             f"s_add_u32 s{sTmp}, s{sTmp}, {16*64*q}",
             f"s_sub_u32 s{sTmp2}, s{sCG}, 16",
             f"s_cmp_lt_u32 s{sTmp2}, {16 if q == 1 else 6}",
             f"s_cselect_b32 s{sTmp}, s{sTmp}, 0x7f000000",
             f"s_mov_b32 m0, {SCR}", "s_nop 0",
             f"buffer_load_dwordx4 v{vDQ}, s[{sWQ}:{sWQ+3}], s{sTmp} offen lds ;#pf"]
        ops.append(o)
    return ops

def wd_prefetch():
    ops = []
    for n in range(3):
        ops.append([f"s_lshr_b32 s{sTmp}, s2, 3",
                    f"s_lshl_b32 s{sTmp}, s{sTmp}, 3",
                    f"s_add_u32 s{sTmp}, s{sTmp}, s{sW}",
                    f"s_add_u32 s{sTmp}, s{sTmp}, {256*n}",
                    f"s_lshl_b32 s{sTmp}, s{sTmp}, 10",
                    f"s_cmp_lt_u32 s{sTmp}, {576*1152}",
                    f"s_cselect_b32 s{sTmp}, s{sTmp}, 0x7f000000",
                    f"s_and_b32 s{sTmp2}, s2, 7",
                    f"s_mul_i32 s{sTmp2}, s{sTmp2}, {576*1152}",
                    f"s_add_u32 s{sTmp}, s{sTmp}, s{sTmp2}",
                    f"s_mov_b32 m0, {SCR}", "s_nop 0",
                    f"buffer_load_dwordx4 v{vL16}, s[{sWD}:{sWD+3}], s{sTmp} offen lds ;#pf"])
    return ops

def ff2_body():
    main = []
    NF = 144; PD = 4
    for f in range(NF):
        m, t, mat, nb = f//8, (f//4) % 2, (f//2) % 2, f % 2
        if f % 16 == 0 and 0 < f < 128:
            j = f//16
            main.append(W.wv(f"w{j+1}")); main.append("s_barrier")
            if "fstamp" in OPT: main += [f"s_memtime s[{70+2*j}:{71+2*j}]", "s_waitcnt lgkmcnt(0)"]
        r = ffreg(f); A = ACC[t][mat] + nb*8
        last = f >= NF - 2
        if f == NF - 2:
            main += [W.wv("ld"), "s_waitcnt lgkmcnt(0)", "s_barrier"] + set_bases("single", 0)
        if f % 8 == 0: main += [W.wv(f"x{2*m}"), W.wv(f"x{2*m+1}")]
        if not last: main.append(W.wl(f"v[{r}:{r+3}]"))
        if f + PD < NF: rr = ff_reads(f + PD)
        elif last:
            nr = next_reads("single"); k = f - (NF - 2)
            rr = sum(nr[2*k:2*k+2], [])
        else: rr = []
        main.append(mm(A, f"v[{r}:{r+3}]", f"a[{8*m}:{8*m+3}]", m == 0))
        main += rr[:len(rr)//2]
        main.append(mm(A+4, f"v[{r}:{r+3}]", f"a[{8*m+4}:{8*m+7}]", m == 0))
        main += rr[len(rr)//2:]
    extra = {}
    for j in range(9 - PRE):
        for q, op in enumerate(stream_ops(j + PRE)): extra.setdefault(32*j + 4*q + 2, []).extend(op)
    for i in range(5): extra.setdefault(32*(i+1) + 28, []).extend(t0_loader(i))
    if "early" in OPT:
        if "nopf" not in OPT:
            for q, op in enumerate(l2_prefetch()): extra.setdefault(32*6 + 1 + 6*q, []).extend(op)
        extra.setdefault(32*7 + 1, []).extend(ld_pair(2))
        for i in range(7): extra.setdefault(32*7 + 3 + 8*i, []).extend([x.replace(";#ld", ";#lq") for x in loader(i, 1)])
    elif "nopf" not in OPT and "latepf" not in OPT:
        for q, op in enumerate(l2_prefetch()): extra.setdefault(32*7 + 6 + 8*q, []).extend(op)
    return place(main, extra)

def single_epilogue(isV):
    A = SACC
    b = Blk()
    if isV:
        b(f"s_sub_u32 s{sTmp}, s{sT}, 36")
        b(f"s_lshl_b32 s{sTmp}, s{sTmp}, 11")
        b(f"s_add_u32 s{sTmp}, s{sTmp}, {2*SZ_T}")
        b(f"v_lshrrev_b32 v{vT}, 5, v0"); b(f"v_lshlrev_b32 v{vT}, 9, v{vT}")
        b(f"v_and_b32 v{vT+1}, 15, v0"); b(f"v_lshl_add_u32 v{vT}, v{vT+1}, 4, v{vT}")
        b(f"v_bfe_u32 v{vT+1}, v0, 4, 1"); b(f"v_lshl_add_u32 v{vT}, v{vT+1}, 3, v{vT}")
    else:
        b(f"s_cmp_ge_u32 s{sT}, 18")
        b(f"s_cselect_b32 s{sTmp}, {SZ_T - 18*2048}, 0")
        b(f"s_cselect_b32 s{sScale}, 1.0, {f32hex(QSCALE)}")
        b(f"s_lshl_b32 s{sTmp2}, s{sT}, 11")
        b(f"s_add_u32 s{sTmp}, s{sTmp}, s{sTmp2}")
        b(f"v_lshrrev_b32 v{vT}, 5, v0"); b(f"v_lshlrev_b32 v{vT}, 9, v{vT}")
        b(f"v_bfe_u32 v{vT+1}, v0, 4, 1"); b(f"v_lshl_add_u32 v{vT}, v{vT+1}, 8, v{vT}")
        b(f"v_and_b32 v{vT+1}, 15, v0"); b(f"v_lshl_add_u32 v{vT}, v{vT+1}, 3, v{vT}")
    b(f"s_mul_i32 s{sTmp2}, s{sTB}, 36864")
    b(f"s_add_u32 s{sTmp}, s{sTmp}, s{sTmp2}")
    if not isV:
        for i in range(16): b(f"v_mul_f32 v{A+i}, s{sScale}, v{A+i}")
    for i in range(8): b(f"v_cvt_pk_bf16_f32 v{A+i}, v{A+2*i}, v{A+2*i+1}")
    for g in range(4):
        nb, tt = g//2, g % 2
        off = (tt*1024 + nb*256) if isV else (nb*1024 + tt*128)
        b(f"buffer_store_dwordx2 v[{A+2*g}:{A+2*g+1}], v{vT}, s[{sO}:{sO+3}], s{sTmp} offen offset:{off}" + ("" if "plainqkv" in OPT else " sc1"))
    b(f"s_add_u32 s{sT}, s{sT}, 16")
    b("s_nop 0")
    return b.ins

def single_body(isV, half, gelu_set, nxt_kind, nld, ld0=0, pf=()):
    main = []
    NF = 36; PD = 3
    for f in range(NF):
        m, nb = f//2, f % 2
        r = sreg(f); A = SACC + nb*8
        last = f >= NF - 1
        if last: main += [W.wv("ld"), "s_waitcnt lgkmcnt(0)", "s_barrier"] + set_bases(nxt_kind, 1-half)
        else: main.append(W.wl(f"v[{r}:{r+3}]"))
        if f + PD < NF: rr = single_reads(f + PD)
        elif last: rr = sum(next_reads(nxt_kind)[:3], [])
        else: rr = []
        w_, x0, x1 = f"v[{r}:{r+3}]", f"a[{8*m}:{8*m+3}]", f"a[{8*m+4}:{8*m+7}]"
        main.append(mm(A, x0, w_, m == 0) if isV else mm(A, w_, x0, m == 0))
        main += rr[:len(rr)//2]
        main.append(mm(A+4, x1, w_, m == 0) if isV else mm(A+4, w_, x1, m == 0))
        main += rr[len(rr)//2:]
    if nxt_kind == "pair": main += next_reads("pair")[3]
    extra = {}
    for i in range(ld0, nld): extra.setdefault(4*(i-ld0) + 2, []).extend(loader(i, 1-half))
    for q, op in enumerate(pf): extra.setdefault(40 + 6*q, []).extend(op)
    main = place(main, extra)
    if gelu_set is not None: main = interleave(main, gelu_epilogue(*ACC[gelu_set]), start=6, end=68)
    return main + single_epilogue(isV)

def ld_pair(q):
    return [f"s_mov_b32 s{sLD}, s{sWP}", f"s_mov_b32 s{sLD+1}, s{sWP+1}", f"s_mov_b32 s{sLD+2}, {SZ_WG}",
            f"s_add_u32 s{sLDo}, s{sP}, s{ {2: sR2, 3: sR3, 4: sR4}[q] }", f"s_mov_b32 s{sLDs}, {4*147456}", f"v_mov_b32 v{vLD}, v{vDP}"]
def ld_single(add, cond=None):
    o = [f"s_mov_b32 s{sLD}, s{sWQ}", f"s_mov_b32 s{sLD+1}, s{sWQ+1}"]
    if cond is None: o.append(f"s_mov_b32 s{sLD+2}, {SZ_WQKV}")
    else: o += cond + [f"s_cselect_b32 s{sLD+2}, {SZ_WQKV}, 0"]
    o += [f"s_add_u32 s{sLDo}, s{sT}, {add}", f"s_lshl_b32 s{sLDo}, s{sLDo}, 6",
          f"s_mul_i32 s{sTmp}, s{sW}, 55296", f"s_add_u32 s{sLDo}, s{sLDo}, s{sTmp}",
          f"s_mov_b32 s{sLDs}, {8*55296}", f"v_mov_b32 v{vLD}, v{vDQ}"]
    return o
def ld_none(): return [f"s_mov_b32 s{sLD+2}, 0"]

def stamp(b, i, on):
    if on:
        b(f"s_memtime s[{60+2*i}:{61+2*i}]")
        b("s_waitcnt lgkmcnt(0)")

def gen_k1(xmap="R8", prof=False, opts=()):
    global W, PRE
    OPT.clear(); OPT.update(opts)
    PRE = 2
    for o in opts:
        if o.startswith("pre"): PRE = int(o[3:])
    W = Waits()
    name = "gemm1_kernel"
    b = Blk(name)
    stamp(b, 0, prof)
    b("s_cmp_ge_u32 s2, 256")
    b("s_cbranch_scc1 L_k1_end")
    if "rt" in OPT: prof_begin(b)
    b(f"s_load_dwordx2 s[{sWS}:{sWS+1}], s[0:1], {KA_WS}")
    b(f"s_load_dwordx2 s[{sWQp}:{sWQp+1}], s[0:1], {KA_WQKV}")
    b(f"s_load_dwordx2 s[{sWGp}:{sWGp+1}], s[0:1], {KA_WG}")
    b(f"s_load_dwordx2 s[{sWUp}:{sWUp+1}], s[0:1], {KA_WU}")
    b(f"s_load_dwordx2 s[{sWDp}:{sWDp+1}], s[0:1], {KA_WD}")
    b(f"v_readfirstlane_b32 s{sW}, v0")
    b("v_and_b32 v0, 63, v0")
    b(f"s_lshr_b32 s{sW}, s{sW}, 6")
    b(f"v_lshlrev_b32 v{vL16}, 4, v0")
    b("v_lshrrev_b32 v12, 2, v0")
    b("v_bfe_u32 v13, v0, 1, 1")
    b("v_bfe_u32 v14, v0, 5, 1")
    b("v_xor_b32 v13, v13, v14")
    b("v_lshlrev_b32 v13, 5, v13")
    b("v_and_b32 v14, 1, v0")
    b("v_lshl_add_u32 v13, v14, 4, v13")
    b(f"v_mul_u32_u24 v{vDQ}, 3456, v12")
    b(f"v_add_u32 v{vDQ}, v{vDQ}, v13")
    b(f"v_mul_u32_u24 v{vDP}, 9216, v12")
    b(f"v_add_u32 v{vDP}, v{vDP}, v13")
    b(f"v_mov_b32 v{vLD}, v{vDP}")
    b("v_bfe_u32 v12, v0, 4, 1")
    b("v_mul_u32_u24 v13, 544, v12")
    b("v_bfe_u32 v14, v0, 2, 2")
    b("v_lshl_add_u32 v13, v14, 6, v13")
    b("v_and_b32 v14, 3, v0")
    b(f"v_lshl_add_u32 v{vPart}, v14, 3, v13")
    b("v_bfe_u32 v12, v0, 4, 1")
    b("v_lshlrev_b32 v12, 9, v12")
    b("v_and_b32 v13, 15, v0")
    b("v_lshl_add_u32 v12, v13, 4, v12")
    b("v_lshrrev_b32 v13, 5, v0")
    b(f"v_lshl_add_u32 v{vHs}, v13, 3, v12")
    b.ext(set_bases("pair", 0, vTR)); b.ext(set_bases("pair", 1, vFF))
    b(f"v_mov_b32 v{vC2}, {f32hex(C2)}")
    b(f"s_and_b32 s{sCG}, s2, 7")
    b(f"s_lshr_b32 s{sTmp}, s2, 3")
    b(f"s_and_b32 s{sTmp}, s{sTmp}, 3")
    b(f"s_lshl_b32 s{sTmp}, s{sTmp}, 3")
    b(f"s_add_u32 s{sCG}, s{sCG}, s{sTmp}")
    b(f"s_lshr_b32 s{sRB}, s2, 5")
    b(f"s_lshl_b32 s{sTB}, s{sRB}, 3")
    b(f"s_add_u32 s{sTB}, s{sTB}, s{sW}")
    b(f"s_mul_i32 s{sP}, s{sCG}, 5")
    b(f"s_lshl_b32 s{sTmp}, s{sCG}, 2")
    b(f"s_add_u32 s{sTmp}, s{sTmp}, 16")
    b(f"s_cmp_lt_u32 s{sCG}, 16")
    b(f"s_cselect_b32 s{sP}, s{sP}, s{sTmp}")
    if "r128" in OPT:
        b(f"s_and_b32 s{sTmp}, s{sP}, 1")
        b(f"s_add_u32 s{sP}, s{sP}, s{sTmp}")
        b(f"s_cmp_eq_u32 s{sTmp}, 0")
        b(f"s_movk_i32 s{sR2}, 128")
        b(f"s_cselect_b32 s{sR2}, s{sR2}, {-64 & 0xffffffff}")
        b(f"s_cselect_b32 s{sR3}, 192, 128") if False else None
        b(f"s_movk_i32 s{sR3}, 192"); b(f"s_movk_i32 s{sR4}, 256")
        b(f"s_cselect_b32 s{sTmp2}, 0, 64")
        b(f"s_sub_u32 s{sR3}, s{sR3}, s{sTmp2}")
        b(f"s_sub_u32 s{sR4}, s{sR4}, s{sTmp2}")
        b(f"s_cmp_eq_u32 s{sTmp}, 0")
        b(f"s_movk_i32 s{sD1}, 2048"); b(f"s_movk_i32 s{sD2}, 2048")
        b(f"s_cselect_b32 s{sD1}, s{sD1}, {-4096 & 0xffffffff}")
        b(f"s_cselect_b32 s{sD2}, s{sD2}, 6144")
    else:
        b(f"s_movk_i32 s{sR2}, 128"); b(f"s_movk_i32 s{sR3}, 192"); b(f"s_movk_i32 s{sR4}, 256")
        b(f"s_movk_i32 s{sD1}, 2048"); b(f"s_movk_i32 s{sD2}, 2048")
    b(f"s_mov_b32 s{sT}, s{sCG}")
    b(f"s_mov_b32 s{sPh}, 0")
    b(f"s_mul_i32 s{sHoff}, s{sTB}, 288")
    b(f"s_lshl_b32 s{sTmp}, s{sP}, 1")
    b(f"s_add_u32 s{sHoff}, s{sHoff}, s{sTmp}")
    b(f"s_lshl_b32 s{sHoff}, s{sHoff}, 10")
    b(f"s_lshl_b32 s{sP}, s{sP}, 6")
    b(f"s_lshr_b32 s{sTmp}, s{sW}, 1")
    b(f"s_mul_i32 s{sTmp}, s{sTmp}, 147456")
    b(f"s_add_u32 s{sP}, s{sP}, s{sTmp}")
    b(f"s_lshl_b32 s{sW1024}, s{sW}, 10")
    b(f"s_lshl_b32 s{sLDo}, s{sT}, 6")
    b(f"s_mul_i32 s{sTmp}, s{sW}, 55296")
    b(f"s_add_u32 s{sLDo}, s{sLDo}, s{sTmp}")
    b("s_waitcnt lgkmcnt(0)")
    srd(b, sXN, sWS, SZ_T, WS_XN)
    b(f"s_and_b32 s{sTmp}, s{sW}, 1")
    b(f"s_cmp_eq_u32 s{sTmp}, 0")
    b(f"s_cselect_b32 s{sWP}, s{sWGp}, s{sWUp}")
    b(f"s_cselect_b32 s{sWP+1}, s{sWGp+1}, s{sWUp+1}")
    b(f"s_mov_b32 s{sWP+2}, {SZ_WG}")
    b(f"s_mov_b32 s{sWP+3}, 0x20000")
    srd(b, sWQ, sWQp, SZ_WQKV)
    srd(b, sLD, sWQp, SZ_WQKV)
    srd(b, sH, sWS, SZ_H, WS_H)
    srd(b, sO, sWS, 3*SZ_T, WS_Q)
    b(f"s_mul_i32 s{sOff}, s{sTB}, 36864")
    so = [stream_ops(j) for j in range(PRE)]
    for j in range(PRE):
        b.ext(so[j][0]); b.ext(so[j][1])
    for j in range(PRE):
        for op in so[j][2:]: b.ext(op)
    if "noself" not in OPT:
        b(f"s_add_u32 s{sTmp2}, s{sRB}, 1")
        b(f"s_mul_i32 s{sTmp2}, s{sTmp2}, {4*147456}")
        b(f"s_add_u32 s{sTmp2}, s{sTmp2}, s{sP}")
        for h in range(2):
            b(f"s_mov_b32 m0, {SCR}")
            b(f"s_add_u32 s{sTmp}, s{sTmp2}, {64*h}")
            b(f"buffer_load_dwordx4 v{vDP}, s[{sWP}:{sWP+3}], s{sTmp} offen lds ;#pf")
        b(f"s_mul_i32 s{sTmp}, s{sRB}, {8*55296}")
        b(f"s_add_u32 s{sTmp}, s{sTmp}, s{sLDo}")
        b(f"buffer_load_dwordx4 v{vDQ}, s[{sWQ}:{sWQ+3}], s{sTmp} offen lds ;#pf")
    b(W.wv("w0")); b("s_barrier")
    for f in range(4): b.ext(ff_reads(f))
    b(W.wv("w1")); b("s_barrier")
    stamp(b, 1, prof)
    pro = list(b.ins)
    FF = ff2_body()
    if "latepf" in OPT:
        lp = [[x.replace(f"s{sLDo}", f"s{sT0}") for x in op] for op in l2_prefetch()[1:]]
        SG0 = [f"s_mov_b32 s{sT0}, s{sLDo}"] + ld_pair(2) + single_body(False, 0, 0, "pair", 9, 0, lp)
    else:
        SG0 = (ld_pair(2) + single_body(False, 0, 0, "pair", 9)) if "early" not in OPT else single_body(False, 0, 0, "pair", 9, 7)
    P0a = ld_pair(3)
    P0 = pair_body(0, 1, "pair", delta=f"s{sD1}")
    wdsrd = Blk(); srd(wdsrd, sWD, sWDp, SZ_WG)
    wpf = wd_prefetch() if "nowd" not in OPT else ()
    P1p = wdsrd.ins + ld_pair(4) + pair_body(1, 0, "pair", wpf, delta=f"s{sD2}")
    P1s = wdsrd.ins + ld_single(0) + pair_body(1, 0, "single", wpf, delta=f"s{sD2}")
    ex3 = [f"s_sub_u32 s{sTmp2}, s{sCG}, 16", f"s_cmp_lt_u32 s{sTmp2}, 6"]
    SG1 = {v: ld_single(16, ex3) + single_body(v, 1, 1, "single", 5) for v in (False, True)}
    SV = ld_none() + single_body(True, 0, None, "single", 0)
    drain = ["s_waitcnt lgkmcnt(0)", "s_nop 7"] + gelu_epilogue(*ACC[0])
    trA = pro + FF + SG0 + P0a + P0 + P1p + ld_none() + P0 + drain
    trB = pro + FF + SG0 + P0a + P0 + P1s + SG1[True] + SV
    trB2 = pro + FF + SG0 + P0a + P0 + P1s + SG1[False]
    for tr in (trA, trB, trB2): W.simulate(tr)
    R = W.resolve
    b.ins = R(b.ins)
    b.ext(R(FF))
    stamp(b, 2, prof)
    b.ext(R(SG0)); b.ext(P0a)
    if "istamp" in OPT: b("s_memtime s[72:73]"); b("s_waitcnt lgkmcnt(0)")
    b.label("L_k1_p0")
    b.ext(R(P0))
    b(f"s_cmp_eq_u32 s{sPh}, 1")
    b("s_cbranch_scc1 L_k1_drain")
    if "istamp" in OPT: b("s_memtime s[74:75]"); b("s_waitcnt lgkmcnt(0)")
    b(f"s_cmp_lt_u32 s{sCG}, 16")
    b("s_cbranch_scc0 L_k1_B")
    b.ext(R(P1p)); b.ext(ld_none())
    if "istamp" in OPT: b("s_memtime s[76:77]"); b("s_waitcnt lgkmcnt(0)")
    b(f"s_mov_b32 s{sPh}, 1")
    b(f"s_movk_i32 s{sD1}, 2048")
    b("s_branch L_k1_p0")
    b.label("L_k1_B")
    b.ext(R(P1s))
    stamp(b, 3, prof)
    b(f"s_cmp_ge_u32 s{sT}, 36")
    b("s_cbranch_scc1 L_k1_sg1v")
    b.ext(R(SG1[False])); b("s_branch L_k1_sg1d")
    b.label("L_k1_sg1v")
    b.ext(R(SG1[True]))
    b.label("L_k1_sg1d")
    b(f"s_sub_u32 s{sTmp2}, s{sCG}, 16")
    b(f"s_cmp_lt_u32 s{sTmp2}, 6")
    b("s_cbranch_scc0 L_k1_fin")
    b.ext(R(SV))
    b("s_branch L_k1_fin")
    b.label("L_k1_drain")
    stamp(b, 3, prof)
    b.ext(drain)
    b.label("L_k1_fin")
    b("s_waitcnt lgkmcnt(0)")
    if prof:
        stamp(b, 4, True)
        b("s_waitcnt vmcnt(0)")
        stamp(b, 5, True)
        b(f"s_lshl_b32 s{sTmp}, s2, 3")
        b(f"s_add_u32 s{sTmp}, s{sTmp}, s{sW}")
        b(f"s_lshl_b32 s{sTmp}, s{sTmp}, 5")
        srd(b, sXN, sWS, 1<<20, 40<<20)
        for i in range(6): b(f"v_mov_b32 v{16+i}, s{60+2*i}")
        if "fstamp" in OPT or "istamp" in OPT:
            for i in range(8): b(f"v_mov_b32 v{24+i}, s{70+2*i}")
            b("v_mov_b32 v12, 0")
            b(f"s_add_u32 s{sTmp2}, s{sTmp}, {1<<17}")
            b(f"buffer_store_dwordx4 v[24:27], v12, s[{sXN}:{sXN+3}], s{sTmp2} offen")
            b(f"buffer_store_dwordx4 v[28:31], v12, s[{sXN}:{sXN+3}], s{sTmp2} offen offset:16")
        b("v_mov_b32 v12, 0")
        b(f"buffer_store_dwordx4 v[16:19], v12, s[{sXN}:{sXN+3}], s{sTmp} offen")
        b(f"buffer_store_dwordx4 v[20:23], v12, s[{sXN}:{sXN+3}], s{sTmp} offen offset:16")
    if "rt" in OPT: prof_end(b, 1, 8)
    b.label("L_k1_end")
    b("s_endpgm")
    bad = 0
    for nm, tr in (("A", trA), ("B", trB), ("B2", trB2)): bad += len(check(R(tr), name+"_"+nm))
    assert bad == 0 or (set(opts) - {'noself','early','rt','ls8','ls6','ls12','w2','latepf','pre3'})
    return name, kernel_text(name, b.text(), 256, 112, 100)
if __name__ == "__main__":
    n, t = gen_k1()
    open("k1.s", "w").write('.amdgcn_target "amdgcn-amd-amdhsa--gfx950"\n' + t)
```

```python
from common import *
import sys
def fstamp(b, k):
    if f'fs{k}' in sys.argv: b('s_memrealtime s[76:77]'); b('s_waitcnt lgkmcnt(0)'); b('s_mov_b32 s98, s76')
O_LDS = 0
A8_LDS = 36*1024
X_LDS = A8_LDS + 20*1024
F_LDS = X_LDS + 12*1024
vL16, vXr, vXd, vT0, vT1 = 1, 2, 3, 4, 5
vFl = 6
vOa = 40
NPRE_F = 6
ACC = 8
vS = 28
vB = 64
vC = 88
vA = 112
sWS, sXp, sOp, sDb = 4, 8, 10, 6
sWO, sOB, sPT, sX, sOut = 12, 16, 20, 24, 28
sW, sTB, sQ, sTmp, sTmp2, sOff, sU, sW1024, sTT, sSpin = range(32, 42)
sOo = 43
sFl = 44

def spin(b, idx_sreg, target, tag):
    b(f"s_cmp_lg_u32 s{sW}, 0")
    b(f"s_cbranch_scc1 L_f_go{tag}")
    b(f"s_lshl_b32 s{sTmp}, s{idx_sreg}, 7")
    b(f"s_add_u32 s{sTmp}, s{sTmp}, {WS_FLG}")
    b(f"v_mov_b32 v{vFl}, s{sTmp}")
    b(f"s_mov_b32 s{sSpin}, 0x4000")
    b.label(f"L_f_spin{tag}")
    b(f"global_load_dword v{vT0}, v{vFl}, s[{sWS}:{sWS+1}] sc1")
    b("s_waitcnt vmcnt(0)")
    b(f"v_readfirstlane_b32 s{sTmp}, v{vT0}")
    b("s_nop 3")
    b(f"s_cmp_ge_u32 s{sTmp}, {target}")
    b(f"s_cbranch_scc1 L_f_go{tag}")
    b("s_sleep 2")
    b(f"s_sub_u32 s{sSpin}, s{sSpin}, 1")
    b(f"s_cmp_lg_u32 s{sSpin}, 0")
    b(f"s_cbranch_scc1 L_f_spin{tag}")
    b.label(f"L_f_go{tag}")
    b("s_barrier")

def gen_f_role(flags=False, wgbits="s2", stampk=0):
    global NPRE_F
    for a_ in sys.argv:
        if a_.startswith('npre'): NPRE_F = int(a_[4:])
    W = Waits()
    b = Blk()
    sc = " sc1" if flags else ""
    b(f"s_load_dwordx2 s[{sWS}:{sWS+1}], s[0:1], {KA_WS}")
    b(f"s_load_dwordx2 s[{sXp}:{sXp+1}], s[0:1], {KA_X}")
    b(f"s_load_dwordx2 s[{sOp}:{sOp+1}], s[0:1], {KA_OUT}")
    b(f"v_readfirstlane_b32 s{sW}, v0")
    b("v_and_b32 v0, 63, v0")
    b(f"s_lshr_b32 s{sW}, s{sW}, 6")
    b(f"s_and_b32 s{sTB}, s2, 7")
    b(f"s_bfe_u32 s{sTmp}, s2, 0x30005")
    b(f"s_lshl_b32 s{sTmp}, s{sTmp}, 3")
    b(f"s_add_u32 s{sTB}, s{sTB}, s{sTmp}")
    b(f"s_bfe_u32 s{sQ}, s2, 0x20003")
    b(f"s_mul_i32 s{sU}, s{sQ}, 9")
    b(f"s_lshl_b32 s{sW1024}, s{sW}, 10")
    b(f"s_and_b32 s{sTT}, s{sW}, 1")
    b(f"v_lshlrev_b32 v{vL16}, 4, v0")
    b(f"v_and_b32 v{vT0}, 15, v0")
    b(f"v_mul_u32_u24 v{vT0}, 288, v{vT0}")
    b(f"v_lshrrev_b32 v{vT1}, 4, v0")
    b(f"v_lshl_add_u32 v{vXr}, v{vT1}, 3, v{vT0}")
    b(f"v_add_u32 v{vXr}, {X_LDS}, v{vXr}")
    b("s_waitcnt lgkmcnt(0)")
    srd(b, sWO, sWS, SZ_WO, WS_WOF)
    srd(b, sOB, sWS, SZ_T, WS_O)
    srd(b, sPT, sWS, NSPLIT*SZ_T, WS_P)
    srd(b, sX, sXp, SZ_X)
    srd(b, sOut, sOp, SZ_X)
    b(f"s_mul_i32 s{sOff}, s{sTB}, {32*1152}")
    b(f"s_mul_i32 s{sTmp}, s{sQ}, 288")
    b(f"s_add_u32 s{sOff}, s{sOff}, s{sTmp}")
    def piece(dst, i):
        o = [f"s_add_u32 s{sTmp}, s{sW}, {4*i}", f"s_lshl_b32 s{sTmp}, s{sTmp}, 6",
             f"v_add_u32 v{vT0}, s{sTmp}, v0",
             f"v_mul_u32_u24 v{vT1}, 3641, v{vT0}", f"v_lshrrev_b32 v{vT1}, 16, v{vT1}",
             f"v_mul_u32_u24 v{vT1}, 864, v{vT1}",
             f"v_lshl_add_u32 v{dst}, v{vT0}, 4, v{vT1}"]
        if i == 2:
            o += [f"v_cmp_gt_u32 vcc, 576, v{vT0}", f"v_mov_b32 v{vT1}, 0x7f000000", "s_nop 0", f"v_cndmask_b32 v{dst}, v{vT1}, v{dst}, vcc"]
        return o
    for i in range(3):
        b.ext(piece(vXd, i))
        b(f"s_add_u32 m0, s{sW1024}, {X_LDS + i*4096}")
        b("s_nop 0")
        b(f"buffer_load_dwordx4 v{vXd}, s[{sX}:{sX+3}], s{sOff} offen lds ;#x")
    b(f"s_mov_b32 s{sOo}, s{sOff}")
    b(f"s_mul_i32 s{sOff}, s{sW}, 36")
    b(f"s_add_u32 s{sOff}, s{sOff}, s{sU}")
    b(f"s_add_u32 s{sOff}, s{sOff}, 8")
    b(f"s_lshl_b32 s{sOff}, s{sOff}, 10")
    for i in range(5):
        b(f"s_add_u32 m0, s{sW1024}, {A8_LDS + i*4096}")
        b("s_nop 0")
        b(f"buffer_load_dwordx4 v{vL16}, s[{sWO}:{sWO+3}], s{sOff} offen lds ;#x")
        b(f"s_add_u32 s{sOff}, s{sOff}, {4*36*1024}")
    b(f"s_lshl_b32 s{sOff}, s{sW}, 1")
    b(f"s_add_u32 s{sOff}, s{sOff}, s{sU}")
    b(f"s_lshl_b32 s{sOff}, s{sOff}, 10")
    sAo = 42
    b(f"s_mov_b32 s{sAo}, s{sOff}")
    def a_load(m):
        o = []
        for e in range(2):
            r = vA + (2*m+e)*4
            o.append(f"buffer_load_dwordx4 v[{r}:{r+3}], v{vL16}, s[{sWO}:{sWO+3}], s{sAo} offen offset:{e*1024} ;#a{m}")
        o.append(f"s_add_u32 s{sAo}, s{sAo}, {36*1024}")
        return o
    NPRE = 18 if not flags else NPRE_F
    for m in range(NPRE): b.ext(a_load(m))
    b(W.wv("x")); b("s_barrier")
    b(f"s_lshl_b32 s{sTmp}, s{sW}, 6")
    b(f"v_add_u32 v{vT0}, s{sTmp}, v{vXr}")
    for e in range(2):
        for tt in range(2):
            r = vS + (e*2+tt)*2
            b(f"ds_read_b64 v[{r}:{r+1}], v{vT0} offset:{e*32 + tt*16*288}")
    b(f"s_mul_i32 s{sTmp}, s{sTT}, {16*288}")
    b(f"v_add_u32 v{vT1}, s{sTmp}, v{vXr}")
    b(f"ds_read_b64 v[{vS+8}:{vS+9}], v{vT1} offset:256")
    b("s_waitcnt lgkmcnt(0)")
    for i in range(10):
        b(f"v_lshlrev_b32 v{ACC+2*i}, 16, v{vS+i}")
        b(f"v_and_b32 v{ACC+2*i+1}, 0xffff0000, v{vS+i}")
    if flags:
        b(f"s_lshr_b32 s{sTmp2}, s{sTB}, 2"); b(f"s_lshl_b32 s{sTmp2}, s{sTmp2}, 1")
        b(f"s_lshr_b32 s{sTmp}, s{sQ}, 1"); b(f"s_add_u32 s{sTmp2}, s{sTmp2}, s{sTmp}"); b(f"s_add_u32 s{sTmp2}, s{sTmp2}, 64")
        fstamp(b, 0)
        spin(b, sTmp2, 8, "p")
        fstamp(b, 1)
    b(f"s_mul_i32 s{sOff}, s{sTB}, 36")
    b(f"s_add_u32 s{sOff}, s{sOff}, s{sU}")
    b(f"s_add_u32 s{sTmp2}, s{sOff}, 8")
    b(f"s_lshl_b32 s{sTmp2}, s{sTmp2}, 10")
    b(f"s_cmp_lt_u32 s{sW}, 2")
    b(f"s_cselect_b32 s{sTmp2}, s{sTmp2}, 0x70000000")
    b(f"s_lshl_b32 s{sTmp}, s{sW}, 1")
    b(f"s_add_u32 s{sOff}, s{sOff}, s{sTmp}")
    b(f"s_lshl_b32 s{sOff}, s{sOff}, 10")
    def p_load(s_):
        r = vS + (s_ % 3)*12
        return [f"buffer_load_dwordx4 v[{r}:{r+3}], v{vL16}, s[{sPT}:{sPT+3}], s{sOff} offen{sc} ;#p{s_}",
                f"buffer_load_dwordx4 v[{r+4}:{r+7}], v{vL16}, s[{sPT}:{sPT+3}], s{sOff} offen offset:1024{sc} ;#p{s_}",
                f"buffer_load_dwordx4 v[{r+8}:{r+11}], v{vL16}, s[{sPT}:{sPT+3}], s{sTmp2} offen{sc} ;#p{s_}",
                f"s_add_u32 s{sOff}, s{sOff}, {SZ_T}", f"s_add_u32 s{sTmp2}, s{sTmp2}, {SZ_T}"]
    def p_add(s_):
        r = vS + (s_ % 3)*12
        o = [W.wv(f"p{s_}")]
        for i in range(8):
            o += [f"v_lshlrev_b32 v{vT0}, 16, v{r+i}", f"v_and_b32 v{r+i}, 0xffff0000, v{r+i}",
                  f"v_add_f32 v{ACC+2*i}, v{ACC+2*i}, v{vT0}", f"v_add_f32 v{ACC+2*i+1}, v{ACC+2*i+1}, v{r+i}"]
        o += [f"v_cndmask_b32 v{r+8}, v{r+8}, v{r+10}, s[46:47]", f"v_cndmask_b32 v{r+9}, v{r+9}, v{r+11}, s[46:47]"]
        for i in range(2):
            o += [f"v_lshlrev_b32 v{vT0}, 16, v{r+8+i}", f"v_and_b32 v{r+8+i}, 0xffff0000, v{r+8+i}",
                  f"v_add_f32 v{ACC+16+2*i}, v{ACC+16+2*i}, v{vT0}", f"v_add_f32 v{ACC+17+2*i}, v{ACC+17+2*i}, v{r+8+i}"]
        return o
    b(f"s_cmp_lg_u32 s{sTT}, 0")
    b("s_cselect_b64 s[46:47], -1, 0")
    def o_dma():
        o = [f"s_mul_i32 s{sTmp}, s{sTB}, 36864", f"s_add_u32 s{sTmp}, s{sTmp}, s{sW1024}"]
        for i in range(9):
            o += [f"s_add_u32 m0, s{sW1024}, {O_LDS + i*4096}", "s_nop 0",
                  f"buffer_load_dwordx4 v{vL16}, s[{sOB}:{sOB+3}], s{sTmp} offen{sc} lds ;#o",
                  f"s_add_u32 s{sTmp}, s{sTmp}, 4096"]
        return o
    if not flags: b.ext(o_dma())
    for s_ in range(3): b.ext(p_load(s_))
    rest_a = list(range(NPRE, 18))
    for s_ in range(NSPLIT):
        b.ext(p_add(s_))
        if s_ + 3 < NSPLIT: b.ext(p_load(s_ + 3))
        elif rest_a:
            k = (len(rest_a) + (NSPLIT - 1 - s_)) // (NSPLIT - s_)
            for m in rest_a[:k]: b.ext(a_load(m))
            rest_a = rest_a[k:]
    assert not rest_a
    if flags:
        b(f"s_lshr_b32 s{sTmp2}, s{sTB}, 3")
        b(f"s_lshl_b32 s{sTmp2}, s{sTmp2}, 3")
        b(f"s_and_b32 s{sOff}, s2, 7")
        b(f"s_add_u32 s{sTmp2}, s{sTmp2}, s{sOff}")
        fstamp(b, 2)
        spin(b, sTmp2, 32, "o")
        fstamp(b, 3)
        b(f"s_mul_i32 s{sTmp}, s{sTB}, 36864"); b(f"s_add_u32 s{sTmp}, s{sTmp}, s{sW1024}")
        for i in range(9):
            b(f"buffer_load_dwordx4 v[{vS+4*i}:{vS+4*i+3}], v{vL16}, s[{sOB}:{sOB+3}], s{sTmp} offen sc1 ;#o{i}")
            b(f"s_add_u32 s{sTmp}, s{sTmp}, 4096")
        b(f"v_add_u32 v{vT0}, s{sW1024}, v{vL16}")
        for i in range(9):
            b(W.wv(f"o{i}"))
            b(f"ds_write_b128 v{vT0}, v[{vS+4*i}:{vS+4*i+3}] offset:{O_LDS + i*4096}")
        b("s_waitcnt lgkmcnt(0)"); b("s_barrier")
    else:
        b(W.wv("o")); b("s_barrier")
    fstamp(b, 4)
    def rdB(m):
        r = vB + (m % 3)*8
        return [f"ds_read_b128 v[{r}:{r+3}], v{vL16} offset:{O_LDS + m*2048}",
                f"ds_read_b128 v[{r+4}:{r+7}], v{vL16} offset:{O_LDS + m*2048 + 1024}"]
    def rdC(m):
        r = vC + (m % 3)*8
        return [f"ds_read_b128 v[{r}:{r+3}], v{vL16} offset:{A8_LDS + m*1024}",
                f"ds_read_b128 v[{r+4}:{r+7}], v{vFl} offset:{O_LDS + m*2048}"]
    b(f"s_lshl_b32 s{sTmp}, s{sTT}, 10")
    b(f"v_add_u32 v{vFl}, s{sTmp}, v{vL16}")
    for m in range(2): b.ext(rdB(m)); b.ext(rdC(m))
    for m in range(18):
        rb = vB + (m % 3)*8; rc = vC + (m % 3)*8
        b(W.wv(f"a{m}"))
        b(W.wl(f"v[{rb}:{rb+7}]", f"v[{rc}:{rc+7}]"))
        for e in range(2):
            ra = vA + (2*m+e)*4
            for tt in range(2):
                a = ACC + e*8 + tt*4
                b(f"v_mfma_f32_16x16x32_bf16 v[{a}:{a+3}], v[{ra}:{ra+3}], v[{rb+4*tt}:{rb+4*tt+3}], v[{a}:{a+3}]")
        b(f"v_mfma_f32_16x16x32_bf16 v[{ACC+16}:{ACC+19}], v[{rc}:{rc+3}], v[{rc+4}:{rc+7}], v[{ACC+16}:{ACC+19}]")
        if m + 2 < 18: b.ext(rdB(m+2)); b.ext(rdC(m+2))
        if m in (2, 5, 8):
            i = (m - 2)//3
            b.ext(piece(vOa + i, i)); b(f"v_lshlrev_b32 v{vOa+3+i}, 4, v{vT0}")
    b("s_nop 7")
    fstamp(b, 5)
    for i in range(10): b(f"v_cvt_pk_bf16_f32 v{vS+i}, v{ACC+2*i}, v{ACC+2*i+1}")
    b(f"s_lshl_b32 s{sTmp}, s{sW}, 6")
    b(f"v_add_u32 v{vT0}, s{sTmp}, v{vXr}")
    for e in range(2):
        for tt in range(2):
            r = vS + (e*2+tt)*2
            b(f"ds_write_b64 v{vT0}, v[{r}:{r+1}] offset:{e*32 + tt*16*288}")
    b(f"s_cmp_lt_u32 s{sW}, 2")
    b("s_cbranch_scc0 L_f_no9")
    n9 = [f"ds_write_b64 v{vT1}, v[{vS+8}:{vS+9}] offset:256"]
    pre9 = [f"s_mul_i32 s{sTmp}, s{sTT}, {16*288}", f"v_add_u32 v{vT1}, s{sTmp}, v{vXr}"]
    b.ext(pre9); b.ext(n9)
    b.label("L_f_no9")
    b("s_waitcnt lgkmcnt(0)"); b("s_barrier")
    for i in range(3): b(f"ds_read_b128 v[{vB+4*i}:{vB+4*i+3}], v{vOa+3+i} offset:{X_LDS}")
    for i in range(3):
        b(W.wl(f"v[{vB+4*i}:{vB+4*i+3}]"))
        b(f"buffer_store_dwordx4 v[{vB+4*i}:{vB+4*i+3}], v{vOa+i}, s[{sOut}:{sOut+3}], s{sOo} offen")
    ins = list(b.ins)
    lin = []; skip = False
    for x in ins:
        if x.startswith("L_f_spin"): skip = True
        if x.startswith("L_f_go"): skip = False
        if skip or x.startswith(("s_cbranch", "L_f_")): continue
        lin.append(x)
    W.simulate(lin)
    b.ins = W.resolve(ins)
    assert len(check([x for x in W.resolve(lin)], "frole")) == 0
    return b

def gen_k3(prof=False, outsc1=False, stamp=0):
    name = "final_kernel"
    b = Blk()
    b("s_cmp_ge_u32 s2, 256")
    b("s_cbranch_scc1 L_k3_end")
    if prof: prof_begin(b)
    b.ext(gen_f_role(False))
    if prof: prof_end(b, 4, 4)
    b.label("L_k3_end")
    b("s_endpgm")
    return name, kernel_text(name, b.text(), 256, 256, 100)
K3_LDS = F_LDS
if __name__ == "__main__":
    n, t = gen_k3()
    open("k3.s", "w").write('.amdgcn_target "amdgcn-amd-amdhsa--gfx950"\n' + t)
```

```python
from common import *
SLOT = 20480; NSL = 4; B_LDS = SLOT*NSL
vL16, vTRb, vBo = 1, 2, 3
vD = 4
vT = [[84, 85], [86, 87]]
vTRo, vPs = 88, 89
vA = 12
vB = 36
ACC = 96
sWS, sWDp = 4, 6
sWD, sHB, sPT = 8, 12, 16
sW, sX, sTB, sNH, sSlotR, sSlotW, sWoff, sHoff, sIt, sTmp, sTmp2, sW1024 = range(24, 36)
OPT = set()

def a_reads(g):
    pass

def dma_stage():
    o = []
    for i in range(5):
        o.append(f"s_add_u32 m0, s{sSlotW}, {i*4096}")
        o.append("s_nop 0")
        o.append(f"buffer_load_dwordx4 v{vD+i}, s[{sWD}:{sWD+3}], s{sWoff} offen lds ;#w")
    o.append(f"s_add_u32 s{sWoff}, s{sWoff}, {2*18432}")
    o.append(f"s_add_u32 s{sSlotW}, s{sSlotW}, {SLOT}")
    o.append(f"s_cmp_ge_u32 s{sSlotW}, {SLOT*NSL}")
    o.append(f"s_cselect_b32 s{sTmp}, {SLOT*NSL}, 0")
    o.append(f"s_sub_u32 s{sSlotW}, s{sSlotW}, s{sTmp}")
    return o
def adv_read():
    return [f"s_add_u32 s{sSlotR}, s{sSlotR}, {SLOT}",
            f"s_cmp_eq_u32 s{sSlotR}, {SLOT*NSL}",
            f"s_cselect_b32 s{sSlotR}, 0, s{sSlotR}"]

import sys
PD = 4
for _a in sys.argv:
    if _a.startswith("dpd"): PD = int(_a[3:])
RING = 6 if PD <= 5 else 9
AREG = [12, 16, 20, 24, 28, 32, 240, 244, 248]
def areg(g): return AREG[g % RING]
def rd(g):
    st = g//18; u = g % 18
    r = areg(g)
    base = vT[st % 2][u % 2]
    return [f"ds_read_b64_tr_b16 v[{r}:{r+1}], v{base} offset:{u*32}",
            f"ds_read_b64_tr_b16 v[{r+2}:{r+3}], v{base} offset:{u*32+8*576}"]
def body(W):
    o = []
    for g in range(108):
        st = g//18; u = g % 18
        if u == 0:
            o += [W.wv("wn"), "s_barrier", W.wv(f"b{2*st}"), W.wv(f"b{2*st+1}")]
            for o_ in OPT:
                if o_.startswith("hs") and int(o_[2:]) % 6 == st:
                    o += [f"s_cmp_eq_u32 s{sIt}, {3 - int(o_[2:])//6}", f"s_cbranch_scc0 L_dn_hs{st}", "s_setprio 0", f"L_dn_hs{st}:"]
        r = areg(g); b0 = vB + (2*st)*4; a = ACC + u*8
        o.append(W.wl(f"v[{r}:{r+3}]"))
        rr = rd(g + PD)
        pre = []
        if u == 18 - PD - 2:
            pre = adv_read() + [f"v_add_u32 v{vT[(st+1) % 2][0]}, s{sSlotR}, v{vTRb}", f"v_add_u32 v{vT[(st+1) % 2][1]}, s{sSlotR}, v{vTRo}"]
        o.append(f"v_mfma_f32_16x16x32_bf16 v[{a}:{a+3}], v[{r}:{r+3}], v[{b0}:{b0+3}], v[{a}:{a+3}]")
        o += pre + rr[:1]
        o.append(f"v_mfma_f32_16x16x32_bf16 v[{a+4}:{a+7}], v[{r}:{r+3}], v[{b0+4}:{b0+7}], v[{a+4}:{a+7}]")
        o += rr[1:]
        d = dma_stage()
        if u == 0 and st == 3: o += [f"s_cmp_eq_u32 s{sIt}, 1", f"s_cselect_b32 s{sWD+2}, 0, {SZ_WG}"]
        if u in (2, 5, 8, 11, 14):
            i = (u - 2)//3
            o += d[3*i:3*i+3]
        if u == 15: o += d[15:]
        if u in (1, 10):
            k = 2*st + (0 if u == 1 else 1)
            kn = (k + 10) % 12
            rb = vB + kn*4
            tt = k % 2
            o.append(f"buffer_load_dwordx4 v[{rb}:{rb+3}], v{vBo}, s[{sHB}:{sHB+3}], s{sHoff} offen offset:{tt*256} ;#b{kn}")
            if tt == 1: o.append(f"s_add_u32 s{sHoff}, s{sHoff}, 2048")
            if k == 1:
                o += [f"s_cmp_eq_u32 s{sIt}, 1", f"s_cselect_b32 s{sHB+2}, 0, {SZ_H}"]
    if "nods" in OPT: o = [x for x in o if not x.startswith("ds_read") and not x.startswith("@WL")]
    return o

def gen_down_role(opts=()):
    OPT.clear(); OPT.update(opts)
    W = Waits()
    b = Blk()
    b(f"s_load_dwordx2 s[{sWS}:{sWS+1}], s[0:1], {KA_WS}")
    b(f"s_load_dwordx2 s[{sWDp}:{sWDp+1}], s[0:1], {KA_WD}")
    b(f"v_readfirstlane_b32 s{sW}, v0")
    b("v_and_b32 v0, 63, v0")
    b(f"s_lshr_b32 s{sW}, s{sW}, 6")
    if "xtok" in OPT:
        b(f"s_bfe_u32 s{sX}, s2, 0x30003")
        b(f"s_bfe_u32 s{sNH}, s2, 0x10006")
        b(f"s_and_b32 s{sTB}, s2, 7")
        b(f"s_lshl_b32 s{sTB}, s{sTB}, 1")
        b(f"s_bfe_u32 s{sTmp}, s2, 0x10007")
        b(f"s_add_u32 s{sTB}, s{sTB}, s{sTmp}")
    else:
        b(f"s_and_b32 s{sX}, s2, 7")
        b(f"s_bfe_u32 s{sNH}, s2, 0x10003")
        b(f"s_bfe_u32 s{sTB}, s2, 0x40004")
    b(f"s_lshl_b32 s{sTB}, s{sTB}, 2")
    b(f"s_add_u32 s{sTB}, s{sTB}, s{sW}")
    b(f"s_lshl_b32 s{sW1024}, s{sW}, 10")
    b(f"v_lshlrev_b32 v{vL16}, 4, v0")
    b("v_lshrrev_b32 v10, 5, v0")
    b("v_lshlrev_b32 v10, 4, v10")
    b("v_bfe_u32 v11, v0, 4, 1")
    b("v_lshl_add_u32 v10, v11, 2, v10")
    b("v_bfe_u32 v9, v0, 2, 2")
    b("v_add_u32 v10, v10, v9")
    b("v_mul_u32_u24 v10, 576, v10")
    b("v_and_b32 v9, 3, v0")
    b("v_lshl_add_u32 v10, v9, 3, v10")
    b("v_lshlrev_b32 v11, 5, v11")
    b(f"v_add_u32 v{vTRb}, v10, v11")
    b(f"v_sub_u32 v{vTRo}, v10, v11")
    b(f"v_mov_b32 v{vT[0][0]}, v{vTRb}")
    b(f"v_mov_b32 v{vT[0][1]}, v{vTRo}")
    b("v_lshrrev_b32 v10, 5, v0")
    b("v_lshlrev_b32 v10, 10, v10")
    b("v_bfe_u32 v11, v0, 4, 1")
    b("v_lshl_add_u32 v10, v11, 9, v10")
    b("v_and_b32 v11, 15, v0")
    b(f"v_lshl_add_u32 v{vBo}, v11, 4, v10")
    b("v_bfe_u32 v10, v0, 4, 1")
    b("v_lshlrev_b32 v10, 9, v10")
    b("v_lshl_add_u32 v10, v11, 4, v10")
    b("v_lshrrev_b32 v11, 5, v0")
    b(f"v_lshl_add_u32 v{vPs}, v11, 3, v10")
    for i in range(5):
        b(f"s_add_u32 s{sTmp}, s{sW}, {4*i}")
        b(f"s_lshl_b32 s{sTmp2}, s{sTmp}, 10")
        b(f"v_add_u32 v10, s{sTmp2}, v{vL16}")
        b("v_lshrrev_b32 v11, 6, v10")
        b("v_mul_u32_u24 v11, 7282, v11")
        b("v_lshrrev_b32 v11, 16, v11")
        b("v_mul_u32_u24 v11, 576, v11")
        b(f"v_add_u32 v{vD+i}, v10, v11")
        b("v_mul_u32_u24 v11, 7282, v9") if False else None
        b("v_lshrrev_b32 v11, 6, v10"); b("v_mul_u32_u24 v11, 7282, v11"); b("v_lshrrev_b32 v11, 16, v11")
        b("v_mul_u32_u24 v9, 576, v11"); b("v_sub_u32 v9, v10, v9")
        b("v_bfe_u32 v11, v11, 2, 1"); b("v_lshlrev_b32 v11, 5, v11")
        b("v_xor_b32 v11, v9, v11"); b("v_sub_u32 v11, v11, v9")
        b(f"v_add_u32 v{vD+i}, v{vD+i}, v11")
        if i == 4:
            b(f"s_cmp_ge_u32 s{sTmp}, 18")
            b(f"s_cselect_b32 s{sTmp2}, 0x7f000000, 0")
            b(f"v_add_u32 v{vD+i}, s{sTmp2}, v{vD+i}")
    b("s_waitcnt lgkmcnt(0)")
    srd(b, sWD, sWDp, SZ_WG)
    srd(b, sHB, sWS, SZ_H, WS_H)
    srd(b, sPT, sWS, NSPLIT*SZ_T, WS_P)
    b(f"s_mul_i32 s{sWoff}, s{sX}, {576*1152}")
    b(f"s_mul_i32 s{sTmp}, s{sNH}, 576")
    b(f"s_add_u32 s{sWoff}, s{sWoff}, s{sTmp}")
    b(f"s_mul_i32 s{sHoff}, s{sTB}, 288")
    b(f"s_mul_i32 s{sTmp}, s{sX}, 36")
    b(f"s_add_u32 s{sHoff}, s{sHoff}, s{sTmp}")
    b(f"s_lshl_b32 s{sHoff}, s{sHoff}, 10")
    b(f"s_mov_b32 s{sSlotW}, s{sW1024}")
    b(f"s_mov_b32 s{sSlotR}, 0")
    def bl(k):
        o = [f"buffer_load_dwordx4 v[{vB+4*k}:{vB+4*k+3}], v{vBo}, s[{sHB}:{sHB+3}], s{sHoff} offen offset:{(k % 2)*256} ;#b{k}"]
        if k % 2 == 1: o.append(f"s_add_u32 s{sHoff}, s{sHoff}, 2048")
        return o
    b.ext([x.replace(";#w", ";#w0") for x in dma_stage()])
    for k in range(2): b.ext(bl(k))
    b.ext([x.replace(";#w", ";#w1") for x in dma_stage()])
    for k in range(2, 6): b.ext(bl(k))
    b.ext([x.replace(";#w", ";#w2") for x in dma_stage()])
    for k in range(6, 10): b.ext(bl(k))
    for i in range(144): b(f"v_mov_b32 v{ACC+i}, 0")
    b(W.wv("w0")); b("s_barrier")
    for g in range(PD): b.ext(rd(g))
    b(f"s_mov_b32 s{sIt}, 3")
    pro = list(b.ins)
    bd = body(W)
    tail = [f"s_sub_u32 s{sIt}, s{sIt}, 1", f"s_cmp_lg_u32 s{sIt}, 0"]
    def trace(n):
        t = list(pro)
        st = 0; issued = 3
        for it in range(n):
            for s in bd + tail:
                if s.startswith("@WV") and s.endswith(" wn"):
                    t.append(s[:-2] + f"w{st+1}"); st += 1
                elif ";#w" in s and s.endswith(";#w"):
                    t.append(s.replace(";#w", f";#w{issued}"))
                    cnt = sum(1 for x in t if x.endswith(f";#w{issued}"))
                    if cnt == 5: issued += 1
                else: t.append(s)
        return t
    tr = [x for x in trace(3) if not x.startswith(("s_cbranch", "L_dn_hs"))]
    W.simulate(tr)
    R = W.resolve
    epi = Blk()
    epi("s_waitcnt vmcnt(0) lgkmcnt(0)")
    epi("s_nop 7"); epi("s_nop 3")
    epi(f"s_lshl_b32 s{sTmp}, s{sX}, 6")
    epi(f"s_add_u32 s{sTmp}, s{sTmp}, s{sTB}")
    epi(f"s_mul_i32 s{sTmp}, s{sTmp}, 18")
    epi(f"s_mul_i32 s{sTmp2}, s{sNH}, 9")
    epi(f"s_add_u32 s{sTmp}, s{sTmp}, s{sTmp2}")
    epi(f"s_lshl_b32 s{sTmp}, s{sTmp}, 11")
    for u in range(18):
        a = ACC + u*8; p = vB + (u % 8)*4
        for i in range(4): epi(f"v_cvt_pk_bf16_f32 v{p+i}, v{a+2*i}, v{a+2*i+1}")
        if "f16" in OPT:
            epi(f"buffer_store_dwordx4 v[{p}:{p+3}], v{vL16}, s[{sPT}:{sPT+3}], s{sTmp} offen offset:{(u % 2)*1024} sc1")
        else:
            for tt in range(2):
                epi(f"buffer_store_dwordx2 v[{p+2*tt}:{p+2*tt+1}], v{vPs}, s[{sPT}:{sPT+3}], s{sTmp} offen offset:{(u % 2)*1024 + tt*256} sc1")
        if u % 2 == 1: epi(f"s_add_u32 s{sTmp}, s{sTmp}, 2048")
    if "wbl2" in OPT:
        epi("s_waitcnt vmcnt(0)")
        epi("s_barrier")
        epi(f"s_cmp_eq_u32 s{sW}, 0")
        epi("s_cbranch_scc0 L_dn_nowb")
        epi("buffer_wbl2 sc1")
        epi.label("L_dn_nowb")
    if "flags" in OPT:
        signal(epi, sWS, [f"s_lshr_b32 s{sTmp}, s{sTB}, 2", f"s_lshl_b32 s{sTmp}, s{sTmp}, 1", f"s_add_u32 s{sTmp}, s{sTmp}, s{sNH}", f"s_add_u32 s{sTmp}, s{sTmp}, 64"], sTmp, sW, 10, "d", 1)
    if "nowo" not in OPT:
        epi(f"s_lshr_b32 s{sTmp}, s2, 3")
        epi(f"s_and_b32 s{sTmp}, s{sTmp}, 31")
        epi(f"s_lshl_b32 s{sTmp}, s{sTmp}, 2")
        epi(f"s_add_u32 s{sTmp}, s{sTmp}, s{sW}")
        epi(f"s_mul_i32 s{sTmp}, s{sTmp}, {6*1024}")
        srd(epi, sWD, sWS, SZ_WO, WS_WOF)
        for i in range(6):
            epi(f"buffer_load_dwordx4 v[{ACC+4*i}:{ACC+4*i+3}], v{vL16}, s[{sWD}:{sWD+3}], s{sTmp} offen")
            epi(f"s_add_u32 s{sTmp}, s{sTmp}, 1024")
    assert len(check(R(tr) + [x for x in epi.ins if not x.startswith("s_cbranch")], "down")) == 0 or (OPT - {"hi1","hi2","hi3","xtok","wbl2","f16","flags","hs13","hs14","hs15","hs16","hs10","hs12","al"})
    o = Blk(); o.ext(R(pro))
    if "stamp" in OPT: o("s_memtime s[76:77]"); o("s_waitcnt lgkmcnt(0)")
    hi = [x for x in OPT if x.startswith("hi")]
    if hi or any(x.startswith("hs") for x in OPT): o("s_setprio 2")
    if "al" in OPT: o(".p2align 6")
    o.label("L_dn_loop"); o.ext(R(bd))
    if hi:
        n = int(hi[0][2:])
        o(f"s_cmp_eq_u32 s{sIt}, {4-n}")
        o("s_cbranch_scc0 L_dn_keep")
        o("s_setprio 0")
        o.label("L_dn_keep")
    o.ext(tail); o("s_cbranch_scc1 L_dn_loop")
    if "stamp" in OPT:
        o("s_memtime s[78:79]"); o("s_waitcnt lgkmcnt(0)"); o("s_sub_u32 s98, s78, s76")
    o.ext(epi)
    return o

def gen_down_kernel(prof=False, opts=()):
    name = "down_kernel"
    b = Blk()
    b("s_cmp_ge_u32 s2, 256")
    b("s_cbranch_scc1 L_dn_end")
    if prof: prof_begin(b)
    b.ext(gen_down_role(opts))
    if prof: prof_end(b, 3, 4)
    b.label("L_dn_end")
    b("s_endpgm")
    return name, kernel_text(name, b.text(), 256, 256, 100)
if __name__ == "__main__":
    n, t = gen_down_kernel()
    open("k2b.s", "w").write('.amdgcn_target "amdgcn-amd-amdhsa--gfx950"\n' + t)
```

```python
from common import *
import math
HALF = 73728; SCR = 2*HALF; K1_LDS = SCR + 1024
C1 = -2.0*math.sqrt(2.0/math.pi)*math.log2(math.e); C2 = C1*0.044715
QSCALE = (18.0**-0.5)*math.log2(math.e)
sWS, sWQp, sWGp, sWUp = 4, 6, 8, 10
sXN, sLD, sH, sO, sWP, sWQ = 12, 16, 20, 24, 28, 48
sWD = 12
sWDp = 58
sR2, sR3, sR4, sD1, sD2, sT0 = 52, 53, 54, 55, 56, 57
sRot4, sStK, sXb, sLDk, sLDi, sLDb, sLDc, sLDl, sTmp3 = 60, 61, 62, 63, 64, 65, 66, 67, 68
vDF = [5, 6]
vFF = [12, 13, 14, 15]
sW, sTB, sN1, sPh, sT, sP, sHoff, sW1024, sLDo, sLDs, sTmp, sTmp2, sScale, sOff, sRB, sCG = range(32, 48)
vHs, vL16, vDQ, vDP, vLD, vC2 = 1, 2, 3, 4, 5, 6
vTR = [7, 8, 9, 10]
vPart = 11
vT = 12
ACC = [(16, 32), (48, 64)]
X = 80
SACC = 96
OPT = set()
W = None
PRE = 2

def gelu_epilogue(G, U, delta='2048'):
    e = []
    for grp in range(4):
        E = [4*grp+i for i in range(4)]
        e += [f"v_mul_f32 v{vT+i}, v{G+E[i]}, v{G+E[i]}" for i in range(4)]
        e += [f"v_fmaak_f32 v{vT+i}, v{vT+i}, v{vC2}, {f32hex(C1)}" for i in range(4)]
        e += [f"v_mul_f32 v{vT+i}, v{vT+i}, v{G+E[i]}" for i in range(4)]
        e += [f"v_exp_f32 v{vT+i}, v{vT+i}" for i in range(4)]
        e += [f"v_mul_f32 v{G+E[i]}, v{G+E[i]}, v{U+E[i]}" for i in range(4)]
        e += [f"v_add_f32 v{vT+i}, 1.0, v{vT+i}" for i in range(4)]
        e += [f"v_rcp_f32 v{vT+i}, v{vT+i}" for i in range(4)]
        e += [f"v_mul_f32 v{G+E[i]}, v{G+E[i]}, v{vT+i}" for i in range(4)]
        e += [f"v_cvt_pk_bf16_f32 v{U+2*grp}, v{G+4*grp}, v{G+4*grp+1}",
              f"v_cvt_pk_bf16_f32 v{U+2*grp+1}, v{G+4*grp+2}, v{G+4*grp+3}"]
        nb, tt = grp//2, grp % 2
        e += [f"buffer_store_dwordx2 v[{U+2*grp}:{U+2*grp+1}], v{vHs}, s[{sH}:{sH+3}], s{sHoff} offen offset:{nb*1024 + tt*256}" + ("" if "plainst" in OPT else " sc1")]
    e.append(f"s_add_u32 s{sHoff}, s{sHoff}, {delta}")
    if "noepi" in OPT: e = [x for x in e if not x.startswith("v_")]
    if "nost" in OPT: e = [x for x in e if not x.startswith("buffer")]
    return e

def rd2(bases, nb, off, r):
    base, o = (bases[nb], off) if off < 65536 - 256 else (bases[2+nb], off - 65536)
    return [f"ds_read_b64_tr_b16 v[{r}:{r+1}], v{base} offset:{o}",
            f"ds_read_b64_tr_b16 v[{r+2}:{r+3}], v{base} offset:{o+256}"]
def poff(m, mat): return (m//2)*8192 + (((2*m) % 4)*2 + mat)*1024
def preg(f): return X + (f % 6)*4
def pair_reads(f): return rd2(vTR, f % 2, poff(f//4, (f//2) % 2), preg(f))
def sreg(f): return X + (f % 4)*4
def single_reads(f): return rd2(vTR, f % 2, (f//2)*2048, sreg(f))
def ffreg(f): return X + (f % 8)*4
def ff_reads(f):
    bases = vTR if (f//4) % 2 == 0 else vFF
    if "r128" not in OPT: return rd2(bases, f % 2, poff(f//8, (f//2) % 2), ffreg(f))
    nb = f % 2; off = poff(f//8, (f//2) % 2); r = ffreg(f)
    base, o = (bases[nb], off) if off < 65536 - 512 else (bases[2+nb], off - 65536)
    return [f"ds_read_b64_tr_b16 v[{r}:{r+1}], v{base} offset:{o}",
            f"ds_read_b64_tr_b16 v[{r+2}:{r+3}], v{base} offset:{o+512}"]
def set_bases(kind, half, dst=None):
    dst = dst or vTR
    sh = 11 if kind == "pair" else 10
    return [f"v_lshrrev_b32 v{dst[0]}, 5, v0", f"v_lshlrev_b32 v{dst[0]}, {sh}, v{dst[0]}",
            f"v_add_u32 v{dst[0]}, v{dst[0]}, v{vPart}", f"v_add_u32 v{dst[0]}, {half*HALF}, v{dst[0]}",
            f"v_xor_b32 v{dst[1]}, 32, v{dst[0]}",
            f"v_add_u32 v{dst[2]}, 0x10000, v{dst[0]}", f"v_add_u32 v{dst[3]}, 0x10000, v{dst[1]}"]

def loader(i, half):
    if "rot" not in OPT:
        return [f"s_add_u32 m0, s{sW1024}, {half*HALF + i*8192}",
                f"s_nop 0",
                f"buffer_load_dwordx4 v{vLD}, s[{sLD}:{sLD+3}], s{sLDo} offen lds ;#ld",
                f"s_add_u32 s{sLDo}, s{sLDo}, s{sLDs}"]
    return [f"s_mul_i32 s{sLDo}, s{sLDk}, s{sLDb}",
            f"s_add_u32 s{sLDo}, s{sLDo}, s{sLDc}",
            f"s_cmp_lt_u32 s{sLDl}, 36",
            f"s_cselect_b32 s{sLDo}, s{sLDo}, 0x7f000000",
            f"s_add_u32 m0, s{sW1024}, {half*HALF + i*8192}",
            f"s_add_u32 s{sLDl}, s{sLDl}, s{sLDi}",
            f"buffer_load_dwordx4 v{vLD}, s[{sLD}:{sLD+3}], s{sLDo} offen lds ;#ld",
            f"s_add_u32 s{sLDk}, s{sLDk}, s{sLDi}",
            f"s_cmp_ge_u32 s{sLDk}, 36",
            f"s_cselect_b32 s{sTmp3}, 36, 0",
            f"s_sub_u32 s{sLDk}, s{sLDk}, s{sTmp3}"]
def rot_start(add):
    return [f"s_add_u32 s{sLDk}, s{sLDl}, s{sRot4}", f"s_cmp_ge_u32 s{sLDk}, 36", f"s_cselect_b32 s{sTmp3}, 36, 0", f"s_sub_u32 s{sLDk}, s{sLDk}, s{sTmp3}"]
def next_reads(kind):
    if kind == "pair": return [pair_reads(f) for f in range(4)]
    return [single_reads(f) for f in range(3)]
def mm(A, a_op, b_op, first):
    return f"v_mfma_f32_16x16x32_bf16 v[{A}:{A+3}], {a_op}, {b_op}, " + ("0" if first else f"v[{A}:{A+3}]")
def place(main, extra):
    out = []; a = 0
    for s in main:
        out.append(s)
        if s.startswith("v_mfma"):
            out += extra.get(a, []); a += 1
    return out

def pair_body(cur, half, nxt_kind, pf=(), delta="2048"):
    G, U = ACC[cur]; Gp, Up = ACC[1-cur]
    main = []
    NF = 72; PD = 4
    for f in range(NF):
        m, mat, nb = f//4, (f//2) % 2, f % 2
        r = preg(f); A = (G, U)[mat] + nb*8
        last = f >= NF - 2
        if f == NF - 2:
            main += [W.wv("ld"), "s_waitcnt lgkmcnt(0)", "s_barrier"] + set_bases(nxt_kind, 1-half)
        if not last:
            if "w2" in OPT:
                if f % 2 == 0: main.append(W.wl(f"v[{r}:{r+3}]", f"v[{preg(f+1)}:{preg(f+1)+3}]"))
            else: main.append(W.wl(f"v[{r}:{r+3}]"))
        if f + PD < NF: rr = pair_reads(f + PD)
        elif last:
            nr = next_reads(nxt_kind); k = f - (NF - 2)
            rr = sum(nr[2*k:2*k+2], [])
        else: rr = []
        main.append(mm(A, f"v[{r}:{r+3}]", f"a[{8*m}:{8*m+3}]", m == 0))
        main += rr[:len(rr)//2]
        main.append(mm(A+4, f"v[{r}:{r+3}]", f"a[{8*m+4}:{8*m+7}]", m == 0))
        main += rr[len(rr)//2:]
    extra = {}
    LS = 4
    for o_ in OPT:
        if o_.startswith("ls"): LS = int(o_[2:])
    for i in range(9): extra.setdefault(LS*i + 2, []).extend(loader(i, 1-half))
    for q, op in enumerate(pf): extra.setdefault(LS*9 + 6 + 8*q, []).extend(op)
    if "nodma" in OPT: extra = {k: [x for x in v if not x.startswith("buffer")] for k, v in extra.items()}
    main = place(main, extra)
    return interleave(main, gelu_epilogue(Gp, Up, delta), start=6, end=132)

def stream_ops(j):
    ops = []
    rot = "rot" in OPT
    for h in range(2):
        o = []
        if rot and h == 0:
            o += [f"s_mul_i32 s{sTmp3}, s{sStK}, {4*147456}", f"s_add_u32 s{sTmp3}, s{sTmp3}, s{sP}"]
        if "r128" in OPT:
            o += [f"s_add_u32 m0, s{sW1024}, {h*HALF + j*8192}",
                  f"s_add_u32 s{sTmp}, s{sP}, {4*j*147456 + 8*9216*h}",
                  f"buffer_load_dwordx4 v{vDF[h]}, s[{sWP}:{sWP+3}], s{sTmp} offen lds ;#w{j}"]
            ops.append(o); continue
        o += [f"s_add_u32 m0, s{sW1024}, {h*HALF + j*8192}",
              (f"s_add_u32 s{sTmp}, s{sTmp3}, {64*h}" if rot else f"s_add_u32 s{sTmp}, s{sP}, {4*j*147456 + 64*h}"),
              f"buffer_load_dwordx4 v{vDP}, s[{sWP}:{sWP+3}], s{sTmp} offen lds ;#w{j}"]
        ops.append(o)
    for q in range(4):
        ks = 4*j + q
        o = []
        if rot and q == 0:
            o += [f"s_lshl_b32 s{sOff}, s{sStK}, 12", f"s_add_u32 s{sOff}, s{sOff}, s{sXb}"]
        elif q == 0 and j: o.append(f"s_add_u32 s{sOff}, s{sOff}, 4096")
        o.append(f"buffer_load_dwordx4 a[{4*ks}:{4*ks+3}], v{vL16}, s[{sXN}:{sXN+3}], s{sOff} offen offset:{q*1024} ;#x{ks}")
        if rot and q == 3:
            o += [f"s_add_u32 s{sStK}, s{sStK}, 1", f"s_cmp_eq_u32 s{sStK}, 9", f"s_cselect_b32 s{sStK}, 0, s{sStK}"]
        ops.append(o)
    return ops

def t0_loader(i):
    if "rot" in OPT:
        pre = []
        if i == 0: pre = ld_single(0)
        return pre + loader(i, 0)
    return [f"s_add_u32 m0, s{sW1024}, {i*8192}",
            f"s_add_u32 s{sTmp}, s{sLDo}, {i*8*55296}",
            f"buffer_load_dwordx4 v{vDQ}, s[{sWQ}:{sWQ+3}], s{sTmp} offen lds ;#ld"]

def l2_prefetch():
    ops = []
    for q in (2, 3, 4):
        o = [f"s_mul_i32 s{sTmp}, s{sRB}, {4*147456}",
             f"s_add_u32 s{sTmp}, s{sTmp}, s{sP}",
             f"s_add_u32 s{sTmp}, s{sTmp}, s{ {2: sR2, 3: sR3, 4: sR4}[q] }"]
        if q == 4:
            o += [f"s_cmp_lt_u32 s{sCG}, 16", f"s_cselect_b32 s{sTmp}, s{sTmp}, 0x7f000000"]
        o += [f"s_mov_b32 m0, {SCR}", "s_nop 0",
              f"buffer_load_dwordx4 v{vDP}, s[{sWP}:{sWP+3}], s{sTmp} offen lds ;#pf"]
        ops.append(o)
    for q in (1, 2):
        o = [f"s_mul_i32 s{sTmp}, s{sRB}, {8*55296}",
             f"s_add_u32 s{sTmp}, s{sTmp}, s{sT0 if 'rot' in OPT else sLDo}",
             f"s_add_u32 s{sTmp}, s{sTmp}, {16*64*q}",
             f"s_sub_u32 s{sTmp2}, s{sCG}, 16",
             f"s_cmp_lt_u32 s{sTmp2}, {16 if q == 1 else 6}",
             f"s_cselect_b32 s{sTmp}, s{sTmp}, 0x7f000000",
             f"s_mov_b32 m0, {SCR}", "s_nop 0",
             f"buffer_load_dwordx4 v{vDQ}, s[{sWQ}:{sWQ+3}], s{sTmp} offen lds ;#pf"]
        ops.append(o)
    return ops

def wd_prefetch():
    ops = []
    for n in range(3):
        ops.append([f"s_lshr_b32 s{sTmp}, s2, 3",
                    f"s_lshl_b32 s{sTmp}, s{sTmp}, 3",
                    f"s_add_u32 s{sTmp}, s{sTmp}, s{sW}",
                    f"s_add_u32 s{sTmp}, s{sTmp}, {256*n}",
                    f"s_lshl_b32 s{sTmp}, s{sTmp}, 10",
                    f"s_cmp_lt_u32 s{sTmp}, {576*1152}",
                    f"s_cselect_b32 s{sTmp}, s{sTmp}, 0x7f000000",
                    f"s_and_b32 s{sTmp2}, s2, 7",
                    f"s_mul_i32 s{sTmp2}, s{sTmp2}, {576*1152}",
                    f"s_add_u32 s{sTmp}, s{sTmp}, s{sTmp2}",
                    f"s_mov_b32 m0, {SCR}", "s_nop 0",
                    f"buffer_load_dwordx4 v{vL16}, s[{sWD}:{sWD+3}], s{sTmp} offen lds ;#pf"])
    return ops

def ff2_body():
    main = []
    NF = 144; PD = 4
    for f in range(NF):
        m, t, mat, nb = f//8, (f//4) % 2, (f//2) % 2, f % 2
        if f % 16 == 0 and 0 < f < 128:
            j = f//16
            main.append(W.wv(f"w{j+1}")); main.append("s_barrier")
            if "fstamp" in OPT: main += [f"s_memtime s[{70+2*j}:{71+2*j}]", "s_waitcnt lgkmcnt(0)"]
        r = ffreg(f); A = ACC[t][mat] + nb*8
        last = f >= NF - 2
        if f == NF - 2:
            main += [W.wv("ld"), "s_waitcnt lgkmcnt(0)", "s_barrier"] + set_bases("single", 0)
        if f % 8 == 0: main += [W.wv(f"x{2*m}"), W.wv(f"x{2*m+1}")]
        if not last: main.append(W.wl(f"v[{r}:{r+3}]"))
        if f + PD < NF: rr = ff_reads(f + PD)
        elif last:
            nr = next_reads("single"); k = f - (NF - 2)
            rr = sum(nr[2*k:2*k+2], [])
        else: rr = []
        main.append(mm(A, f"v[{r}:{r+3}]", f"a[{8*m}:{8*m+3}]", m == 0))
        main += rr[:len(rr)//2]
        main.append(mm(A+4, f"v[{r}:{r+3}]", f"a[{8*m+4}:{8*m+7}]", m == 0))
        main += rr[len(rr)//2:]
    extra = {}
    for j in range(9 - PRE):
        for q, op in enumerate(stream_ops(j + PRE)): extra.setdefault(32*j + 4*q + 2, []).extend(op)
    for i in range(5): extra.setdefault(32*(i+1) + 28, []).extend(t0_loader(i))
    if "early" in OPT:
        if "nopf" not in OPT:
            for q, op in enumerate(l2_prefetch()): extra.setdefault(32*6 + 1 + 6*q, []).extend(op)
        extra.setdefault(32*7 + 1, []).extend(ld_pair(2))
        for i in range(7): extra.setdefault(32*7 + 3 + 8*i, []).extend([x.replace(";#ld", ";#lq") for x in loader(i, 1)])
    elif "nopf" not in OPT and "latepf" not in OPT:
        for q, op in enumerate(l2_prefetch()): extra.setdefault(32*7 + 6 + 8*q, []).extend(op)
    return place(main, extra)

def single_epilogue(isV):
    A = SACC
    b = Blk()
    if isV:
        b(f"s_sub_u32 s{sTmp}, s{sT}, 36")
        b(f"s_lshl_b32 s{sTmp}, s{sTmp}, 11")
        b(f"s_add_u32 s{sTmp}, s{sTmp}, {2*SZ_T}")
        b(f"v_lshrrev_b32 v{vT}, 5, v0"); b(f"v_lshlrev_b32 v{vT}, 9, v{vT}")
        b(f"v_and_b32 v{vT+1}, 15, v0"); b(f"v_lshl_add_u32 v{vT}, v{vT+1}, 4, v{vT}")
        b(f"v_bfe_u32 v{vT+1}, v0, 4, 1"); b(f"v_lshl_add_u32 v{vT}, v{vT+1}, 3, v{vT}")
    else:
        b(f"s_cmp_ge_u32 s{sT}, 18")
        b(f"s_cselect_b32 s{sTmp}, {SZ_T - 18*2048}, 0")
        b(f"s_cselect_b32 s{sScale}, 1.0, {f32hex(QSCALE)}")
        b(f"s_lshl_b32 s{sTmp2}, s{sT}, 11")
        b(f"s_add_u32 s{sTmp}, s{sTmp}, s{sTmp2}")
        b(f"v_lshrrev_b32 v{vT}, 5, v0"); b(f"v_lshlrev_b32 v{vT}, 9, v{vT}")
        b(f"v_bfe_u32 v{vT+1}, v0, 4, 1"); b(f"v_lshl_add_u32 v{vT}, v{vT+1}, 8, v{vT}")
        b(f"v_and_b32 v{vT+1}, 15, v0"); b(f"v_lshl_add_u32 v{vT}, v{vT+1}, 3, v{vT}")
    b(f"s_mul_i32 s{sTmp2}, s{sTB}, 36864")
    b(f"s_add_u32 s{sTmp}, s{sTmp}, s{sTmp2}")
    if not isV:
        for i in range(16): b(f"v_mul_f32 v{A+i}, s{sScale}, v{A+i}")
    for i in range(8): b(f"v_cvt_pk_bf16_f32 v{A+i}, v{A+2*i}, v{A+2*i+1}")
    for g in range(4):
        nb, tt = g//2, g % 2
        off = (tt*1024 + nb*256) if isV else (nb*1024 + tt*128)
        b(f"buffer_store_dwordx2 v[{A+2*g}:{A+2*g+1}], v{vT}, s[{sO}:{sO+3}], s{sTmp} offen offset:{off}" + ("" if "plainqkv" in OPT else " sc1"))
    b(f"s_add_u32 s{sT}, s{sT}, 16")
    b("s_nop 0")
    return b.ins

def single_body(isV, half, gelu_set, nxt_kind, nld, ld0=0, pf=()):
    main = []
    NF = 36; PD = 3
    for f in range(NF):
        m, nb = f//2, f % 2
        r = sreg(f); A = SACC + nb*8
        last = f >= NF - 1
        if last: main += [W.wv("ld"), "s_waitcnt lgkmcnt(0)", "s_barrier"] + set_bases(nxt_kind, 1-half)
        else: main.append(W.wl(f"v[{r}:{r+3}]"))
        if f + PD < NF: rr = single_reads(f + PD)
        elif last: rr = sum(next_reads(nxt_kind)[:3], [])
        else: rr = []
        w_, x0, x1 = f"v[{r}:{r+3}]", f"a[{8*m}:{8*m+3}]", f"a[{8*m+4}:{8*m+7}]"
        main.append(mm(A, x0, w_, m == 0) if isV else mm(A, w_, x0, m == 0))
        main += rr[:len(rr)//2]
        main.append(mm(A+4, x1, w_, m == 0) if isV else mm(A+4, w_, x1, m == 0))
        main += rr[len(rr)//2:]
    if nxt_kind == "pair": main += next_reads("pair")[3]
    extra = {}
    for i in range(ld0, nld): extra.setdefault(4*(i-ld0) + 2, []).extend(loader(i, 1-half))
    for q, op in enumerate(pf): extra.setdefault(40 + 6*q, []).extend(op)
    main = place(main, extra)
    if gelu_set is not None: main = interleave(main, gelu_epilogue(*ACC[gelu_set]), start=6, end=68)
    return main + single_epilogue(isV)

def ld_pair(q):
    rel = {2: sR2, 3: sR3, 4: sR4}[q]
    o = [f"s_mov_b32 s{sLD}, s{sWP}", f"s_mov_b32 s{sLD+1}, s{sWP+1}", f"s_mov_b32 s{sLD+2}, {SZ_WG}", f"v_mov_b32 v{vLD}, v{vDP}"]
    if "rot" in OPT:
        o += [f"s_lshr_b32 s{sLDl}, s{sW}, 1", f"s_mul_i32 s{sTmp3}, s{sLDl}, 147456", f"s_sub_u32 s{sLDc}, s{sP}, s{sTmp3}",
              f"s_add_u32 s{sLDc}, s{sLDc}, s{rel}", f"s_mov_b32 s{sLDi}, 4", f"s_mov_b32 s{sLDb}, 147456"] + rot_start(0)
    else:
        o += [f"s_add_u32 s{sLDo}, s{sP}, s{rel}", f"s_mov_b32 s{sLDs}, {4*147456}"]
    return o
def ld_single(add, cond=None):
    o = [f"s_mov_b32 s{sLD}, s{sWQ}", f"s_mov_b32 s{sLD+1}, s{sWQ+1}"]
    if cond is None: o.append(f"s_mov_b32 s{sLD+2}, {SZ_WQKV}")
    else: o += cond + [f"s_cselect_b32 s{sLD+2}, {SZ_WQKV}, 0"]
    if "rot" in OPT:
        o += [f"s_add_u32 s{sLDc}, s{sT}, {add}", f"s_lshl_b32 s{sLDc}, s{sLDc}, 6", f"s_mov_b32 s{sLDl}, s{sW}",
              f"s_mov_b32 s{sLDi}, 8", f"s_mov_b32 s{sLDb}, 55296"] + rot_start(0) + [f"v_mov_b32 v{vLD}, v{vDQ}"]
    else:
        o += [f"s_add_u32 s{sLDo}, s{sT}, {add}", f"s_lshl_b32 s{sLDo}, s{sLDo}, 6",
              f"s_mul_i32 s{sTmp}, s{sW}, 55296", f"s_add_u32 s{sLDo}, s{sLDo}, s{sTmp}",
              f"s_mov_b32 s{sLDs}, {8*55296}", f"v_mov_b32 v{vLD}, v{vDQ}"]
    return o
def ld_none(): return [f"s_mov_b32 s{sLD+2}, 0"]

def stamp(b, i, on):
    if on:
        b(f"s_memtime s[{60+2*i}:{61+2*i}]")
        b("s_waitcnt lgkmcnt(0)")

def gen_k1(xmap="R8", prof=False, opts=()):
    global W, PRE
    OPT.clear(); OPT.update(opts)
    PRE = 2
    for o in opts:
        if o.startswith("pre"): PRE = int(o[3:])
    W = Waits()
    name = "gemm1_kernel"
    b = Blk(name)
    stamp(b, 0, prof)
    b("s_cmp_ge_u32 s2, 256")
    b("s_cbranch_scc1 L_k1_end")
    if "rt" in OPT: prof_begin(b)
    b(f"s_load_dwordx2 s[{sWS}:{sWS+1}], s[0:1], {KA_WS}")
    b(f"s_load_dwordx2 s[{sWQp}:{sWQp+1}], s[0:1], {KA_WQKV}")
    b(f"s_load_dwordx2 s[{sWGp}:{sWGp+1}], s[0:1], {KA_WG}")
    b(f"s_load_dwordx2 s[{sWUp}:{sWUp+1}], s[0:1], {KA_WU}")
    b(f"s_load_dwordx2 s[{sWDp}:{sWDp+1}], s[0:1], {KA_WD}")
    b(f"v_readfirstlane_b32 s{sW}, v0")
    b("v_and_b32 v0, 63, v0")
    b(f"s_lshr_b32 s{sW}, s{sW}, 6")
    b(f"v_lshlrev_b32 v{vL16}, 4, v0")
    b("v_lshrrev_b32 v12, 2, v0")
    b("v_bfe_u32 v13, v0, 1, 1")
    b("v_bfe_u32 v14, v0, 5, 1")
    b("v_xor_b32 v13, v13, v14")
    b("v_lshlrev_b32 v13, 5, v13")
    b("v_and_b32 v14, 1, v0")
    b("v_lshl_add_u32 v13, v14, 4, v13")
    b(f"v_mul_u32_u24 v{vDQ}, 3456, v12")
    b(f"v_add_u32 v{vDQ}, v{vDQ}, v13")
    b(f"v_mul_u32_u24 v{vDP}, 9216, v12")
    b(f"v_add_u32 v{vDP}, v{vDP}, v13")
    b(f"v_mov_b32 v{vLD}, v{vDP}")
    b("v_bfe_u32 v12, v0, 4, 1")
    b("v_mul_u32_u24 v13, 544, v12")
    b("v_bfe_u32 v14, v0, 2, 2")
    b("v_lshl_add_u32 v13, v14, 6, v13")
    b("v_and_b32 v14, 3, v0")
    b(f"v_lshl_add_u32 v{vPart}, v14, 3, v13")
    b("v_bfe_u32 v12, v0, 4, 1")
    b("v_lshlrev_b32 v12, 9, v12")
    b("v_and_b32 v13, 15, v0")
    b("v_lshl_add_u32 v12, v13, 4, v12")
    b("v_lshrrev_b32 v13, 5, v0")
    b(f"v_lshl_add_u32 v{vHs}, v13, 3, v12")
    if "r128" in OPT:
        b("v_lshrrev_b32 v12, 3, v0")
        b(f"v_mul_u32_u24 v{vDF[0]}, 9216, v12")
        b("v_bfe_u32 v13, v0, 1, 2")
        b("v_bfe_u32 v14, v0, 4, 1")
        b("v_lshlrev_b32 v14, 1, v14")
        b("v_xor_b32 v13, v13, v14")
        b(f"v_lshl_add_u32 v{vDF[0]}, v13, 5, v{vDF[0]}")
        b("v_and_b32 v13, 1, v0")
        b(f"v_lshl_add_u32 v{vDF[0]}, v13, 4, v{vDF[0]}")
        b(f"v_xor_b32 v{vDF[1]}, 32, v{vDF[0]}")
        b("v_bfe_u32 v16, v0, 4, 1")
        b(f"v_mul_u32_u24 v17, {HALF}, v16")
        b("v_lshrrev_b32 v18, 5, v0")
        b("v_lshl_add_u32 v17, v18, 11, v17")
        b("v_bfe_u32 v18, v0, 2, 2")
        b("v_lshl_add_u32 v17, v18, 7, v17")
        b("v_and_b32 v19, 3, v0")
        b("v_lshl_add_u32 v17, v19, 3, v17")
        b("v_bfe_u32 v18, v0, 3, 1")
        b("v_lshl_add_u32 v16, v18, 1, v16")
        for t, bases in ((0, vTR), (1, vFF)):
            for nb in range(2):
                b(f"v_xor_b32 v18, {2*t+nb}, v16")
                b(f"v_lshl_add_u32 v{bases[nb]}, v18, 5, v17")
                b(f"v_add_u32 v{bases[2+nb]}, 0x10000, v{bases[nb]}")
    else:
        b.ext(set_bases("pair", 0, vTR)); b.ext(set_bases("pair", 1, vFF))
    if "r128" not in OPT: b(f"v_mov_b32 v{vC2}, {f32hex(C2)}")
    b(f"s_and_b32 s{sCG}, s2, 7")
    b(f"s_lshr_b32 s{sTmp}, s2, 3")
    b(f"s_and_b32 s{sTmp}, s{sTmp}, 3")
    b(f"s_lshl_b32 s{sTmp}, s{sTmp}, 3")
    b(f"s_add_u32 s{sCG}, s{sCG}, s{sTmp}")
    b(f"s_lshr_b32 s{sRB}, s2, 5")
    b(f"s_lshl_b32 s{sTB}, s{sRB}, 3")
    b(f"s_add_u32 s{sTB}, s{sTB}, s{sW}")
    b(f"s_mul_i32 s{sP}, s{sCG}, 5")
    b(f"s_lshl_b32 s{sTmp}, s{sCG}, 2")
    b(f"s_add_u32 s{sTmp}, s{sTmp}, 16")
    b(f"s_cmp_lt_u32 s{sCG}, 16")
    b(f"s_cselect_b32 s{sP}, s{sP}, s{sTmp}")
    if "r128" in OPT:
        b(f"s_lshl_b32 s{sTmp2}, s{sCG}, 1")
        b(f"s_cmp_lt_u32 s{sCG}, 16")
        b(f"s_cselect_b32 s{sP}, s{sTmp2}, s{sTmp}")
        b(f"s_add_u32 s{sTmp2}, s{sCG}, 32")
        b(f"s_lshl_b32 s{sR2}, s{sTmp2}, 6")
        b(f"s_cmp_lt_u32 s{sCG}, 16")
        b(f"s_cselect_b32 s{sR2}, s{sR2}, 128")
        b(f"s_add_u32 s{sR3}, s{sR2}, 64")
        b(f"s_add_u32 s{sR4}, s{sR2}, 128")
        b(f"s_add_u32 s{sD1}, s{sCG}, 31")
        b(f"s_lshl_b32 s{sD1}, s{sD1}, 11")
        b(f"s_cmp_lt_u32 s{sCG}, 16")
        b(f"s_cselect_b32 s{sD1}, s{sD1}, 2048")
        b(f"s_movk_i32 s{sD2}, 2048")
    else:
        b(f"s_movk_i32 s{sR2}, 128"); b(f"s_movk_i32 s{sR3}, 192"); b(f"s_movk_i32 s{sR4}, 256")
        b(f"s_movk_i32 s{sD1}, 2048"); b(f"s_movk_i32 s{sD2}, 2048")
    b(f"s_mov_b32 s{sT}, s{sCG}")
    b(f"s_mov_b32 s{sPh}, 0")
    b(f"s_mul_i32 s{sHoff}, s{sTB}, 288")
    b(f"s_lshl_b32 s{sTmp}, s{sP}, 1")
    b(f"s_add_u32 s{sHoff}, s{sHoff}, s{sTmp}")
    b(f"s_lshl_b32 s{sHoff}, s{sHoff}, 10")
    b(f"s_lshl_b32 s{sP}, s{sP}, 6")
    b(f"s_lshr_b32 s{sTmp}, s{sW}, 1")
    b(f"s_mul_i32 s{sTmp}, s{sTmp}, 147456")
    b(f"s_add_u32 s{sP}, s{sP}, s{sTmp}")
    b(f"s_lshl_b32 s{sW1024}, s{sW}, 10")
    b(f"s_lshl_b32 s{sLDo}, s{sT}, 6")
    b(f"s_mul_i32 s{sTmp}, s{sW}, 55296")
    b(f"s_add_u32 s{sLDo}, s{sLDo}, s{sTmp}")
    b("s_waitcnt lgkmcnt(0)")
    srd(b, sXN, sWS, SZ_T, WS_XN)
    b(f"s_and_b32 s{sTmp}, s{sW}, 1")
    b(f"s_cmp_eq_u32 s{sTmp}, 0")
    b(f"s_cselect_b32 s{sWP}, s{sWGp}, s{sWUp}")
    b(f"s_cselect_b32 s{sWP+1}, s{sWGp+1}, s{sWUp+1}")
    b(f"s_mov_b32 s{sWP+2}, {SZ_WG}")
    b(f"s_mov_b32 s{sWP+3}, 0x20000")
    srd(b, sWQ, sWQp, SZ_WQKV)
    srd(b, sLD, sWQp, SZ_WQKV)
    srd(b, sH, sWS, SZ_H, WS_H)
    srd(b, sO, sWS, 3*SZ_T, WS_Q)
    b(f"s_mul_i32 s{sOff}, s{sTB}, 36864")
    if "rot" in OPT:
        b(f"s_mov_b32 s{sXb}, s{sOff}")
        b(f"s_bfe_u32 s{sStK}, s2, 0x20003")
        b(f"s_lshl_b32 s{sStK}, s{sStK}, 1")
        b(f"s_lshl_b32 s{sRot4}, s{sStK}, 2")
        b(f"s_mov_b32 s{sT0}, s{sLDo}")
    so = [stream_ops(j) for j in range(PRE)]
    if "rot" in OPT:
        for j in range(PRE):
            for op in so[j]: b.ext(op)
    else:
        for j in range(PRE):
            b.ext(so[j][0]); b.ext(so[j][1])
        for j in range(PRE):
            for op in so[j][2:]: b.ext(op)
    if "noself" not in OPT:
        b(f"s_add_u32 s{sTmp2}, s{sRB}, 1")
        b(f"s_mul_i32 s{sTmp2}, s{sTmp2}, {4*147456}")
        b(f"s_add_u32 s{sTmp2}, s{sTmp2}, s{sP}")
        for h in range(2):
            b(f"s_mov_b32 m0, {SCR}")
            b(f"s_add_u32 s{sTmp}, s{sTmp2}, {64*h}")
            b(f"buffer_load_dwordx4 v{vDP}, s[{sWP}:{sWP+3}], s{sTmp} offen lds ;#pf")
        b(f"s_mul_i32 s{sTmp}, s{sRB}, {8*55296}")
        b(f"s_add_u32 s{sTmp}, s{sTmp}, s{sLDo}")
        b(f"buffer_load_dwordx4 v{vDQ}, s[{sWQ}:{sWQ+3}], s{sTmp} offen lds ;#pf")
    b(W.wv("w0")); b("s_barrier")
    for f in range(4): b.ext(ff_reads(f))
    b(W.wv("w1")); b("s_barrier")
    stamp(b, 1, prof)
    pro = list(b.ins)
    FF = ff2_body()
    if "latepf" in OPT:
        lp = [[x.replace(f"s{sLDo}", f"s{sT0}") for x in op] for op in l2_prefetch()[1:]]
        SG0 = [f"s_mov_b32 s{sT0}, s{sLDo}"] + ld_pair(2) + single_body(False, 0, 0, "pair", 9, 0, lp)
    else:
        SG0 = (ld_pair(2) + single_body(False, 0, 0, "pair", 9)) if "early" not in OPT else single_body(False, 0, 0, "pair", 9, 7)
        if "r128" in OPT: SG0 = [f"v_mov_b32 v{vC2}, {f32hex(C2)}"] + SG0
    P0a = ld_pair(3)
    P0 = pair_body(0, 1, "pair", delta=f"s{sD1}")
    wdsrd = Blk(); srd(wdsrd, sWD, sWDp, SZ_WG)
    wpf = wd_prefetch() if "nowd" not in OPT else ()
    P1p = wdsrd.ins + ld_pair(4) + pair_body(1, 0, "pair", wpf, delta=f"s{sD2}")
    P1s = wdsrd.ins + ld_single(0) + pair_body(1, 0, "single", wpf, delta=f"s{sD2}")
    ex3 = [f"s_sub_u32 s{sTmp2}, s{sCG}, 16", f"s_cmp_lt_u32 s{sTmp2}, 6"]
    SG1 = {v: ld_single(16, ex3) + single_body(v, 1, 1, "single", 5) for v in (False, True)}
    SV = ld_none() + single_body(True, 0, None, "single", 0)
    drain = ["s_waitcnt lgkmcnt(0)", "s_nop 7"] + gelu_epilogue(*ACC[0])
    trA = pro + FF + SG0 + P0a + P0 + P1p + ld_none() + P0 + drain
    trB = pro + FF + SG0 + P0a + P0 + P1s + SG1[True] + SV
    trB2 = pro + FF + SG0 + P0a + P0 + P1s + SG1[False]
    for tr in (trA, trB, trB2): W.simulate(tr)
    R = W.resolve
    b.ins = R(b.ins)
    b.ext(R(FF))
    stamp(b, 2, prof)
    b.ext(R(SG0)); b.ext(P0a)
    if "istamp" in OPT: b("s_memtime s[72:73]"); b("s_waitcnt lgkmcnt(0)")
    b.label("L_k1_p0")
    b.ext(R(P0))
    b(f"s_cmp_eq_u32 s{sPh}, 1")
    b("s_cbranch_scc1 L_k1_drain")
    if "istamp" in OPT: b("s_memtime s[74:75]"); b("s_waitcnt lgkmcnt(0)")
    b(f"s_cmp_lt_u32 s{sCG}, 16")
    b("s_cbranch_scc0 L_k1_B")
    b.ext(R(P1p)); b.ext(ld_none())
    if "istamp" in OPT: b("s_memtime s[76:77]"); b("s_waitcnt lgkmcnt(0)")
    b(f"s_mov_b32 s{sPh}, 1")
    b(f"s_movk_i32 s{sD1}, 2048")
    b("s_branch L_k1_p0")
    b.label("L_k1_B")
    b.ext(R(P1s))
    stamp(b, 3, prof)
    b(f"s_cmp_ge_u32 s{sT}, 36")
    b("s_cbranch_scc1 L_k1_sg1v")
    b.ext(R(SG1[False])); b("s_branch L_k1_sg1d")
    b.label("L_k1_sg1v")
    b.ext(R(SG1[True]))
    b.label("L_k1_sg1d")
    b(f"s_sub_u32 s{sTmp2}, s{sCG}, 16")
    b(f"s_cmp_lt_u32 s{sTmp2}, 6")
    b("s_cbranch_scc0 L_k1_fin")
    b.ext(R(SV))
    b("s_branch L_k1_fin")
    b.label("L_k1_drain")
    stamp(b, 3, prof)
    b.ext(drain)
    b.label("L_k1_fin")
    b("s_waitcnt lgkmcnt(0)")
    if prof:
        stamp(b, 4, True)
        b("s_waitcnt vmcnt(0)")
        stamp(b, 5, True)
        b(f"s_lshl_b32 s{sTmp}, s2, 3")
        b(f"s_add_u32 s{sTmp}, s{sTmp}, s{sW}")
        b(f"s_lshl_b32 s{sTmp}, s{sTmp}, 5")
        srd(b, sXN, sWS, 1<<20, 40<<20)
        for i in range(6): b(f"v_mov_b32 v{16+i}, s{60+2*i}")
        if "fstamp" in OPT or "istamp" in OPT:
            for i in range(8): b(f"v_mov_b32 v{24+i}, s{70+2*i}")
            b("v_mov_b32 v12, 0")
            b(f"s_add_u32 s{sTmp2}, s{sTmp}, {1<<17}")
            b(f"buffer_store_dwordx4 v[24:27], v12, s[{sXN}:{sXN+3}], s{sTmp2} offen")
            b(f"buffer_store_dwordx4 v[28:31], v12, s[{sXN}:{sXN+3}], s{sTmp2} offen offset:16")
        b("v_mov_b32 v12, 0")
        b(f"buffer_store_dwordx4 v[16:19], v12, s[{sXN}:{sXN+3}], s{sTmp} offen")
        b(f"buffer_store_dwordx4 v[20:23], v12, s[{sXN}:{sXN+3}], s{sTmp} offen offset:16")
    if "rt" in OPT: prof_end(b, 1, 8)
    b.label("L_k1_end")
    b("s_endpgm")
    bad = 0
    for nm, tr in (("A", trA), ("B", trB), ("B2", trB2)): bad += len(check(R(tr), name+"_"+nm))
    assert bad == 0 or (set(opts) - {'noself','early','rt','ls8','ls6','ls12','w2','latepf','pre3','rot','r128'})
    return name, kernel_text(name, b.text(), 256, 112, 100)
if __name__ == "__main__":
    n, t = gen_k1()
    open("k1.s", "w").write('.amdgcn_target "amdgcn-amd-amdhsa--gfx950"\n' + t)
```
